```python
import torch

def _softmax(x, axis=-1):
    return torch.softmax(x, dim=axis)
def _gelu(x):
    return torch.nn.functional.gelu(x, approximate="tanh")
def _silu(x):
    return torch.nn.functional.silu(x)
def _sigmoid(x):
    return torch.sigmoid(x)
def _layernorm(x, axis=-1, eps=1e-5):
    m = x.mean(dim=axis, keepdim=True)
    v = x.var(dim=axis, keepdim=True, unbiased=False)
    return (x - m) / torch.sqrt(v + eps)
def _scatter_add(tgt, idx, src, axis=0):
    return tgt.clone().index_add_(axis, idx, src)
def _segment_sum(src, seg, n):
    out = torch.zeros((n,) + src.shape[1:], dtype=src.dtype)
    return out.index_add_(0, seg, src)
def _pad(x, pw):
    flat = tuple(v for pair in reversed(pw) for v in pair)
    return torch.nn.functional.pad(x, flat)

kernel_name = 'parallel_sum__compressed_kv_cla__dense_activation_mish__prompt'

def setup_inputs():

    _w = (lambda a: (lambda t: t.to(torch.bfloat16) if t.is_floating_point() else t)(torch.as_tensor(a)))
    def _A_setup():
        B, H, Sq, Sk, D, M = 1, 32, 2048, 2048, 128, 512
        Dc = 4 * D
        return {
            "x": _w((lambda *s: torch.randn(*s, dtype=torch.bfloat16) * 0.05)(B, Sq, M)),
            "c_kv": _w((lambda *s: torch.randn(*s, dtype=torch.bfloat16) * 0.4)(B, Sk, Dc)),
            "w_q": _w((lambda *s: torch.randn(*s, dtype=torch.bfloat16) * 3.2)(M, H, D) * (M ** -0.5)),
            "w_uk": _w((lambda *s: torch.randn(*s, dtype=torch.bfloat16) * 3.2)(Dc, H, D) * (Dc ** -0.5)),
            "w_uv": _w((lambda *s: torch.randn(*s, dtype=torch.bfloat16) * 0.4)(Dc, H, D) * (Dc ** -0.5)),
            "w_o": _w((lambda *s: torch.randn(*s, dtype=torch.bfloat16) * 0.4)(H, D, M) * ((H * D) ** -0.5)),
        }
    _A_in = _A_setup()

    def _B_setup():
        B, S, D, F = 1, 2048, 512, 1376
        return {
            "x": _w((lambda *s: torch.randn(*s, dtype=torch.bfloat16) * 0.05)(B, S, D)),
            "w1": _w((lambda *s: torch.randn(*s, dtype=torch.bfloat16) * 0.8)(D, F) * (D ** -0.5)),
            "b1": _w((lambda *s: torch.randn(*s, dtype=torch.bfloat16) * 0.2)(F)),
            "w2": _w((lambda *s: torch.randn(*s, dtype=torch.bfloat16) * 0.1)(F, D) * (F ** -0.5)),
        }
    _B_in = _B_setup()

    return {
        "A_x": _A_in["x"],
        "A_c_kv": _A_in["c_kv"],
        "A_w_q": _A_in["w_q"],
        "A_w_uk": _A_in["w_uk"],
        "A_w_uv": _A_in["w_uv"],
        "A_w_o": _A_in["w_o"],
        "B_x": _B_in["x"],
        "B_w1": _B_in["w1"],
        "B_b1": _B_in["b1"],
        "B_w2": _B_in["w2"],
    }

def reference(A_x, A_c_kv, A_w_q, A_w_uk, A_w_uv, A_w_o, B_x, B_w1, B_b1, B_w2):
    def _A_ref(x, c_kv, w_q, w_uk, w_uv, w_o):
        B, Sq, M = x.shape[0], x.shape[1], x.shape[2]
        Sk = c_kv.shape[1]
        H, D = w_q.shape[1], w_q.shape[2]
        q = torch.einsum("bqm,mhd->bhqd", x, w_q)
        k = torch.einsum("bkc,chd->bhkd", c_kv, w_uk)
        v = torch.einsum("bkc,chd->bhkd", c_kv, w_uv)
        scores = torch.einsum("bhqd,bhkd->bhqk", q, k) * (D ** -0.5)
        off = Sk - Sq
        qi = torch.arange(Sq)[:, None]
        kj = torch.arange(Sk)[None, :]
        cmask = kj <= (qi + off)
        scores = torch.where(cmask[None, None], scores, -1e9)
        p = _softmax(scores, axis=-1)
        ctx = torch.einsum("bhqk,bhkd->bhqd", p, v)
        return torch.einsum("bhqd,hdm->bqm", ctx, w_o)

    def _B_ref(x, w1, b1, w2):
        h = torch.einsum("bsd,df->bsf", x, w1) + b1
        sp = torch.log1p(torch.exp(-torch.abs(h))) + torch.where(h > 0, h, torch.zeros_like(h))
        act = h * torch.tanh(sp)
        return torch.einsum("bsf,fd->bsd", act, w2)

    x = A_x
    xn = _layernorm(x, axis=-1)
    return x + _A_ref(xn, A_c_kv, A_w_q, A_w_uk, A_w_uv, A_w_o) + _B_ref(xn, B_w1, B_b1, B_w2)
```

```python
import re

class Asm:
    def __init__(self):
        self.lines = []
        self._lab = 0
    def __call__(self, s=""):
        for ln in s.split("\n"):
            self.lines.append(ln)
    def op(self, s):
        self.lines.append("    " + s)
    def label(self, name):
        self.lines.append(name + ":")
    def newlabel(self, base="L"):
        self._lab += 1
        return f"{base}_{self._lab}"
    def comment(self, s):
        self.lines.append("    ; " + s)
    def text(self):
        return "\n".join(self.lines) + "\n"

def v(i, n=1):
    return f"v{i}" if n == 1 else f"v[{i}:{i+n-1}]"
def a(i, n=1):
    return f"a{i}" if n == 1 else f"a[{i}:{i+n-1}]"
def s(i, n=1):
    return f"s{i}" if n == 1 else f"s[{i}:{i+n-1}]"

def kernel_header(A, name):
    A(".text")
    A(f".globl {name}")
    A(".p2align 8")
    A(f".type {name},@function")
    A(f"{name}:")

def kernel_desc(A, name, vgpr=256, sgpr=102, accum=256, kernarg=104):
    A('.section .rodata,"a"')
    A(".p2align 6")
    A(f".amdhsa_kernel {name}")
    A(f"  .amdhsa_next_free_vgpr {vgpr}")
    A(f"  .amdhsa_next_free_sgpr {sgpr}")
    A(f"  .amdhsa_accum_offset {accum}")
    A("  .amdhsa_group_segment_fixed_size 0")
    A(f"  .amdhsa_kernarg_size {kernarg}")
    A("  .amdhsa_user_sgpr_count 2")
    A("  .amdhsa_user_sgpr_kernarg_segment_ptr 1")
    A("  .amdhsa_system_sgpr_workgroup_id_x 1")
    A(".end_amdhsa_kernel")
```

```python
from gen_common import *
from lsched import Item, schedule
import struct
def fbits(x): return struct.unpack("<I", struct.pack("<f", x))[0]
MARGIN = 32.0
V_LANE = 1; V_L16 = 7
V_KA = 2; V_VA = 3; V_FET = 4; V_FET2 = 5; V_T0 = 6
V_NEG = 8; V_CNT = 9; V_ONE = 10; V_FLG = 11; V_OR = 12
V_T1 = 14
V_S = 16; V_E = 48; V_P = 56; V_NM = 72; V_TMP = 88; V_E2 = 120; V_O = 128
A_K = 16; A_V = 80; A_L = 144; A_ONE = 160
def AQ(j, ds): return j * 64 + ds * 4
def AQP(j, ds): return j * 64 + 48 + ds * 4
S_WS = 8; S_WQ = 12; S_W1 = 16; S_B1 = 20; S_FS = 24
S_WAVE = 40; S_H = 41; S_P = 42; S_G = 43; S_ROLE = 44
S_TGT = 45; S_D4 = 46; S_FT = 47
S_STK = 51; S_STV = 52; S_END = 53; S_RET = 54; S_MSK = 56
S_CTX = 64; S_T = 65
S_DST = 72; S_NF = 73; S_PH = 74; S_CTXL = 75
XOFF = 0x20000; CNTOFF = 0x27f00
def T4(tau): return 4 * (tau + 2)

def S(j, mb): return V_S + (j * 2 + mb) * 4
def O(db, j): return V_O + (j * 8 + db) * 4
def E(j): return V_E if j % 2 == 0 else V_E2
def blk_mode(ttype, j, mb):
    if ttype == 'F': return 'n'
    d = 16 * (j - mb) + (0 if ttype == 'A' else -32)
    return 'n' if d > 0 else ('d' if d == 0 else 'a')
def qk(j, cinit=True):
    out = []
    for mb in range(2):
        for ds in range(4):
            D = v(S(j, mb), 4)
            C = D if ds else (v(V_NM + 4 * j, 4) if cinit else "0")
            out.append(mfma(D, a(A_K + (mb * 4 + ds) * 4, 4), a(AQ(j, ds), 4), C))
    return out
def pv(j):
    out = []
    for db in range(8):
        D = v(O(db, j), 4)
        out.append(mfma(D, a(A_V + db * 4, 4), v(V_P + 4 * j, 4), D))
    L = a(A_L + 4 * j, 4)
    out.append(mfma(L, a(A_ONE, 4), v(V_P + 4 * j, 4), L))
    return out
def mask_op(ttype, j, i):
    md = blk_mode(ttype, j, i // 4); r = i % 4; x = S(j, i // 4) + r
    if md == 'd': return f"v_cndmask_b32 v{x}, v{x}, v{V_NEG}, s[{S_MSK+2*r}:{S_MSK+2*r+1}]"
    if md == 'a': return f"v_mov_b32 v{x}, v{V_NEG}"
    return None
def ex_op(j, i, e=None): return f"v_exp_f32 v{(E(j) if e is None else e)+i}, v{S(j, i//4) + i%4}"
def cv_op(j, i, e=None):
    e = E(j) if e is None else e
    return f"v_cvt_pk_bf16_f32 v{V_P+4*j+i}, v{e+2*i}, v{e+2*i+1}"
def or_ops(j):
    P = V_P + 4 * j; R = V_OR + j // 2
    if j % 2 == 0: return [f"v_or3_b32 v{R}, v{P}, v{P+1}, v{P+2}", f"v_or_b32 v{R}, v{R}, v{P+3}"]
    return [f"v_or3_b32 v{R}, v{R}, v{P}, v{P+1}", f"v_or3_b32 v{R}, v{R}, v{P+2}, v{P+3}"]
def kread(i, reg=V_KA): return f"ds_read_b128 {a(A_K+4*i,4)}, v{reg} offset:{i*1024}"
def vread(i, reg=V_VA): return f"ds_read_b128 {a(A_V+4*i,4)}, v{reg} offset:{8192+i*1024}"
def dma(i, vreg=V_FET): return f"buffer_load_dwordx4 v{vreg}, s[{S_FS}:{S_FS+3}], s{S_FT} offen offset:{i*1024} sc1 lds"

def stub_branch(Kk, kind):
    st = Kk.newlabel("k2_st"); bk = Kk.newlabel("k2_bk")
    Kk.stubs.append((st, bk, kind))
    def f(Kk, st=st, bk=bk):
        Kk.op(f"s_cbranch_vccnz {st}"); Kk.label(bk)
    return f
def emit_stubs(Kk):
    o = Kk.op
    for st, bk, kind in Kk.stubs:
        Kk.label(st)
        if kind == 'spin':
            o("s_mov_b32 s49, 0x100000")
            Kk.label(st + "_l")
            o(f"ds_read_b32 v{V_FLG}, v{V_CNT}")
            o("s_sub_u32 s49, s49, 1")
            o(f"s_cbranch_scc1 {bk}")
            o("s_waitcnt lgkmcnt(0)")
            o(f"v_cmp_gt_u32 vcc, s{S_TGT}, v{V_FLG}")
            o(f"s_cbranch_vccnz {st}_l")
        else:
            o(f"s_call_b64 s[{S_RET}:{S_RET+1}], k2_rare{kind}")
        o(f"s_branch {bk}")

def duty_generic(Kk):
    o = Kk.op
    for i in range(4): o(dma(i))
    o("s_add_u32 m0, m0, 0x4000"); o("s_and_b32 m0, m0, 0x1ffff"); o(f"s_add_u32 s{S_FT}, s{S_FT}, 0x2000")
    skip = Kk.newlabel("k2_dsk")
    o(f"s_cmp_lt_u32 s{S_TGT}, s{S_D4}"); o(f"s_cbranch_scc1 {skip}")
    for i in range(4): o(dma(i))
    o("s_add_u32 m0, m0, 0x4000"); o("s_and_b32 m0, m0, 0x1ffff"); o(f"s_add_u32 s{S_FT}, s{S_FT}, 0x2000")
    Kk.label(skip)
def arrive(): return ["s_waitcnt vmcnt(8) lgkmcnt(0)", f"ds_add_u32 v{V_CNT}, v{V_ONE}"]
def sync_check(Kk):
    b = stub_branch(Kk, 'spin')
    return [f"ds_read_b32 v{V_FLG}, v{V_CNT}", "s_waitcnt lgkmcnt(0)", f"v_cmp_gt_u32 vcc, s{S_TGT}, v{V_FLG}", b]
def step_update():
    return [f"s_add_i32 s{S_T+1}, s{S_TGT}, 8", f"s_cmp_ge_i32 s{S_T+1}, s{S_DST}", f"s_cselect_b32 s{S_STK}, 0x8000, s7",
            f"s_cmp_gt_i32 s{S_T+1}, s{S_DST}", f"s_cselect_b32 s{S_STV}, 0x8000, s7"]
def adv(reg, st): return [f"v_add_u32 v{reg}, {st}, v{reg}", f"v_and_b32 v{reg}, 0x1ffff, v{reg}"]
def em(Kk, lst):
    for e in lst:
        e(Kk) if callable(e) else Kk.op(e)

def period(Kk, nxt, dmode, cur='F', has_qk=True, loop=None):
    mf = []
    for st in range(4):
        if has_qk: mf += qk(st)
        if has_qk or st < 3: mf += pv((st + 1) % 4)
    n = len(mf)
    it = []
    def add(*a_, **k): it.append(Item(*a_, **k))
    W = 17 if has_qk else 9
    pv2 = 25 if has_qk else 9
    def softmax(j, tt, lo0, lo1, hi, prevcv):
        for i in range(8):
            lo = lo0 if i < 4 else lo1
            dep = []
            mk = mask_op(tt, j, i)
            if mk: add(f"mk{j}_{i}", mk, lo, hi); dep.append((f"mk{j}_{i}", 0))
            if prevcv: dep.append((f"cv{prevcv}_{i//2}", 0))
            if i: dep.append((f"ex{j}_{i-1}", 0))
            add(f"ex{j}_{i}", ex_op(j, i), lo, hi, after=dep)
        for i in range(4): add(f"cv{j}_{i}", cv_op(j, i), lo0, hi, after=[(f"ex{j}_{2*i+1}", 1), (f"ex{j}_{2*i}", 1)])
        o_ = or_ops(j)
        d0 = [(f"cv{j}_{i}", 0) for i in range(3 if j % 2 == 0 else 2)]
        if j == 1: d0.append(("or0_1", 0))
        add(f"or{j}_0", o_[0], lo0, hi, after=d0)
        add(f"or{j}_1", o_[1], lo0, hi, after=[(f"or{j}_0", 0), (f"cv{j}_3", 0), (f"cv{j}_2", 0)])
    def check(p, last, hi, extra=()):
        add(f"and{p}", f"v_and_b32 v{V_OR+p}, 0x40004000, v{V_OR+p}", -1, hi, after=[(last, 0)])
        add(f"cmp{p}", f"v_cmp_ne_u32 vcc, 0, v{V_OR+p}", -1, hi, after=[(f"and{p}", 0)] + list(extra))
        add(f"br{p}", stub_branch(Kk, p), -1, hi, after=[(f"cmp{p}", 1)], cost=4)
    softmax(3, cur, 0 if has_qk else -1, 0 if has_qk else -1, pv2 - 1, None)
    check(1, "or3_1", pv2 - 1)
    ar = arrive()
    if has_qk:
        add("wk0", "s_waitcnt lgkmcnt(4)", -1, -1, first=True)
        add("wk1", ar[0], 3, 3)
    else:
        add("wk1", ar[0], 0, 0)
    add("arr", ar[1], 0, 8, after=[("wk1", 0)])
    if dmode == 'g':
        add("duty", lambda Kk: duty_generic(Kk), 4, 30, after=[("wk1", 0)], cost=8)
    else:
        for i in range(4): add(f"da{i}", dma(i), 4, 30, after=[("wk1", 0)] + ([(f"da{i-1}", 0)] if i else []))
        add("m0a", "s_add_u32 m0, m0, 0x4000", 4, 40, after=[("da3", 0)])
        if dmode == 'd':
            for i in range(4): add(f"db{i}", dma(i, V_FET2), 4, 40, after=[("m0a", 1)] + ([(f"db{i-1}", 0)] if i else []))
            add("m0b", "s_add_u32 m0, m0, 0x4000", 4, 66, after=[("db3", 0)])
            add("m0c", "s_and_b32 m0, m0, 0x1ffff", 4, 66, after=[("m0b", 0)])
            add("ft", f"s_add_u32 s{S_FT}, s{S_FT}, 0x4000", 4, 66, after=[("db3", 0)])
        else:
            add("m0c", "s_and_b32 m0, m0, 0x1ffff", 4, 66, after=[("m0a", 0)])
            add("ft", f"s_add_u32 s{S_FT}, s{S_FT}, 0x2000", 4, 66, after=[("da3", 0)])
    sc = sync_check(Kk)
    if has_qk:
        softmax(0, nxt, 11, 15, 57, None)
        softmax(1, nxt, 28, 32, 57, "3")
        check(0, "or1_1", 58, extra=[("sbr", 0)])
        softmax(2, nxt, 45, 49, 67, "0")
        add("sfr", sc[0], 33, 37)
        add("sfw", sc[1], 36, 40, after=[("sfr", 3)])
        add("sfc", sc[2], 36, 40, after=[("sfw", 0), ("br1", 0)])
        add("sbr", sc[3], 36, 41, after=[("sfc", 1)], cost=4)
        vr = V_KA if dmode == 'd' else V_VA
        for i in range(8):
            add(f"vr{i}", vread(i, vr), 42 + i, 50 + i, after=[("sbr", 0)] + ([(f"vr{i-1}", 0)] if i else []))
            add(f"kr{i}", kread(i), 51 + i, 58 + i, after=[("vr7", 0)] + ([(f"kr{i-1}", 0)] if i else []))
        add("wv0", "WAITL vr3", 58, 58); add("wv1", "WAITL vr7", 62, 62)
        if dmode == 'd':
            ad = adv(V_KA, "0x8000")
            add("pa0", ad[0], 58, 67, after=[("kr7", 0)]); add("pa1", ad[1], 58, 67, after=[("pa0", 0)])
        else:
            su = step_update()
            add("su0", su[0], 44, 64)
            add("su2", lambda Kk: em(Kk, su[1:3]), 44, 64, after=[("su0", 0)], cost=8)
            add("su4", lambda Kk: em(Kk, su[3:5]), 44, 64, after=[("su2", 0)], cost=8)
            ad = adv(V_KA, f"s{S_STK}") ; add("pa0", ad[0], 58, 67, after=[("kr7", 0), ("su4", 0)]); add("pa1", ad[1], 58, 67, after=[("pa0", 0)])
            ad = adv(V_VA, f"s{S_STV}") ; add("pb0", ad[0], 50, 67, after=[("vr7", 0), ("su4", 0)]); add("pb1", ad[1], 50, 67, after=[("pb0", 0)])
        tdeps = [("sfc", 0)] + ([("su0", 0)] if dmode != 'd' else []) + ([("duty", 0)] if dmode == 'g' else [])
        add("tgt", f"s_add_u32 s{S_TGT}, s{S_TGT}, 4", 42, 67, after=tdeps + [("sbr", 0)] + ([("su4", 0)] if dmode != 'd' else []))
        if loop:
            add("lc", f"s_cmp_lt_u32 s{S_TGT}, s{loop[0]}", 66, 67, after=[("tgt", 0), ("m0c", 0), ("ft", 0)])
            add("lb", f"s_cbranch_scc1 {loop[1]}", 67, 67, after=[("lc", 0), ("pa1", 0), ("or2_1", 0)] + ([("pb1", 0)] if dmode != 'd' else []))
    else:
        add("sfr", sc[0], 16, 20); add("sfw", sc[1], 20, 24, after=[("sfr", 3)]); add("sfc", sc[2], 20, 24, after=[("sfw", 0), ("br1", 0)])
        add("sbr", sc[3], 20, 25, after=[("sfc", 1)], cost=4)
        add("tgt", f"s_add_u32 s{S_TGT}, s{S_TGT}, 4", 20, 26, after=[("sbr", 0), ("duty", 0)])
    slots = schedule(n, it, verbose=True)
    seq = []
    for g in range(-1, n): seq += slots[g]
    lds = []
    for x in seq:
        if isinstance(x.txt, str) and x.txt.startswith("WAITL"):
            tgt = x.txt.split()[1]
            k = len(lds) - 1 - lds.index(tgt)
            x.txt = f"s_waitcnt lgkmcnt({min(k, 15)})"
        elif isinstance(x.txt, str) and x.txt.startswith("ds_"): lds.append(x.name)
    X = os.environ.get("XP", "")
    def keep(e):
        if not X or dmode == 'g' or callable(e): return True
        if 'c' in X and e.startswith(("v_and_b32 v1", "v_cmp_ne", "v_or")): return False
        if 'm' in X and e.startswith("buffer_load"): return False
        if 'd' in X and e.startswith("ds_read_b128"): return False
        return True
    emit_slots(Kk, mf, {g: [x.txt for x in slots[g] if keep(x.txt)] for g in slots})

def rowmax(Kk, j, dst, tmp):
    o = Kk.op
    s0, s1 = S(j, 0), S(j, 1)
    o(f"v_max3_f32 v{dst}, v{s0}, v{s0+1}, v{s0+2}")
    o(f"v_max3_f32 v{tmp}, v{s0+3}, v{s1}, v{s1+1}")
    o(f"v_max3_f32 v{dst}, v{dst}, v{s1+2}, v{s1+3}")
    o(f"v_max_f32 v{dst}, v{dst}, v{tmp}")
    o(f"v_mov_b32 v{tmp}, v{dst}")
    o("s_nop 1")
    o(f"v_permlane16_swap_b32 v{dst}, v{tmp}")
    o(f"v_max_f32 v{dst}, v{dst}, v{tmp}")
    o(f"v_mov_b32 v{tmp}, v{dst}")
    o("s_nop 1")
    o(f"v_permlane32_swap_b32 v{dst}, v{tmp}")
    o(f"v_max_f32 v{dst}, v{dst}, v{tmp}")
def softmax_plain(Kk, j, e=None):
    for i in range(8): Kk.op(ex_op(j, i, e))
    Kk.op("s_nop 0")
    for i in range(4): Kk.op(cv_op(j, i, e))
def rare(Kk, pair):
    o = Kk.op
    Kk.label(f"k2_rare{pair}")
    o("s_nop 7"); o("s_nop 7")
    T, U, F = V_TMP, V_TMP + 1, V_TMP + 2
    for j in (2 * pair, 2 * pair + 1):
        rowmax(Kk, j, T, U)
        o(f"v_add_f32 v{T}, {hex(fbits(MARGIN))}, v{T}")
        o(f"v_max_f32 v{T}, 0, v{T}")
        o(f"v_sub_f32 v{U}, 0, v{T}")
        o(f"v_exp_f32 v{F}, v{U}")
        for r in range(4): o(f"v_sub_f32 v{V_NM+4*j+r}, v{V_NM+4*j+r}, v{T}")
        for i in range(8): o(f"v_sub_f32 v{S(j, i//4)+i%4}, v{S(j, i//4)+i%4}, v{T}")
        for db in range(8):
            for r in range(4): o(f"v_mul_f32 v{O(db,j)+r}, v{O(db,j)+r}, v{F}")
        for r in range(4):
            o(f"v_accvgpr_read_b32 v{U}, a{A_L+4*j+r}")
            o(f"v_mul_f32 v{U}, v{U}, v{F}")
            o(f"v_accvgpr_write_b32 a{A_L+4*j+r}, v{U}")
        softmax_plain(Kk, j, V_TMP + 8)
    o("s_nop 1")
    o(f"s_setpc_b64 s[{S_RET}:{S_RET+1}]")

def prologue(Kk, ttype, first=False):
    o = Kk.op
    mf = []
    for j in range(4): mf += qk(j, cinit=False)
    sl = {g: [] for g in range(-1, 32)}
    sl[-1] += arrive()
    mega = getattr(Kk, "mega", False)
    if first and mega:
        sl[-1][0] = "s_waitcnt vmcnt(0) lgkmcnt(0)"
        sl[21].append(f"buffer_store_dword v{V_ONE}, v15, s[{S_WS}:{S_WS+3}], s50 offen sc1")
        for i_, x_ in enumerate(getattr(Kk, "pro_extra", [])): sl[22 + i_].append(x_)
    if not first: sl[0].append(lambda Kk: duty_generic(Kk))
    sc = sync_check(Kk)
    sl[14].append(sc[0]); sl[18] += sc[1:3]; sl[19] += sc[3:]
    for i in range(8): sl[20 + i // 2].append(vread(i))
    for i in range(8): sl[24 + i].append(kread(i))
    sl[31] += step_update() + adv(V_KA, f"s{S_STK}") + adv(V_VA, f"s{S_STV}") + [f"s_add_u32 s{S_TGT}, s{S_TGT}, 4"]
    emit_slots(Kk, mf, sl)
    T, U = V_TMP, V_TMP + 1
    for j in range(4):
        for i in range(8):
            mk = mask_op(ttype, j, i)
            if mk: o(mk)
        rowmax(Kk, j, T, U)
        o(f"v_max_f32 v{T}, 0xf149f2ca, v{T}")
        o(f"v_add_f32 v{T}, {hex(fbits(MARGIN))}, v{T}")
        for r in range(4): o(f"v_sub_f32 v{V_NM+4*j+r}, 0, v{T}")
        for i in range(8): o(f"v_sub_f32 v{S(j, i//4)+i%4}, v{S(j, i//4)+i%4}, v{T}")
        if j < 3: softmax_plain(Kk, j)
    o(f"v_mov_b32 v{V_OR+1}, 0")
    o("s_waitcnt lgkmcnt(8)")
    for x in pv(0): o(x)
    if first:
        sk = Kk.newlabel("k2_nq")
        o(f"s_cmp_eq_u32 s{S_ROLE}, 0"); o(f"s_cbranch_scc1 {sk}")
        for j in range(4):
            for ds in range(4):
                if j * 4 + ds < 15: o(f"ds_read_b128 {a(AQP(j, ds), 4)}, v{V_T0} offset:{(j*4+ds)*1024}")
                else: o(f"ds_read_b128 {a(AQP(j, ds), 4)}, v{V_T1}")
        o("s_waitcnt lgkmcnt(0)")
        Kk.label(sk)

def idle(Kk):
    em(Kk, arrive())
    duty_generic(Kk)
    em(Kk, sync_check(Kk))
    Kk.op(f"s_add_u32 s{S_TGT}, s{S_TGT}, 4")

def fin(Kk):
    o = Kk.op
    em(Kk, arrive())
    duty_generic(Kk)
    for j in range(4):
        R = V_TMP
        o(f"v_accvgpr_read_b32 v{R}, a{A_L+4*j}")
        o(f"s_add_u32 s{S_T+2}, s{S_CTX}, {j*NKS*1024}")
        o(f"v_rcp_f32 v{R}, v{R}")
        o("s_nop 0")
        for dp in range(4):
            Pk = V_TMP + 4 + (dp % 2) * 4 + (j % 2) * 8
            for hh in range(2):
                b = O(2 * dp + hh, j)
                for r in range(4): o(f"v_mul_f32 v{b+r}, v{b+r}, v{R}")
                o(f"v_cvt_pk_bf16_f32 v{Pk+2*hh}, v{b}, v{b+1}")
                o(f"v_cvt_pk_bf16_f32 v{Pk+2*hh+1}, v{b+2}, v{b+3}")
            o(f"buffer_store_dwordx4 {v(Pk,4)}, v{V_L16}, s[{S_WS}:{S_WS+3}], s{S_T+2} offen offset:{dp*1024} sc1")
    for i in range(128): o(f"v_mov_b32 v{V_O+i}, 0")
    for i in range(16): o(f"v_accvgpr_write_b32 a{A_L+i}, 0")

def merge(Kk):
    o = Kk.op
    o("s_waitcnt vmcnt(0) lgkmcnt(0)")
    if getattr(Kk, "mega", False):
        o(f"s_cmp_eq_u32 s{S_ROLE}, 0"); o(f"s_cselect_b32 s{S_T}, 0x7f000000, s48")
        o(f"buffer_store_dword v{V_ONE}, v0, s[{S_WS}:{S_WS+3}], s{S_T} offen sc1")
    o("s_barrier")
    o(f"s_mul_i32 s{S_T}, s{S_WAVE}, 0x5000"); o(f"s_xor_b32 s{S_T+1}, s{S_WAVE}, 2"); o(f"s_mul_i32 s{S_T+1}, s{S_T+1}, 0x5000")
    o(f"v_add_u32 v{V_KA}, s{S_T}, v{V_L16}"); o(f"v_add_u32 v{V_VA}, s{S_T+1}, v{V_L16}")
    ML = V_TMP
    for j in range(4):
        o(f"v_mov_b32 v{ML+j}, v{V_NM+4*j}")
        o(f"v_accvgpr_read_b32 v{ML+4+j}, a{A_L+4*j}")
    o(f"ds_write_b128 v{V_KA}, {v(ML,4)} offset:16384")
    o(f"ds_write_b128 v{V_KA}, {v(ML+4,4)} offset:17408")
    o(f"s_cmp_eq_u32 s{S_ROLE}, 0")
    o("s_cbranch_scc0 k2_mg_h")
    def send(lo):
        for j in range(4):
            for d in range(4): o(f"ds_write_b128 v{V_KA}, {v(O(lo+d, j),4)} offset:{(j*4+d)*1024}")
    def combine(keep):
        o("s_waitcnt lgkmcnt(0)")
        o("s_barrier")
        PM = V_TMP + 8
        o(f"ds_read_b128 {v(PM,4)}, v{V_VA} offset:16384")
        o(f"ds_read_b128 {v(PM+4,4)}, v{V_VA} offset:17408")
        other = 4 - keep
        for j in range(4):
            for d in range(4): o(f"ds_read_b128 {v(O(other+d, j),4)}, v{V_VA} offset:{(j*4+d)*1024}")
        o("s_waitcnt lgkmcnt(14)")
        FA, FB = V_TMP + 16, V_TMP + 20
        for j in range(4):
            t = V_TMP + 24
            o(f"v_min_f32 v{t}, v{ML+j}, v{PM+j}")
            o(f"v_sub_f32 v{FA+j}, v{t}, v{ML+j}")
            o(f"v_sub_f32 v{FB+j}, v{t}, v{PM+j}")
            o(f"v_exp_f32 v{FA+j}, v{FA+j}")
            o(f"v_exp_f32 v{FB+j}, v{FB+j}")
            o("s_nop 0")
            o(f"v_mul_f32 v{t}, v{ML+4+j}, v{FA+j}")
            o(f"v_fmac_f32 v{t}, v{PM+4+j}, v{FB+j}")
            o(f"v_rcp_f32 v{t}, v{t}")
            o("s_nop 0")
            o(f"v_mul_f32 v{FA+j}, v{FA+j}, v{t}")
            o(f"v_mul_f32 v{FB+j}, v{FB+j}, v{t}")
        for j in range(4):
            o(f"s_waitcnt lgkmcnt({12-4*j})")
            o(f"s_add_u32 s{S_T+2}, s{S_CTX}, {j*NKS*1024 + (keep//2)*1024}")
            for dp in range(2):
                Pk = V_TMP + 28 + (dp % 2) * 4
                for hh in range(2):
                    b = O(keep + 2*dp + hh, j); c = O(other + 2*dp + hh, j)
                    for r in range(4):
                        o(f"v_mul_f32 v{b+r}, v{b+r}, v{FA+j}")
                        o(f"v_fmac_f32 v{b+r}, v{c+r}, v{FB+j}")
                    o(f"v_cvt_pk_bf16_f32 v{Pk+2*hh}, v{b}, v{b+1}")
                    o(f"v_cvt_pk_bf16_f32 v{Pk+2*hh+1}, v{b+2}, v{b+3}")
                o(f"buffer_store_dwordx4 {v(Pk,4)}, v{V_L16}, s[{S_WS}:{S_WS+3}], s{S_T+2} offen offset:{dp*1024} sc1")
                o("s_nop 0")
    send(4); combine(0)
    o("s_branch k2_done")
    Kk.label("k2_mg_h")
    send(0); combine(4)

def attention(Kk):
    o = Kk.op
    o(f"s_lshl_b32 s{S_T}, s{S_P}, 2"); o(f"s_add_u32 s{S_T}, s{S_T}, s{S_WAVE}"); o(f"s_cmp_eq_u32 s{S_T}, 2")
    o("s_cbranch_scc1 k2_proA")
    prologue(Kk, 'F', first=True)
    if not getattr(Kk, 'mega', False): Kk.stamp(6)
    o(f"s_lshl_b32 s{S_T+1}, s{S_G}, 2"); o(f"s_add_u32 s{S_NF}, s{S_T+1}, {T4(32)}")
    o(f"s_lshl_b32 s{S_T}, s{S_P}, 1"); o(f"s_add_u32 s{S_T}, s{S_T}, s{S_G}"); o(f"s_cmp_eq_u32 s{S_T}, 14"); o(f"s_cselect_b32 s{S_NF}, {T4(31)}, s{S_NF}")
    o(f"s_lshl_b32 s{S_T}, s{S_G}, 3"); o(f"s_add_u32 s{S_T}, s{S_T}, s{S_D4}"); o(f"s_sub_u32 s{S_T}, s{S_T}, 28")
    o(f"s_cmp_eq_u32 s{S_ROLE}, 0"); o(f"s_cselect_b32 s{S_NF}, s{S_NF}, s{S_T}")
    o(f"s_min_u32 s{S_END}, s{S_NF}, s{S_D4}")
    o(f"s_cmp_ge_u32 s{S_TGT}, s{S_END}"); o("s_cbranch_scc1 k2_sdone")
    o(".p2align 3")
    Kk.label("k2_sloop")
    period(Kk, 'F', 's', loop=(S_END, "k2_sloop"))
    Kk.label("k2_sdone")
    if not getattr(Kk, 'mega', False): Kk.stamp(11)
    Kk.label("k2_dentry")
    o(f"s_cmp_ge_u32 s{S_TGT}, s{S_NF}"); o("s_cbranch_scc1 k2_ddone")
    o(".p2align 3")
    Kk.label("k2_dloop")
    period(Kk, 'F', 'd', loop=(S_NF, "k2_dloop"))
    o(f"v_mov_b32 v{V_VA}, v{V_KA}")
    Kk.label("k2_ddone")
    if not getattr(Kk, 'mega', False): Kk.stamp(12)
    o(f"s_cmp_eq_u32 s{S_PH}, 1"); o("s_cbranch_scc1 k2_perB")
    period(Kk, 'A', 'g')
    o(f"s_cmp_eq_u32 s{S_NF}, {T4(31)}"); o("s_cbranch_scc1 k2_perB")
    o(f"s_cmp_eq_u32 s{S_ROLE}, 1"); o("s_cbranch_scc1 k2_perB")
    period(Kk, None, 'g', cur='A', has_qk=False)
    o("s_branch k2_tail")
    Kk.label("k2_proA")
    prologue(Kk, 'A', first=True)
    Kk.label("k2_perB")
    period(Kk, 'B', 'g')
    Kk.label("k2_drnB")
    period(Kk, None, 'g', cur='B', has_qk=False)
    o(f"s_cmp_eq_u32 s{S_ROLE}, 0"); o("s_cbranch_scc1 k2_tail")
    o(f"s_cmp_eq_u32 s{S_PH}, 1"); o("s_cbranch_scc1 k2_tail")
    Kk.stamp(7)
    fin(Kk)
    for j in range(4):
        for ds in range(4):
            for r in range(4): o(f"v_accvgpr_mov_b32 a{AQ(j, ds)+r}, a{AQP(j, ds)+r}")
    for j in range(4):
        for r in range(4): o(f"v_mov_b32 v{V_NM+4*j+r}, 0x7149f2ca")
    em(Kk, sync_check(Kk))
    o(f"s_add_u32 s{S_TGT}, s{S_TGT}, 4")
    Kk.stamp(8)
    o(f"s_mov_b32 s{S_PH}, 1"); o(f"s_mov_b32 s{S_CTX}, s{S_CTXL}")
    Kk.label("k2_hidle")
    o(f"s_add_u32 s{S_T}, s{S_TGT}, 4"); o(f"s_cmp_ge_u32 s{S_T}, s{S_D4}"); o("s_cbranch_scc1 k2_hset")
    idle(Kk)
    o("s_branch k2_hidle")
    Kk.label("k2_hset")
    o(f"s_lshl_b32 s{S_T}, s{S_P}, 1"); o(f"s_add_u32 s{S_T}, s{S_T}, s{S_G}"); o(f"s_cmp_eq_u32 s{S_T}, 14"); o("s_cbranch_scc1 k2_tail")
    o(f"s_lshl_b32 s{S_T}, s{S_D4}, 12"); o(f"s_add_u32 s{S_T}, s{S_T}, 0x1c000"); o(f"s_and_b32 s{S_T}, s{S_T}, 0x1ffff")
    o(f"v_add_u32 v{V_KA}, s{S_T}, v{V_L16}")
    for i in range(8): o(kread(i))
    em(Kk, adv(V_KA, "0x8000")); o(f"v_mov_b32 v{V_VA}, v{V_KA}")
    o(f"s_mov_b32 s{S_DST}, -1000")
    o(f"s_lshl_b32 s{S_T+1}, s{S_G}, 2"); o(f"s_add_u32 s{S_NF}, s{S_T+1}, {T4(32)}")
    o(f"s_cmp_eq_u32 s{S_P}, 7"); o("s_cbranch_scc1 k2_proB")
    prologue(Kk, 'F')
    o("s_branch k2_dentry")
    Kk.label("k2_proB")
    prologue(Kk, 'B')
    o("s_branch k2_drnB")
    Kk.label("k2_tail")
    o(f"s_cmp_gt_u32 s{S_TGT}, {T4(34)}"); o("s_cbranch_scc1 k2_merge")
    idle(Kk)
    o("s_branch k2_tail")
    Kk.label("k2_merge")
    Kk.stamp(9)
    merge(Kk)
    Kk.label("k2_done")
```

```python
import re

REG = re.compile(r'\b([vas])(?:(\d+)|\[(\d+):(\d+)\])')
def regs(tok):
    out = []
    for m in REG.finditer(tok):
        k = m.group(1)
        if m.group(2) is not None: out.append((k, int(m.group(2))))
        else: out += [(k, i) for i in range(int(m.group(3)), int(m.group(4)) + 1)]
    if re.search(r'\bvcc(_lo)?\b', tok): out += [('s', 106), ('s', 107)]
    if re.search(r'\bm0\b', tok): out += [('s', 124)]
    if re.search(r'\bexec\b', tok): out += [('s', 126), ('s', 127)]
    return out

TRANS = ('v_exp_f32', 'v_log_f32', 'v_rcp_f32', 'v_rsq_f32', 'v_sqrt_f32')

class I:
    __slots__ = ('txt', 'op', 'kind', 'defs', 'uses', 'srcc', 'srcab', 'ws', 'line', 'dpp', 'data')
def parse(line):
    t = line.split(';')[0].strip()
    if not t or t.endswith(':') or t.startswith('.'): return None
    op, _, rest = t.partition(' ')
    ops = [x.strip() for x in rest.split(',')] if rest else []
    i = I(); i.txt = t; i.op = op; i.defs = []; i.uses = []; i.srcc = []; i.srcab = []; i.ws = 1; i.dpp = False; i.data = []
    if op.startswith('v_mfma'):
        i.kind = 'mfma'; i.defs = regs(ops[0]); i.srcab = regs(ops[1]) + regs(ops[2]); i.srcc = regs(ops[3]); i.uses = i.srcab + i.srcc
        i.ws = 1
    elif op.startswith('v_cmp'):
        i.kind = 'valu'; i.defs = regs(ops[0]); i.uses = sum((regs(x) for x in ops[1:]), [])
    elif op.startswith('v_readlane') or op.startswith('v_readfirstlane'):
        i.kind = 'valu'; i.defs = regs(ops[0]); i.uses = sum((regs(x) for x in ops[1:]), [])
    elif op.startswith('v_permlane'):
        i.kind = 'valu'; i.defs = regs(ops[0]) + regs(ops[1]); i.uses = i.defs[:]
    elif op.startswith('v_'):
        i.kind = 'valu'; i.defs = regs(ops[0]); i.uses = sum((regs(x) for x in ops[1:]), [])
        if op.startswith('v_fmac') or op.startswith('v_dot2c'): i.uses += i.defs
        if op.startswith('v_add_co') or op.startswith('v_addc_co') or op.startswith('v_sub_co'):
            i.defs += regs(ops[1])
        if 'dpp' in op or 'quad_perm' in t or 'row_' in t: i.dpp = True
    elif op.startswith('ds_read'):
        i.kind = 'dsr'; i.defs = regs(ops[0]); i.uses = regs(ops[1])
    elif op.startswith('ds_write') or op.startswith('ds_add'):
        i.kind = 'dsw'; i.uses = sum((regs(x) for x in ops), []); i.data = regs(ops[1])
    elif op.startswith('ds_bpermute') or op.startswith('ds_swizzle'):
        i.kind = 'dsr'; i.defs = regs(ops[0]); i.uses = sum((regs(x) for x in ops[1:]), [])
    elif op.startswith('buffer_load') or op.startswith('global_load'):
        if re.search(r'\blds\b', t) or '_lds_' in op:
            i.kind = 'dma'; i.uses = sum((regs(x) for x in ops), []) + [('s', 124)]
        else:
            i.kind = 'vld'; i.defs = regs(ops[0]); i.uses = sum((regs(x) for x in ops[1:]), [])
    elif op.startswith('buffer_store') or op.startswith('global_store') or op.startswith('buffer_atomic') or op.startswith('global_atomic'):
        i.kind = 'vst'; i.uses = sum((regs(x) for x in ops), [])
        i.data = regs(ops[0]) if op.startswith('buffer') else regs(ops[1])
    elif op.startswith('buffer_wbl2') or op.startswith('buffer_inv'):
        i.kind = 'vst'
    elif op == 's_nop':
        i.kind = 'nop'; i.ws = int(ops[0], 0) + 1
    elif op == 's_waitcnt':
        i.kind = 'wait'
    elif op.startswith('s_load') or op.startswith('s_memtime') or op.startswith('s_memrealtime'):
        i.kind = 'smem'; i.defs = regs(ops[0]); i.uses = sum((regs(x) for x in ops[1:]), [])
    elif op.startswith('s_cmp') or op.startswith('s_cbranch') or op.startswith('s_branch') or op in ('s_barrier', 's_endpgm', 's_setprio', 's_sleep') or op.startswith('s_bitcmp'):
        i.kind = 'salu'; i.uses = sum((regs(x) for x in ops), [])
        if 'vcc' in op: i.uses += [('s', 106), ('s', 107)]
    elif op.startswith('s_'):
        i.kind = 'salu'; i.defs = regs(ops[0]); i.uses = sum((regs(x) for x in ops[1:]), [])
        if 'saveexec' in op: i.defs += [('s', 126), ('s', 127)]
    else:
        raise ValueError("unknown instr: " + t)
    return i

def check(lines, name=""):
    errs = []
    pos = 0
    last = {}
    def note(tag, rs, p):
        for r in rs: last[(tag, r)] = p
    def need(tag, rs, n, ins, why):
        for r in rs:
            p = last.get((tag, r))
            if p is not None and pos - p - 1 < n:
                errs.append(f"{name}: {why}: need {n} ws, have {pos-p-1}, reg {r[0]}{r[1]} at '{ins.txt}' (line {ins.line})")
                return
    lg = []
    vm = []
    mf_d = {}
    for ln, line in enumerate(lines):
        ins = parse(line)
        if ins is None: continue
        ins.line = ln
        k = ins.kind
        allregs = set(ins.uses) | set(ins.defs)
        if k != 'wait':
            for q, nm in ((lg, 'lgkm'), (vm, 'vm')):
                for d in q:
                    if d and (allregs & d):
                        if (k == 'dsr' and nm == 'lgkm' or k == 'vld' and nm == 'vm') and not (set(ins.uses) & d): continue
                        errs.append(f"{name}: pending {nm} load reg {sorted(allregs & d)[0]} touched by '{ins.txt}' (line {ln})")
                        break
        if k == 'wait':
            m = re.search(r'lgkmcnt\((\d+)\)', ins.txt)
            if m:
                n = int(m.group(1));
                if any(d is None for d in lg):
                    if n == 0: lg = []
                else:
                    lg = lg[len(lg) - n:] if n < len(lg) else lg
                    if n == 0: lg = []
            m = re.search(r'vmcnt\((\d+)\)', ins.txt)
            if m:
                n = int(m.group(1)); vm = vm[len(vm) - n:] if 0 < n < len(vm) else ([] if n == 0 else vm)
        vregs_use = [r for r in ins.uses if r[0] in 'va']
        sregs_use = [r for r in ins.uses if r[0] == 's']
        if k == 'mfma':
            need('valu', vregs_use, 2, ins, "VALU->MFMA")
            need('vexec', [('s', 126)], 4, ins, "VALU exec->MFMA")
            passes = 8 if '32x32' in ins.op else 4
            for r in ins.srcab:
                if r in mf_d:
                    p, ps, dt = mf_d[r]; n = {4: 8, 8: 12}[ps]
                    if pos - p - 1 < n: errs.append(f"{name}: MFMA D->AB need {n} have {pos-p-1} '{ins.txt}' (line {ln})"); break
            for r in ins.srcc:
                if r in mf_d:
                    p, ps, dt = mf_d[r]
                    if dt == tuple(ins.srcc) and ps == passes: continue
                    n = {4: 6, 8: 10}[ps]
                    if pos - p - 1 < n: errs.append(f"{name}: MFMA D->C overlap need {n} have {pos-p-1} '{ins.txt}' (line {ln})"); break
            for r in ins.defs:
                if r in mf_d and r not in ins.srcc:
                    p, ps, dt = mf_d[r]; n = {4: 6, 8: 10}[ps]
                    if pos - p - 1 < n: errs.append(f"{name}: MFMA D WAW need {n} have {pos-p-1} '{ins.txt}' (line {ln})"); break
        elif k in ('valu', 'dsr', 'dsw', 'vld', 'vst', 'dma'):
            for r in [x for x in (ins.uses + ins.defs) if x[0] in 'va']:
                if r in mf_d:
                    p, ps, dt = mf_d[r]; n = {4: 8, 8: 12}[ps]
                    if pos - p - 1 < n: errs.append(f"{name}: MFMA D->{k} need {n} have {pos-p-1} reg {r} '{ins.txt}' (line {ln})"); break
            if k == 'valu':
                for r in ins.defs:
                    p = last.get(('mfc', r))
                    if p is not None:
                        pp, n = p
                        if pos - pp - 1 < n: errs.append(f"{name}: MFMA C WAR need {n} have {pos-pp-1} '{ins.txt}' (line {ln})"); break
                need('stdata', ins.defs, 2, ins, "store data WAR")
                if not ins.op.startswith(TRANS): need('trans', vregs_use, 1, ins, "trans->VALU")
                need('vsgpr', sregs_use, 2, ins, "VALU sgpr->VALU")
                if ins.op.startswith('v_readlane') or ins.op.startswith('v_readfirstlane'):
                    need('valu', vregs_use, 1, ins, "VALU->readlane")
                if ins.op.startswith('v_permlane'): need('valu', vregs_use, 2, ins, "VALU->permlane")
                if ins.dpp: need('valu', vregs_use, 2, ins, "VALU->DPP")
            else:
                need('vsgpr', sregs_use, 5, ins, "VALU sgpr->VMEM")
                if k in ('dsr', 'vld'): need('stdata', ins.defs, 1, ins, "store data WAR(load)")
            if k == 'dma': need('m0', [('s', 124)], 1, ins, "M0->DMA")
        elif k == 'salu':
            pass
        if k == 'valu':
            note('valu', [r for r in ins.defs if r[0] in 'va'], pos)
            note('vsgpr', [r for r in ins.defs if r[0] == 's'], pos)
            if ins.op.startswith(TRANS): note('trans', ins.defs, pos)
            else:
                for r in ins.defs: last.pop(('trans', r), None)
            for r in ins.defs: mf_d.pop(r, None)
            if ('s', 126) in ins.defs: note('vexec', [('s', 126)], pos)
        if k == 'salu':
            for r in ins.defs: last.pop(('vsgpr', r), None)
            if ('s', 124) in ins.defs: note('m0', [('s', 124)], pos)
        if k == 'mfma':
            passes = 8 if '32x32' in ins.op else 4
            for r in ins.defs: mf_d[r] = (pos, passes, tuple(ins.defs))
            for r in ins.srcc: last[('mfc', r)] = (pos, {4: 3, 8: 7}[passes])
        if k in ('vst', 'dsw') and len(ins.data) >= 3 and k == 'vst': note('stdata', ins.data, pos)
        if k == 'dsr': lg.append(set(ins.defs))
        if k == 'dsw': lg.append(set())
        if k == 'smem': lg.append(None);
        if k == 'vld': vm.append(set(ins.defs))
        if k in ('vst', 'dma'): vm.append(set())
        if len([d for d in lg]) > 15 and k in ('dsr', 'dsw'):
            pass
        pos += ins.ws
    return errs
```

```python
from asmlib import *
import re

XN_OFF  = 0
KF_OFF  = 2 << 20
VF_OFF  = 18 << 20
ACT_OFF = 34 << 20
NKS     = 171
ACT_BYTES = 128 * NKS * 1024
FLG_OFF = ACT_OFF + ACT_BYTES
KVF_OFF = FLG_OFF + 4096
HF_OFF = KVF_OFF + 4096
WS_SIZE = HF_OFF + 1024
KA = dict(x=0, c=8, wq=16, wuk=24, wuv=32, wo=40, bx=48, w1=56, b1=64, w2=72, out=80, dbg=88, ws=96)
SZ = dict(x=2097152, c=2097152, wq=4194304, wuk=4194304, wuv=4194304, wo=4194304, w1=512*1376*2, b1=2752, w2=1376*512*2, out=2097152, ws=WS_SIZE, dbg=256)

STAMP_OFF = 64 << 20
import os
STAMPS = bool(os.environ.get("STAMPS"))
class K(Asm):
    def __init__(self, name):
        super().__init__()
        self.name = name
        self.vm = []
        self.lg = []
        self.stubs = []
    def stamp(self, idx, force=False):
        if not STAMPS: return
        if os.environ.get("STG") is not None and idx != 0 and not force: return
        self.op("s_memtime s[100:101]" if os.environ.get("STAMPCLK") else "s_memrealtime s[100:101]")
        self.op("s_waitcnt lgkmcnt(0)")
        self.op(f"s_mov_b32 s{80+idx}, s100")
    def stamp_flush(self, kidx, wave_s, wsptr_s, n=16):
        if not STAMPS: return
        o = self.op
        o(f"s_mov_b32 s100, s{wsptr_s}"); o(f"s_mov_b32 s101, s{wsptr_s+1}")
        o(f"s_lshl_b32 s65, s2, 2"); o(f"s_add_u32 s65, s65, s{wave_s}"); o("s_lshl_b32 s65, s65, 6")
        o(f"s_add_u32 s65, s65, {STAMP_OFF + kidx*65536*2}")
        o("s_mov_b64 exec, 1")
        for i in range(n):
            o(f"v_mov_b32 v0, s{80+i}"); o(f"v_mov_b32 v1, s65")
            o(f"global_store_dword v1, v0, s[100:101] offset:{i*4}")
        o("s_mov_b64 exec, -1")
    def vmem(self, txt, tag=None):
        self.op(txt); self.vm.append(tag)
    def vm_after(self, tag):
        idx = max(i for i, t in enumerate(self.vm) if t == tag)
        return len(self.vm) - 1 - idx
    def wait_vm(self, tags, lgkm=None):
        n = min(self.vm_after(t) for t in tags)
        n = min(n, 63)
        self.op(f"s_waitcnt vmcnt({n})" + (f" lgkmcnt({lgkm})" if lgkm is not None else ""))
    def lds(self, txt, tag=None):
        self.op(txt); self.lg.append(tag)
    def lg_n(self, tags):
        n = 15
        for t in tags:
            idx = [i for i, x in enumerate(self.lg) if x == t]
            if idx: n = min(n, len(self.lg) - 1 - max(idx))
        return n
    def wait_lg(self, tags):
        self.op(f"s_waitcnt lgkmcnt({self.lg_n(tags)})")
    def srd(self, d, ptr_s, size):
        self.op(f"s_mov_b32 s{d}, s{ptr_s}")
        self.op(f"s_mov_b32 s{d+1}, s{ptr_s+1}")
        self.op(f"s_mov_b32 s{d+2}, {size}")
        self.op(f"s_mov_b32 s{d+3}, 0x20000")

def mfma(d, a_, b_, c):
    return f"v_mfma_f32_16x16x32_bf16 {d}, {a_}, {b_}, {c}"

def emit_slots(Kk, mf, slots):
    def em(e):
        if callable(e): e(Kk)
        else: Kk.op(e)
    for e in slots.get(-1, []): em(e)
    for i, m in enumerate(mf):
        em(m)
        for e in slots.get(i, []): em(e)

def code_prefetch(Kk, end_label, vtmp, stmp, nbytes):
    o = Kk.op
    o(f"s_getpc_b64 s[{stmp}:{stmp+1}]")
    lab = Kk.newlabel(Kk.name + "_pc")
    Kk.label(lab)
    o(f"v_lshlrev_b32 v{vtmp}, 6, v0")
    n = (nbytes + 16383) // 16384
    for i in range(n):
        if i:
            o(f"v_add_u32 v{vtmp}, 0x4000, v{vtmp}")
        o(f"v_min_u32 v{vtmp+1}, {end_label}-{lab}, v{vtmp}")
        Kk.vmem(f"global_load_dword v{vtmp+2}, v{vtmp+1}, s[{stmp}:{stmp+1}]", "pf")
```

```python
from gen_common import *

def ln_rows(Kk, vb):
    o = Kk.op
    X = [vb + 8, vb + 16]
    T = [vb + 24, vb + 25]
    U = [vb + 26, vb + 27]
    M = [vb + 28, vb + 29]
    for r in range(2):
        for i in range(4):
            o(f"v_lshlrev_b32 v{X[r]+2*i}, 16, v{vb+4*r+i}")
            o(f"v_and_b32 v{X[r]+2*i+1}, 0xffff0000, v{vb+4*r+i}")
    def reduce64(src):
        for ctl in ("quad_perm:[1,0,3,2]", "quad_perm:[2,3,0,1]", "row_half_mirror", "row_mirror"):
            o("s_nop 1")
            for r in range(2):
                o(f"v_add_f32_dpp v{src[r]}, v{src[r]}, v{src[r]} {ctl} row_mask:0xf bank_mask:0xf")
        o("s_nop 0")
        for r in range(2):
            for q in range(4):
                o(f"v_readlane_b32 s{60+4*r+q}, v{src[r]}, {16*q}")
        o("s_nop 1")
        for r in range(2):
            o(f"v_mov_b32 v{src[r]}, s{60+4*r}")
        for q in range(1, 4):
            for r in range(2):
                o(f"v_add_f32 v{src[r]}, s{60+4*r+q}, v{src[r]}")
    for r in range(2):
        o(f"v_add_f32 v{T[r]}, v{X[r]}, v{X[r]+1}")
    for i in range(2, 8):
        for r in range(2):
            o(f"v_add_f32 v{T[r]}, v{T[r]}, v{X[r]+i}")
    reduce64(T)
    for r in range(2):
        o(f"v_mul_f32 v{M[r]}, 0x3b000000, v{T[r]}")
    for i in range(8):
        for r in range(2):
            o(f"v_sub_f32 v{U[r]}, v{X[r]+i}, v{M[r]}")
            if i == 0: o(f"v_mul_f32 v{T[r]}, v{U[r]}, v{U[r]}")
            else: o(f"v_fmac_f32 v{T[r]}, v{U[r]}, v{U[r]}")
    reduce64(T)
    for r in range(2):
        o(f"v_mul_f32 v{T[r]}, 0x3b000000, v{T[r]}")
        o(f"v_cvt_pk_bf16_f32 v{T[r]}, v{T[r]}, v{M[r]}")
    for r in range(2):
        o(f"v_and_b32 v{M[r]}, 0xffff0000, v{T[r]}")
        o(f"v_lshlrev_b32 v{T[r]}, 16, v{T[r]}")
        o(f"v_add_f32 v{T[r]}, 0x3727c5ac, v{T[r]}")
        o(f"v_cvt_pk_bf16_f32 v{T[r]}, v{T[r]}, v{T[r]}")
        o(f"v_and_b32 v{T[r]}, 0xffff0000, v{T[r]}")
        o(f"v_sqrt_f32 v{T[r]}, v{T[r]}")
    o("s_nop 0")
    for r in range(2):
        o(f"v_cvt_pk_bf16_f32 v{T[r]}, v{T[r]}, v{T[r]}")
        o(f"v_and_b32 v{T[r]}, 0xffff0000, v{T[r]}")
        o(f"v_rcp_f32 v{T[r]}, v{T[r]}")
    for r in range(2):
        for i in range(8):
            o(f"v_sub_f32 v{X[r]+i}, v{X[r]+i}, v{M[r]}")
        for i in range(4):
            o(f"v_cvt_pk_bf16_f32 v{vb+4*r+i}, v{X[r]+2*i}, v{X[r]+2*i+1}")
        for i in range(4):
            o(f"v_lshlrev_b32 v{X[r]+2*i}, 16, v{vb+4*r+i}")
            o(f"v_and_b32 v{X[r]+2*i+1}, 0xffff0000, v{vb+4*r+i}")
        for i in range(8):
            o(f"v_mul_f32 v{X[r]+i}, v{X[r]+i}, v{T[r]}")
        for i in range(4):
            o(f"v_cvt_pk_bf16_f32 v{vb+4*r+i}, v{X[r]+2*i}, v{X[r]+2*i+1}")

V_LANE = 1; V_ACTOFF = 2; V_DMA = 3
V_TR = 8
V_ST = 7
V_SHW = 54; V_SHR = 56; V_XNST = 58
V_WF = 16
V_ACC = 64
V_PK = 192

def proj_setup_addrs(Kk, rowstride, vdma=V_DMA):
    o = Kk.op
    o(f"v_lshrrev_b32 v48, 3, v{V_LANE}")
    o(f"v_and_b32 v49, 7, v{V_LANE}")
    o(f"v_bfe_u32 v50, v{V_LANE}, 4, 1")
    o(f"v_lshlrev_b32 v50, 1, v50")
    o(f"v_xor_b32 v49, v49, v50")
    o(f"v_xor_b32 v51, 4, v49")
    o(f"s_mov_b32 s76, {rowstride}")
    o(f"v_mul_lo_u32 v48, v48, s76")
    for i in range(4):
        o(f"v_lshl_add_u32 v{vdma+i}, v{49 if i % 2 == 0 else 51}, 4, v48")
        if i: o(f"v_add_u32 v{vdma+i}, {8*i*rowstride}, v{vdma+i}")

def proj_setup_tr(Kk):
    o = Kk.op
    o(f"v_lshrrev_b32 v48, 4, v{V_LANE}")
    o(f"v_bfe_u32 v49, v{V_LANE}, 2, 2")
    o(f"v_lshl_add_u32 v50, v48, 3, v49")
    o(f"v_lshlrev_b32 v50, 7, v50")
    o(f"v_and_b32 v51, 1, v{V_LANE}")
    o(f"v_lshl_add_u32 v50, v51, 3, v50")
    o(f"v_bfe_u32 v51, v{V_LANE}, 1, 1")
    o(f"v_lshl_add_u32 v50, v51, 4, v50")
    o(f"v_bfe_u32 v51, v{V_LANE}, 3, 1")
    o(f"v_bfe_u32 v52, v{V_LANE}, 4, 1")
    o(f"v_lshl_or_b32 v51, v52, 1, v51")
    for fb in range(4):
        o(f"v_xor_b32 v52, {fb}, v51")
        o(f"v_lshl_add_u32 v{V_TR+fb}, v52, 5, v50")
        o(f"v_add_u32 v{V_TR+4+fb}, 0x10000, v{V_TR+fb}")

def tr_reads(stage, fb):
    slot = stage % 8
    base = V_TR + (4 if slot >= 4 else 0) + fb
    out = []
    for ksl in range(4):
        for rd in range(2):
            off = (slot % 4) * 16384 + ksl * 4096 + rd * 512
            out.append(f"ds_read_b64_tr_b16 {v(V_WF + (fb % 2) * 16 + ksl * 4 + rd * 2, 2)}, v{base} offset:{off}")
    return out

def dma_stage(stage, srd, s_soff, s_ldsw, vdma=V_DMA):
    out = []
    for i in range(4):
        out.append(f"s_add_u32 m0, s{s_ldsw}, {(stage % 8) * 16384 + i * 1024}")
        out.append(lambda Kk, i=i: Kk.vmem(f"buffer_load_dwordx4 v{vdma+i}, s[{srd}:{srd+3}], s{s_soff} offen lds", f"W{stage}"))
    return out

def gen_k1():
    Kk = K("k1_kernel")
    o = Kk.op
    kernel_header(Kk, Kk.name)
    o("s_cmp_ge_u32 s2, 256")
    o("s_cbranch_scc1 k1_exit")
    if STAMPS:
        for i in range(16): o(f"s_mov_b32 s{80+i}, 0")
    Kk.stamp(0)
    o("s_load_dwordx4 s[28:31], s[0:1], 0")
    o("s_load_dwordx4 s[32:35], s[0:1], 24")
    o("s_load_dwordx2 s[36:37], s[0:1], 96")
    o(f"v_and_b32 v{V_LANE}, 63, v0")
    o("v_lshrrev_b32 v48, 6, v0")
    o(f"v_lshlrev_b32 v{V_ST}, 4, v{V_LANE}")
    o("v_readfirstlane_b32 s40, v48")
    o("s_and_b32 s41, s2, 7"); o("s_lshl_b32 s41, s41, 2")
    o("s_lshr_b32 s42, s2, 3"); o("s_and_b32 s42, s42, 3"); o("s_add_u32 s41, s41, s42")
    o("s_lshr_b32 s42, s2, 5")
    o("s_lshl_b32 s43, s42, 8"); o("s_lshl_b32 s44, s40, 6"); o("s_add_u32 s43, s43, s44")
    o(f"v_lshrrev_b32 v48, 3, v{V_LANE}"); o(f"v_and_b32 v49, 7, v{V_LANE}")
    o("v_lshlrev_b32 v50, 10, v48"); o(f"v_lshl_add_u32 v{V_ACTOFF}, v49, 4, v50")
    o("s_lshl_b32 s44, s40, 13"); o("s_add_u32 s44, s44, 0x20000")
    o(f"v_lshrrev_b32 v50, 4, v{V_LANE}"); o("v_xor_b32 v49, v49, v50")
    o("v_lshlrev_b32 v48, 7, v48"); o("v_add_u32 v48, s44, v48")
    o(f"v_lshl_add_u32 v{V_SHW}, v49, 4, v48"); o(f"v_xor_b32 v{V_SHW+1}, 64, v{V_SHW}")
    o(f"v_and_b32 v48, 15, v{V_LANE}"); o("v_lshrrev_b32 v49, 1, v48"); o("v_xor_b32 v49, v49, v50")
    o("v_lshlrev_b32 v48, 7, v48"); o("v_add_u32 v48, s44, v48")
    o(f"v_lshl_add_u32 v{V_SHR}, v49, 4, v48"); o(f"v_xor_b32 v{V_SHR+1}, 64, v{V_SHR}")
    o(f"v_lshrrev_b32 v48, 2, v{V_LANE}"); o(f"v_and_b32 v49, 3, v{V_LANE}")
    o("v_lshlrev_b32 v48, 10, v48"); o(f"v_lshl_add_u32 v{V_XNST}, v49, 8, v48")
    proj_setup_addrs(Kk, 8192)
    proj_setup_tr(Kk)
    o("s_waitcnt lgkmcnt(0)")
    Kk.srd(8, 30, SZ['c']); Kk.srd(12, 32, SZ['wuk']); Kk.srd(16, 34, SZ['wuv']); Kk.srd(20, 36, SZ['ws']); Kk.srd(24, 28, SZ['x'])
    o("s_lshl_b32 s45, s2, 3"); o("s_lshl_b32 s46, s40, 1"); o("s_add_u32 s45, s45, s46"); o("s_lshl_b32 s45, s45, 10")
    LNB = 224
    Kk.vmem(f"buffer_load_dwordx4 {v(LNB,4)}, v{V_ST}, s[24:27], s45 offen", "x")
    Kk.vmem(f"buffer_load_dwordx4 {v(LNB+4,4)}, v{V_ST}, s[24:27], s45 offen offset:1024", "x")
    o("s_lshl_b32 s47, s40, 12")
    o("s_lshl_b32 s48, s40, 18"); o("s_lshl_b32 s49, s41, 8"); o("s_add_u32 s48, s48, s49")
    for i in range(8):
        o(f"s_add_u32 s{68+i}, s43, {8*i}"); o(f"s_lshl_b32 s{68+i}, s{68+i}, 10")
    o("s_lshr_b32 s50, s45, 14"); o("s_lshl_b32 s50, s50, 14")
    o("s_lshr_b32 s51, s45, 6"); o("s_and_b32 s51, s51, 0xf0"); o("s_add_u32 s50, s50, s51")
    o("s_lshl_b32 s54, s41, 19"); o("s_lshl_b32 s55, s43, 8"); o("s_add_u32 s54, s54, s55")
    o(f"s_add_u32 s55, s54, {VF_OFF}"); o(f"s_add_u32 s54, s54, {KF_OFF}")

    def stage_w(n):
        G, q = n // 4, n % 4
        return (12 if G < 2 else 16), q * 128 * 8192 + (G % 2) * 128
    def issue_w(n, sreg):
        srd, off = stage_w(n)
        return [f"s_add_u32 s{sreg}, s48, {off}"] + dma_stage(n, srd, sreg, 47)
    def areg(u, i):
        return a(((i // 2) * 16 + 2 * u + (i % 2)) * 4, 4)
    def act_loads(q):
        out = []
        for u in (2 * q, 2 * q + 1):
            for i in range(8):
                out.append(lambda Kk, u=u, i=i: Kk.vmem(
                    f"buffer_load_dwordx4 {areg(u, i)}, v{V_ACTOFF}, s[8:11], s{68+i} offen offset:{u*128}", f"A{u}"))
        return out
    def shuffle(u):
        out = [lambda Kk, u=u: Kk.wait_vm([f"A{u}"])]
        for i in range(8):
            out.append(f"ds_write_b128 v{V_SHW + i % 2}, {areg(u, i)} offset:{i*1024}")
        for i in range(8):
            out.append(f"ds_read_b128 {areg(u, i)}, v{V_SHR + i % 2} offset:{(i//2)*2048}")
        return out
    def em(lst):
        prev_m0 = False
        for e in lst:
            if callable(e):
                if prev_m0: o("s_nop 0")
                e(Kk); prev_m0 = False
            else:
                o(e); prev_m0 = e.startswith("s_add_u32 m0")
    em(issue_w(0, 56)); em(act_loads(0)); em(issue_w(1, 56)); em(act_loads(1))
    em(act_loads(2)); em(issue_w(2, 56)); em(act_loads(3)); em(issue_w(3, 56))
    code_prefetch(Kk, "k1_exit", 48, 58, 18000)
    Kk.stamp(1)
    Kk.wait_vm(["x"])
    Kk.stamp(2)
    ln_rows(Kk, LNB)
    Kk.stamp(3)
    Kk.vmem(f"buffer_store_dwordx4 {v(LNB,4)}, v{V_XNST}, s[20:23], s50 offen", "xs")
    Kk.vmem(f"buffer_store_dwordx4 {v(LNB+4,4)}, v{V_XNST}, s[20:23], s50 offen offset:16", "xs")
    em(shuffle(0)); em(shuffle(1))
    Kk.wait_vm(["W0"])
    o("s_barrier")
    Kk.stamp(4)
    for e in tr_reads(0, 0): o(e)

    def epilogue(G):
        acc = V_ACC + (G % 2) * 64
        gi = G % 2
        out = []
        n = 0
        if G < 2:
            for tb in range(4):
                out.append(f"s_add_u32 s57, s54, {tb*4096 + gi*2048}")
                for dsl in range(2):
                    P = V_PK + (n % 8) * 4; n += 1
                    for hh in range(2):
                        b = acc + ((2*dsl+hh)*4 + tb) * 4
                        out += [f"v_mul_f32 v{b+r}, 0x3e0293ee, v{b+r}" for r in range(4)]
                        out.append(f"v_cvt_pk_bf16_f32 v{P+2*hh}, v{b}, v{b+1}")
                        out.append(f"v_cvt_pk_bf16_f32 v{P+2*hh+1}, v{b+2}, v{b+3}")
                    out.append(lambda Kk, P=P, dsl=dsl: Kk.vmem(f"buffer_store_dwordx4 {v(P,4)}, v{V_ST}, s[20:23], s57 offen offset:{dsl*1024}", "st"))
        else:
            for tp in range(2):
                out.append(f"s_add_u32 s57, s55, {tp*8192 + gi*4096}")
                for fb in range(4):
                    P = V_PK + (n % 8) * 4; n += 1
                    for hh in range(2):
                        b = acc + (fb*4 + 2*tp+hh) * 4
                        out.append(f"v_cvt_pk_bf16_f32 v{P+2*hh}, v{b}, v{b+1}")
                        out.append(f"v_cvt_pk_bf16_f32 v{P+2*hh+1}, v{b+2}, v{b+3}")
                    out.append(lambda Kk, P=P, fb=fb: Kk.vmem(f"buffer_store_dwordx4 {v(P,4)}, v{V_ST}, s[20:23], s57 offen offset:{fb*1024}", "st"))
        return out

    NST = 16
    pending_epi = []
    for n in range(NST):
        G, q = n // 4, n % 4
        acc = V_ACC + (G % 2) * 64
        mf = []
        for fb in range(4):
            for tb in range(4):
                for ksl in range(4):
                    D = v(acc + (fb*4+tb)*4, 4)
                    W = v(V_WF + (fb % 2)*16 + ksl*4, 4)
                    X = a((tb*16 + 4*q + ksl)*4, 4)
                    C = "0" if (q == 0 and ksl == 0) else D
                    mf.append(mfma(D, W, X, C) if G < 2 else mfma(D, X, W, C))
        slots = {}
        def put(i, e): slots.setdefault(i, []).append(e)
        put(-1, "s_waitcnt lgkmcnt(0)")
        if G == 0 and q < 3:
            for u, p0 in ((2*q+2, 24), (2*q+3, 40)):
                sh = shuffle(u)
                for i, e in enumerate(sh): put(p0 + i // 2 if p0 + i // 2 < p0 + 7 else p0 + 6, e)
        for fb in range(3):
            for i, e in enumerate(tr_reads(n, fb + 1)): put(fb*16 + i, e)
            if fb < 2: put(fb*16 + 15, "s_waitcnt lgkmcnt(0)")
        if n + 1 < NST:
            put(47, lambda Kk, n=n: Kk.wait_vm([f"W{n+1}"], lgkm=0))
            put(47, "s_barrier")
            for i, e in enumerate(tr_reads(n + 1, 0)): put(48 + i, e)
        else:
            put(47, "s_waitcnt lgkmcnt(0)")
        dm = []
        if n == 0: dm = issue_w(4, 56) + issue_w(5, 56)
        elif n == 1: dm = issue_w(6, 56) + issue_w(7, 56) + issue_w(8, 56)
        elif n + 7 < NST: dm = issue_w(n + 7, 56)
        pos = 8
        for e in dm:
            put(pos, e); pos += 1
            if pos % 16 == 0: pos += 8
        if q == 0 and G > 0: pending_epi = epilogue(G - 1)
        if pending_epi:
            take = pending_epi[:50]; pending_epi = pending_epi[50:]
            p0 = 10 if q == 0 else 0
            for i, e in enumerate(take): put(p0 + i, e)
        emit_slots(Kk, mf, slots)
        if n < 4: Kk.stamp(5 + n)
        elif q == 3: Kk.stamp(8 + G)
    assert not pending_epi
    o("s_nop 7")
    for e in epilogue(3):
        e(Kk) if callable(e) else o(e)
    Kk.stamp(12)
    if STAMPS: o("s_waitcnt vmcnt(0)")
    Kk.stamp(13)
    Kk.stamp_flush(0, 40, 36)
    Kk.label("k1_exit")
    o("s_endpgm")
    kernel_desc(Kk, Kk.name, vgpr=512, accum=256)
    return Kk
```

```python
class Item:
    def __init__(self, name, txt, lo, hi, after=(), cost=None, first=False):
        self.name = name; self.txt = txt; self.lo = lo; self.hi = hi; self.after = list(after)
        if cost is None:
            cost = 0 if callable(txt) else (8 if txt.startswith(("v_exp", "v_rcp", "v_sqrt", "v_log")) else 4)
        self.cost = cost; self.pos = None; self.first = first

def schedule(n, items, cap=8, verbose=False):
    byname = {it.name: it for it in items}
    changed = True
    while changed:
        changed = False
        for it in items:
            for nm, d in it.after:
                p = byname[nm]
                if p.hi > it.hi - d: p.hi = it.hi - d; changed = True
                if it.lo < p.lo + d: it.lo = p.lo + d; changed = True
    for it in items: assert it.lo <= it.hi, (it.name, it.lo, it.hi)
    slots = {g: [] for g in range(-1, n)}
    used = {g: 0 for g in range(-1, n)}
    left = list(items)
    over = 0
    for g in range(-1, n):
        while True:
            ready = [it for it in left if it.lo <= g and all(byname[nm].pos is not None and byname[nm].pos + d <= g for nm, d in it.after)]
            if not ready: break
            ready.sort(key=lambda it: (it.hi, -it.cost))
            pick = None
            for it in ready:
                if it.hi <= g or used[g] + it.cost <= cap:
                    pick = it; break
            if pick is None: break
            if used[g] == 0 and pick.cost < 8 and pick.hi > g:
                big = [it for it in ready if it.cost == 8]
                small = [it for it in ready if 0 < it.cost < 8]
                if big and (len(small) < 2 or big[0].hi <= pick.hi + 3): pick = big[0]
            pick.pos = g; used[g] += pick.cost; left.remove(pick)
            if pick.first: slots[g].insert(0, pick)
            else: slots[g].append(pick)
        if used[g] > cap: over += used[g] - cap
    assert not left, [it.name for it in left]
    if verbose: print("sched: overage", over, "free", sum(max(0, cap - used[g]) for g in range(0, n)))
    return slots
```

```python
from att import *
from gen_k1 import ln_rows
LOG2E = 1.4426950408889634
KSCALE = 0x3e0293ee
S_XN = 3; S_WQB = 4; S_W1B = 5; S_LDSW = 6
S_C = 28; S_WUK = 32; S_WUV = 36; S_DBG = 96
S_KST = 50; S_VST = 51; S_STT = 52; S_WKB = 53; S_AO = 56
VQ, VH, TR = 48, 52, 8
V_ACT = 3; V_SIG = 6; V_SHW = 56; V_SHR = 58; V_XNST = 60
WF = 16; BIAS = 176
SC1 = " sc1"
KVSC = os.environ.get("KVSC", " sc1")
if KVSC == "none": KVSC = ""

class Sched:
    def __init__(self, n): self.n = n; self.slots = {i: [] for i in range(-1, n)}; self.cost = {i: 0 for i in range(-1, n)}
    def c(self, e):
        if callable(e): return getattr(e, "cost", 4)
        return 8 if e.startswith(("v_exp", "v_rcp")) else 4
    def put(self, i, e): self.slots[i].append(e); self.cost[i] += self.c(e)

def poll_stub(Kk, reg, load_txt, cmp_ops):
    st = Kk.newlabel("mg_ps"); bk = Kk.newlabel("mg_pb")
    Kk.pstubs.append((st, bk, load_txt, cmp_ops))
    def f(Kk):
        Kk.op(f"s_cbranch_vccnz {st}"); Kk.label(bk)
    return f
def emit_pstubs(Kk):
    o = Kk.op
    for st, bk, ld, cmp_ops in Kk.pstubs:
        Kk.label(st)
        o("s_mov_b32 s49, 0x4000")
        Kk.label(st + "_l")
        o("s_sleep 12")
        o(ld)
        o("s_sub_u32 s49, s49, 1")
        o("s_waitcnt vmcnt(0)")
        o(f"s_cbranch_scc1 {bk}")
        for c in cmp_ops: o(c)
        o("s_nop 0")
        o(f"s_cbranch_vccnz {st}_l")
        o(f"s_branch {bk}")

def gen_mega(name):
    Kk = K(name)
    Kk.pstubs = []
    o = Kk.op
    kernel_header(Kk, Kk.name)
    o("s_cmp_ge_u32 s2, 256")
    o("s_cbranch_scc1 mg_exit")
    if STAMPS:
        for i in range(16): o(f"s_mov_b32 s{80+i}, 0")
    Kk.stamp(0)
    o("s_load_dwordx16 s[64:79], s[0:1], 0")
    o("s_load_dwordx2 s[54:55], s[0:1], 64")
    o("s_load_dwordx4 s[56:59], s[0:1], 88")
    o(f"v_and_b32 v{V_LANE}, 63, v0")
    o("v_lshrrev_b32 v62, 6, v0")
    o(f"v_lshlrev_b32 v{V_L16}, 4, v{V_LANE}")
    o(f"v_readfirstlane_b32 s{S_WAVE}, v62")
    o(f"s_and_b32 s{S_H}, s2, 7"); o(f"s_lshl_b32 s{S_H}, s{S_H}, 2")
    o(f"s_lshr_b32 s3, s2, 3"); o(f"s_and_b32 s3, s3, 3"); o(f"s_add_u32 s{S_H}, s{S_H}, s3")
    o(f"s_lshr_b32 s{S_P}, s2, 5")
    o(f"s_and_b32 s{S_G}, s{S_WAVE}, 1"); o(f"s_lshr_b32 s{S_ROLE}, s{S_WAVE}, 1")
    o(f"v_lshrrev_b32 v61, 3, v{V_LANE}"); o(f"v_and_b32 v62, 7, v{V_LANE}")
    o(f"s_lshl_b32 s3, s{S_WAVE}, 15"); o("s_mov_b32 s7, s3")
    o(f"v_lshrrev_b32 v63, 4, v{V_LANE}"); o("v_xor_b32 v16, v62, v63")
    o("v_lshlrev_b32 v17, 10, v61")
    o(f"v_lshl_add_u32 v{V_SHW}, v16, 4, v17"); o(f"v_xor_b32 v{V_SHW+1}, 64, v{V_SHW}")
    o(f"v_and_b32 v16, 15, v{V_LANE}"); o("v_lshrrev_b32 v17, 1, v16"); o("v_xor_b32 v17, v17, v63")
    o("v_lshlrev_b32 v16, 7, v16"); o("v_add_u32 v16, s3, v16")
    o(f"v_lshl_add_u32 v{V_SHR}, v17, 4, v16"); o(f"v_xor_b32 v{V_SHR+1}, 64, v{V_SHR}")
    o(f"v_lshrrev_b32 v16, 2, v{V_LANE}"); o(f"v_and_b32 v17, 3, v{V_LANE}")
    o("v_lshlrev_b32 v16, 10, v16"); o(f"v_lshl_add_u32 v{V_XNST}, v17, 8, v16")
    o(f"v_bfe_u32 v16, v{V_LANE}, 4, 1"); o("v_lshlrev_b32 v16, 1, v16"); o("v_xor_b32 v16, v62, v16"); o("v_xor_b32 v17, 4, v16")
    for base, stride in ((VQ, 8192), (VH, 2752)):
        o(f"v_mul_u32_u24 v18, {stride}, v61")
        for i in range(4):
            o(f"v_lshl_add_u32 v{base+i}, v{16 if i % 2 == 0 else 17}, 4, v18")
            if i: o(f"v_add_u32 v{base+i}, {8*i*stride}, v{base+i}")
    o(f"v_bfe_u32 v16, v{V_LANE}, 2, 2"); o("v_lshl_add_u32 v17, v63, 3, v16"); o("v_lshlrev_b32 v17, 7, v17")
    o(f"v_and_b32 v18, 3, v{V_LANE}"); o("v_lshl_add_u32 v17, v18, 3, v17"); o("v_add_u32 v17, 0x2000, v17")
    o(f"v_bfe_u32 v18, v{V_LANE}, 3, 1"); o(f"v_bfe_u32 v19, v{V_LANE}, 4, 1"); o("v_lshl_or_b32 v18, v19, 1, v18")
    for fb in range(4):
        o(f"v_xor_b32 v19, {fb}, v18"); o(f"v_lshl_add_u32 v{TR+fb}, v19, 5, v17")
    for tb in range(4):
        if tb: o(f"v_add_u32 v{12+tb}, {tb*NKS*1024}, v{V_L16}")
        else: o(f"v_mov_b32 v12, v{V_L16}")
    o(f"s_lshl_b32 s3, s{S_G}, 12"); o(f"v_add_u32 v{V_FET}, s3, v{V_L16}"); o(f"v_add_u32 v{V_FET2}, 0x2000, v{V_FET}")
    o(f"s_lshl_b32 s48, s{S_WAVE}, 12")
    o(f"v_lshlrev_b32 v2, 3, v63")
    o(f"v_lshlrev_b32 v16, 2, v{V_LANE}"); o(f"v_add_u32 v16, {CNTOFF}, v16"); o("v_mov_b32 v17, 0"); o("ds_write_b32 v16, v17")
    o("v_cmp_eq_u32 vcc, 0, v0"); o("v_mov_b32 v16, 0x7f000000"); o("s_nop 0"); o(f"v_cndmask_b32 v{V_SIG}, v16, v17, vcc")
    o("s_waitcnt lgkmcnt(0)")
    if os.environ.get('STG') == '99': Kk.stamp(1, force=True)
    Kk.srd(S_WS, 58, SZ['ws']); Kk.srd(S_C, 66, SZ['c']); Kk.srd(S_WUK, 70, SZ['wuk']); Kk.srd(S_WUV, 72, SZ['wuv'])
    Kk.srd(S_FS, 64, SZ['x'])
    Kk.srd(S_WQ, 68, SZ['wq']); Kk.srd(S_W1, 78, SZ['w1']); Kk.srd(S_B1, 54, SZ['b1']); Kk.srd(S_DBG, 56, 256)
    LNB = 192
    o(f"s_lshl_b32 s{S_T}, s2, 3"); o(f"s_lshl_b32 s{S_T+1}, s{S_WAVE}, 1"); o(f"s_add_u32 s{S_T}, s{S_T}, s{S_T+1}"); o(f"s_lshl_b32 s{S_T}, s{S_T}, 10")
    Kk.vmem(f"buffer_load_dwordx4 {v(LNB,4)}, v{V_L16}, s[{S_FS}:{S_FS+3}], s{S_T} offen", "x")
    Kk.vmem(f"buffer_load_dwordx4 {v(LNB+4,4)}, v{V_L16}, s[{S_FS}:{S_FS+3}], s{S_T} offen offset:1024", "x")
    if os.environ.get('STG') == '99': Kk.stamp(2, force=True)
    o(f"s_lshr_b32 s70, s{S_T}, 14"); o("s_lshl_b32 s70, s70, 14"); o(f"s_lshr_b32 s{S_T}, s{S_T}, 6"); o(f"s_and_b32 s{S_T}, s{S_T}, 0xf0"); o(f"s_add_u32 s70, s70, s{S_T}")
    o(f"s_lshl_b32 s{S_T}, s{S_P}, 8"); o(f"s_lshl_b32 s{S_T+1}, s{S_WAVE}, 6"); o(f"s_add_u32 s{S_T}, s{S_T}, s{S_T+1}")
    for i in range(8):
        o(f"s_add_u32 s{S_AO+i}, s{S_T}, {8*i}"); o(f"s_lshl_b32 s{S_AO+i}, s{S_AO+i}, 10")
    o(f"s_lshl_b32 s{S_KST}, s{S_H}, 19"); o(f"s_lshl_b32 s{S_T}, s{S_T}, 8"); o(f"s_add_u32 s{S_KST}, s{S_KST}, s{S_T}")
    o(f"s_add_u32 s{S_VST}, s{S_KST}, {VF_OFF}"); o(f"s_add_u32 s{S_KST}, s{S_KST}, {KF_OFF}")
    o(f"s_lshl_b32 s{S_WQB}, s{S_WAVE}, 18"); o(f"s_lshl_b32 s{S_T}, s{S_H}, 8"); o(f"s_add_u32 s{S_WQB}, s{S_WQB}, s{S_T}")
    o(f"s_mul_i32 s{S_W1B}, s{S_WAVE}, {32*2752}"); o(f"s_mul_i32 s{S_T}, s{S_H}, 96"); o(f"s_add_u32 s{S_W1B}, s{S_W1B}, s{S_T}")
    o(f"s_lshl_b32 s{S_LDSW}, s{S_ROLE}, 14"); o(f"s_lshl_b32 s{S_T}, s{S_G}, 12"); o(f"s_add_u32 s{S_LDSW}, s{S_LDSW}, s{S_T}"); o(f"s_add_u32 s{S_LDSW}, s{S_LDSW}, 0x2000")

    NS = 28
    GR = [('K', 64, 4), ('K', 128, 4), ('V', 192, 4), ('V', 64, 4), ('H', 128, 3), ('Q', 192, 4), ('Q', 64, 4)]
    ST = [(0,0),(1,0),(0,1),(1,1),(0,2),(1,2),(0,3),(1,3), (2,0),(2,1),(2,2),(3,0),(2,3),(3,1),(3,2),(3,3)] + [(G, q) for G in (4, 5, 6) for q in range(4)]
    def issue_w(n):
        G, q = ST[n]
        if G == 4: srd, sb, off, vd = S_W1, S_W1B, q * 128 * 2752, VH
        else:
            srd = [S_WUK, S_WUK, S_WUV, S_WUV, None, S_WQ, S_WQ][G]
            sb, off, vd = S_WQB, q * 128 * 8192 + ((G % 2) if G < 4 else (G - 5)) * 128, VQ
        out = [f"s_add_u32 s{S_T+4}, s{sb}, {off}"]
        for i in range(4):
            out.append(f"s_add_u32 m0, s{S_LDSW}, {((n + 1) % 4) * 32768 + i * 1024}")
            out.append(lambda Kk, i=i: Kk.vmem(f"buffer_load_dwordx4 v{vd+i}, s[{srd}:{srd+3}], s{S_T+4} offen lds", f"W{n}"))
        return out
    def areg(u, i): return a(((i // 2) * 16 + 2 * u + (i % 2)) * 4, 4)
    def c_loads(u):
        out = []
        for i in range(8):
            out.append(f"s_add_u32 m0, s7, {(u % 2) * 16384 + i * 1024}")
            out.append(lambda Kk, i=i: Kk.vmem(f"buffer_load_dwordx4 v{V_SHW + i % 2}, s[{S_C}:{S_C+3}], s{S_AO+i} offen lds", f"A{u}"))
        out += [f"v_add_u32 v{V_SHW}, 0x80, v{V_SHW}", f"v_add_u32 v{V_SHW+1}, 0x80, v{V_SHW+1}"]
        if u >= 2: out = [lambda Kk: Kk.wait_lg([f"S{u-2}"])] + out
        return out
    def shuffle(u):
        out = [lambda Kk: Kk.wait_vm([f"A{u}"])]
        out += [lambda Kk, i=i: Kk.lds(f"ds_read_b128 {areg(u, i)}, v{V_SHR + i % 2} offset:{(u % 2) * 16384 + (i//2)*2048}", f"S{u}") for i in range(8)]
        return out
    def xn_loads(q, tbs):
        out = []
        for tb in tbs:
            out.append(f"s_add_u32 s{S_T+5}, s{S_XN}, {tb*16384 + q*4096}")
            for k in range(4):
                out.append(lambda Kk, tb=tb, k=k: Kk.vmem(f"buffer_load_dwordx4 {a((tb*16+4*q+k)*4,4)}, v{V_L16}, s[{S_WS}:{S_WS+3}], s{S_T+5} offen offset:{k*1024}{SC1}", f"X{q}"))
        return out
    def fill(slot, kind):
        lab = Kk.newlabel("mg_fs")
        def f(Kk):
            o(f"s_cmp_lg_u32 s{S_ROLE}, {kind}"); o(f"s_cbranch_scc1 {lab}")
            o(f"s_add_u32 m0, s48, {slot*16384}"); o(f"s_mov_b32 s{S_T+6}, {slot*8192}")
            for i in range(4): o(f"buffer_load_dwordx4 v{V_FET}, s[{S_FS}:{S_FS+3}], s{S_T+6} offen offset:{i*1024}{SC1} lds")
            Kk.label(lab)
        f.cost = 8
        return [f]
    def ems(lst):
        prev = False
        for e in lst:
            if callable(e):
                if prev: o("s_nop 0")
                e(Kk); prev = False
            else:
                o(e); prev = "m0," in e
    half = [0, 0, 0, 0]
    def trr(n, fb, buf):
        hi = 1 if (n + 1) % 4 >= 2 else 0
        out = []
        if half[fb] != hi:
            out.append(f"v_xor_b32 v{TR+fb}, 0x10000, v{TR+fb}"); half[fb] = hi
        return out + [lambda Kk, ksl=ksl, rd=rd: Kk.lds(f"ds_read_b64_tr_b16 {v(WF + buf*16 + ksl*4 + rd*2, 2)}, v{TR+fb} offset:{((n+1) % 2)*32768 + (ksl//2)*16384 + (ksl%2)*4096 + rd*512}", f"T{n}_{fb}")
                for ksl in range(4) for rd in range(2)]
    def signal(dw, val_reg):
        return lambda Kk: Kk.vmem(f"buffer_atomic_add v{val_reg}, v{V_SIG}, s[{S_DBG}:{S_DBG+3}], s{dw} offen", "sig")

    TD = 236
    o(f"v_lshlrev_b32 v232, 10, v{V_LANE}")
    o(f"v_lshlrev_b32 v233, 13, v{V_LANE}")
    o(f"v_mul_u32_u24 v234, 2752, v{V_LANE}")
    o("s_lshr_b32 s66, s2, 3"); o("s_lshl_b32 s66, s66, 16"); o(f"s_lshl_b32 s67, s{S_WAVE}, 7"); o("s_add_u32 s66, s66, s67")
    Kk.vmem(f"buffer_load_dword v{TD}, v232, s[{S_C}:{S_C+3}], s66 offen", "pf")
    o(f"s_lshl_b32 s67, s{S_P}, 19"); o(f"s_lshl_b32 s68, s{S_H}, 8"); o("s_add_u32 s67, s67, s68"); o(f"s_lshl_b32 s68, s{S_G}, 7"); o("s_add_u32 s67, s67, s68")
    o(f"s_cmp_lg_u32 s{S_ROLE}, 0"); o("s_cbranch_scc1 mg_t1")
    o(f"buffer_load_dword v{TD}, v233, s[{S_WUK}:{S_WUK+3}], s67 offen")
    o("s_branch mg_t2")
    Kk.label("mg_t1")
    o("s_getpc_b64 s[68:69]")
    Kk.label("mg_pc")
    o("s_lshr_b32 s71, s2, 3"); o("s_lshl_b32 s71, s71, 1"); o(f"s_add_u32 s71, s71, s{S_G}"); o("s_lshl_b32 s71, s71, 10")
    o(f"v_and_b32 v235, 7, v{V_LANE}"); o("v_lshlrev_b32 v235, 7, v235"); o("v_add_u32 v235, s71, v235")
    o("v_min_u32 v235, mg_exit-mg_pc, v235")
    o(f"global_load_dword v{TD}, v235, s[68:69]")
    Kk.label("mg_t2")
    Kk.vm.append("pf")
    if os.environ.get('STG') == '99': Kk.stamp(3, force=True)
    ems(issue_w(0)); ems(c_loads(0))
    if os.environ.get('STG') == '99': Kk.stamp(4, force=True)
    ems(c_loads(1)); ems(issue_w(1))
    if os.environ.get('STG') == '99': Kk.stamp(5, force=True)
    o("s_mov_b32 s72, s66"); o("s_mov_b32 s49, s67")
    Kk.wait_vm(["x"])
    Kk.stamp(11)
    if os.environ.get('STG') == '99': Kk.stamp(6, force=True)
    ln_rows(Kk, LNB)
    if os.environ.get('STG') == '99': Kk.stamp(7, force=True)
    ems(shuffle(0)); ems(shuffle(1))
    if os.environ.get('STG') == '99': Kk.stamp(8, force=True)
    Kk.vmem(f"buffer_load_dword v{TD}, v232, s[{S_C}:{S_C+3}], s72 offen offset:512", "pf")
    for i in range(4, 8):
        o(f"s_add_u32 s{S_AO+i}, s{S_AO}, {8192*i}")
    ems(c_loads(2))
    if os.environ.get('STG') == '99': Kk.stamp(9, force=True)
    Kk.vmem(f"buffer_store_dwordx4 {v(LNB,4)}, v{V_XNST}, s[{S_WS}:{S_WS+3}], s70 offen{SC1}", "xs")
    Kk.vmem(f"buffer_store_dwordx4 {v(LNB+4,4)}, v{V_XNST}, s[{S_WS}:{S_WS+3}], s70 offen offset:16{SC1}", "xs")
    if os.environ.get('STG') == '99': Kk.stamp(10, force=True)
    o(f"s_sub_u32 s{S_T}, 15, s{S_P}"); o(f"s_cmp_eq_u32 s{S_ROLE}, 0"); o(f"s_cselect_b32 s{S_T+1}, s{S_T}, s{S_P}")
    o(f"s_lshl_b32 s{S_T+1}, s{S_T+1}, 3"); o(f"s_lshl_b32 s{S_T+2}, s{S_G}, 2"); o(f"s_add_u32 s{S_T+1}, s{S_T+1}, s{S_T+2}")
    o(f"s_lshl_b32 s{S_T}, s{S_T}, 3"); o(f"s_add_u32 s{S_T}, s{S_T}, s{S_T+2}")
    o(f"s_lshl_b32 s{S_T+2}, s{S_H}, 12"); o(f"s_add_u32 s{S_T+2}, s{S_T+2}, {ACT_OFF}")
    o(f"s_mul_i32 s{S_CTX}, s{S_T+1}, {NKS*1024}"); o(f"s_add_u32 s{S_CTX}, s{S_CTX}, s{S_T+2}")
    o(f"s_mul_i32 s{S_CTXL}, s{S_T}, {NKS*1024}"); o(f"s_add_u32 s{S_CTXL}, s{S_CTXL}, s{S_T+2}")
    o(f"s_lshl_b32 s{S_XN}, s{S_T+1}, 14")
    for fb in range(3):
        o(f"s_mul_i32 s{S_T+3}, s{S_H}, 3"); o(f"s_add_u32 s{S_T+3}, s{S_T+3}, {fb}")
        o(f"s_lshr_b32 s{S_T+4}, s{S_T+3}, 1"); o(f"s_lshl_b32 s{S_T+4}, s{S_T+4}, 10")
        o(f"s_and_b32 s{S_T+5}, s{S_T+3}, 1"); o(f"s_lshl_b32 s{S_T+5}, s{S_T+5}, 3"); o(f"s_add_u32 s{S_T+4}, s{S_T+4}, s{S_T+5}")
        o(f"s_mul_i32 s{S_T+5}, s{S_T+1}, {NKS*1024}"); o(f"s_add_u32 s{S_T+4}, s{S_T+4}, s{S_T+5}")
        o(f"s_add_u32 s{S_T+4}, s{S_T+4}, {ACT_OFF + 128*1024}")
        o(f"s_cmp_lt_u32 s{S_T+3}, 86"); o(f"s_cselect_b32 s{76+fb}, s{S_T+4}, 0x7f000000")
    o(f"s_lshl_b32 s{S_T+3}, s{S_P}, 2"); o(f"s_sub_u32 s79, 64, s{S_T+3}"); o(f"s_lshl_b32 s{S_D4}, s{S_P}, 4"); o(f"s_add_u32 s{S_D4}, s{S_D4}, 32")
    o(f"s_lshl_b32 s{S_T+3}, s{S_H}, 19")
    o(f"s_cmp_eq_u32 s{S_ROLE}, 0"); o(f"s_mov_b32 s{S_T+5}, {VF_OFF - 16384}"); o(f"s_cselect_b32 s{S_T+4}, {KF_OFF}, s{S_T+5}"); o(f"s_cselect_b32 s{S_T+5}, 0, 16384")
    o(f"s_add_u32 s{S_T+4}, s{S_T+4}, s{S_T+3}"); o(f"s_add_u32 s{S_FS}, s{S_WS}, s{S_T+4}"); o(f"s_addc_u32 s{S_FS+1}, s{S_WS+1}, 0")
    o(f"s_lshl_b32 s{S_FS+2}, s79, 13"); o(f"s_add_u32 s{S_FS+2}, s{S_FS+2}, s{S_T+5}")
    o("s_mov_b32 s72, 0")
    o(f"s_lshl_b32 s47, s{S_H}, 7"); o(f"s_add_u32 s47, s47, {KVF_OFF}"); o(f"s_lshl_b32 s73, s{S_P}, 2"); o("s_add_u32 s74, s47, s73")
    o(f"s_lshl_b32 s45, s{S_P}, 7"); o(f"s_lshl_b32 s73, s{S_H}, 2"); o("s_add_u32 s45, s45, s73"); o(f"s_add_u32 s45, s45, {HF_OFF}")
    o(f"s_lshr_b32 s{S_T+1}, s{S_T+1}, 3"); o(f"s_lshl_b32 s{S_T+1}, s{S_T+1}, 8"); o(f"s_lshl_b32 s{S_T+2}, s{S_H}, 3"); o(f"s_add_u32 s{S_T+1}, s{S_T+1}, s{S_T+2}")
    o(f"s_lshl_b32 s{S_T+2}, s{S_G}, 2"); o(f"s_add_u32 s{S_T+1}, s{S_T+1}, s{S_T+2}"); o(f"s_add_u32 s{S_WKB}, s{S_T+1}, {FLG_OFF}")
    o(f"v_cmp_eq_u32 vcc, 0, v{V_LANE}"); o("v_mov_b32 v62, 0x7f000000"); o("v_mov_b32 v63, 0"); o(f"v_cndmask_b32 v{V_XNST}, v62, v63, vcc")
    o("v_mov_b32 v61, 1")
    o(f"v_and_b32 v62, 7, v{V_LANE}"); o("v_lshlrev_b32 v62, 2, v62")
    Kk.stamp(12)
    if os.environ.get('STG') == '99': Kk.stamp(11, force=True)
    flagz = [lambda Kk: Kk.vmem(f"buffer_store_dword v63, v{V_XNST}, s[{S_WS}:{S_WS+3}], s{S_WKB} offen{SC1}", "xs"),
             lambda Kk: Kk.vmem(f"buffer_store_dword v63, v{V_SIG}, s[{S_WS}:{S_WS+3}], s74 offen{SC1}", "xs"),
             lambda Kk: Kk.vmem(f"buffer_store_dword v63, v{V_SIG}, s[{S_WS}:{S_WS+3}], s45 offen{SC1}", "xs")]
    def touch(role, srd, vreg, sreg):
        lab = Kk.newlabel("mg_tc")
        def f(Kk):
            o(f"s_cmp_lg_u32 s{S_ROLE}, {role}"); o(f"s_cbranch_scc1 {lab}")
            o(f"buffer_load_dword v63, v{vreg}, s[{srd}:{srd+3}], s{sreg} offen")
            Kk.label(lab)
        f.cost = 7
        return f
    Kk.wait_vm(["W0"])
    o("s_barrier")
    Kk.stamp(3)
    if os.environ.get('STG') == '99': Kk.stamp(12, force=True)
    ems(trr(0, 0, 0))

    def kv_epilogue(G):
        kind, acc, _ = GR[G]; gi = G % 2
        out = []
        if kind == 'K':
            for tb in range(4):
                out.append(f"s_add_u32 s{S_STT}, s{S_KST}, {tb*4096 + gi*2048}")
                for dsl in range(2):
                    q0 = acc + ((2*dsl)*4 + tb)*4; q1 = acc + ((2*dsl+1)*4 + tb)*4
                    out += [f"v_mul_f32 v{x+r}, {hex(KSCALE)}, v{x+r}" for x in (q0, q1) for r in range(4)]
                    out += [f"v_cvt_pk_bf16_f32 v{q0}, v{q0}, v{q0+1}", f"v_cvt_pk_bf16_f32 v{q0+1}, v{q0+2}, v{q0+3}",
                            f"v_cvt_pk_bf16_f32 v{q0+2}, v{q1}, v{q1+1}", f"v_cvt_pk_bf16_f32 v{q0+3}, v{q1+2}, v{q1+3}"]
                    out.append(lambda Kk, q0=q0, dsl=dsl: Kk.vmem(f"buffer_store_dwordx4 {v(q0,4)}, v{V_L16}, s[{S_WS}:{S_WS+3}], s{S_STT} offen offset:{dsl*1024}{KVSC}", f"st{G}"))
        else:
            for tp in range(2):
                out.append(f"s_add_u32 s{S_STT}, s{S_VST}, {tp*8192 + gi*4096}")
                for fb in range(4):
                    q0 = acc + (fb*4 + 2*tp)*4; q1 = q0 + 4
                    out += [f"v_cvt_pk_bf16_f32 v{q0}, v{q0}, v{q0+1}", f"v_cvt_pk_bf16_f32 v{q0+1}, v{q0+2}, v{q0+3}",
                            f"v_cvt_pk_bf16_f32 v{q0+2}, v{q1}, v{q1+1}", f"v_cvt_pk_bf16_f32 v{q0+3}, v{q1+2}, v{q1+3}"]
                    out.append(lambda Kk, q0=q0, fb=fb: Kk.vmem(f"buffer_store_dwordx4 {v(q0,4)}, v{V_L16}, s[{S_WS}:{S_WS+3}], s{S_STT} offen offset:{fb*1024}{KVSC}", f"st{G}"))
        for e in out:
            if callable(e): e.store = True
        return out
    def h_epilogue():
        out = []
        acc = 128; T0, T1 = 56, 176
        for fb in range(3):
            for tb in range(4):
                b = acc + (fb*4+tb)*4
                R4 = range(4)
                out += [f"v_mul_f32 v{T0+r}, {hex(fbits(LOG2E))}, v{b+r}" for r in R4]
                out += [f"v_min_f32 v{T0+r}, {hex(fbits(20*LOG2E))}, v{T0+r}" for r in R4]
                out += [f"v_exp_f32 v{T0+r}, v{T0+r}" for r in R4]
                out += [f"v_add_f32 v{T1+r}, 2.0, v{T0+r}" for r in R4]
                out += [f"v_mul_f32 v{b+r}, v{b+r}, v{T0+r}" for r in R4]
                out += [f"v_mul_f32 v{b+r}, v{b+r}, v{T1+r}" for r in R4]
                out += [f"v_fma_f32 v{T1+r}, v{T0+r}, v{T1+r}, 2.0" for r in R4]
                out += [f"v_rcp_f32 v{T1+r}, v{T1+r}" for r in R4]
                out += [f"v_mul_f32 v{b+r}, v{b+r}, v{T1+r}" for r in R4]
                out += [f"v_cvt_pk_bf16_f32 v{b}, v{b}, v{b+1}", f"v_cvt_pk_bf16_f32 v{b+1}, v{b+2}, v{b+3}"]
                out.append(lambda Kk, b=b, tb=tb, fb=fb: Kk.vmem(f"buffer_store_dwordx2 {v(b,2)}, v{12+tb}, s[{S_WS}:{S_WS+3}], s{76+fb} offen{'' if os.environ.get('HPLAIN') else SC1}", "hs"))
        return out
    def q_pack(acc):
        out = []
        for tb in range(4):
            for dsl in range(2):
                q0 = acc + ((2*dsl)*4 + tb)*4; q1 = acc + ((2*dsl+1)*4 + tb)*4
                out += [f"v_cvt_pk_bf16_f32 v{q0}, v{q0}, v{q0+1}", f"v_cvt_pk_bf16_f32 v{q0+1}, v{q0+2}, v{q0+3}",
                        f"v_cvt_pk_bf16_f32 v{q0+2}, v{q1}, v{q1+1}", f"v_cvt_pk_bf16_f32 v{q0+3}, v{q1+2}, v{q1+3}"]
        return out
    def q_move(acc, half):
        return [f"v_accvgpr_write_b32 a{AQ(tb, 2*half+dsl)+r}, v{acc + ((2*dsl)*4 + tb)*4 + r}" for tb in range(4) for dsl in range(2) for r in range(4)]
    def poll(ld, cmp_ops, tag):
        def issue(Kk):
            l = Kk.newlabel("mg_pw")
            o(f"s_cmp_lg_u32 s{S_WAVE}, 0"); o(f"s_cbranch_scc1 {l}")
            o(ld); Kk.label(l)
            Kk.vm.append(None); Kk.vm.pop(); Kk.pollmark = len(Kk.vm)
        def chk(Kk):
            l = Kk.newlabel("mg_pw")
            o(f"s_cmp_lg_u32 s{S_WAVE}, 0"); o(f"s_cbranch_scc1 {l}")
            o(f"s_waitcnt vmcnt({min(63, len(Kk.vm) - Kk.pollmark)})")
            for c in cmp_ops: o(c)
            o("s_nop 0")
            poll_stub(Kk, V_ACT, ld, cmp_ops)(Kk)
            Kk.label(l)
        issue.cost = 8; chk.cost = 8
        return issue, [chk]

    queue = []
    bufc = 0
    B1R = [56, 58, 2]
    gpos = 0; last_st = -100; PACE = int(os.environ.get('PACE', 17))
    for n in range(NS):
        G, q = ST[n]
        kind, acc, nfb = GR[G]
        mf = []; bufs = []
        for fb in range(nfb):
            buf = (bufc + fb) % 2; bufs.append(buf)
            for tb in range(4):
                for ksl in range(4):
                    D = v(acc + (fb*4+tb)*4, 4)
                    C = D if (q or ksl) else (v(BIAS + 4*fb, 4) if kind == 'H' else "0")
                    Wr = v(WF + buf*16 + ksl*4, 4); Xr = a((tb*16 + 4*q + ksl)*4, 4)
                    mf.append(mfma(D, Xr, Wr, C) if kind == 'V' else mfma(D, Wr, Xr, C))
        bufc = (bufc + nfb) % 2
        sc = Sched(len(mf))
        if n in (11, 20): assert not queue, (n, len(queue))
        w0 = [f"T{n}_0"] + ([f"S{2*q}", f"S{2*q+1}"] if G == 0 else [])
        if G == 4: sc.put(-1, lambda Kk, q=q: Kk.wait_vm([f"X{q}"]))
        sc.put(-1, lambda Kk, w0=w0: Kk.wait_lg(w0))
        for fb in range(nfb - 1):
            for i, e in enumerate(trr(n, fb + 1, bufs[fb + 1])): sc.put(fb*16 + i, e)
            if fb < nfb - 2: sc.put(fb*16 + 15, lambda Kk, n=n, fb=fb: Kk.wait_lg([f"T{n}_{fb+1}"]))
        lb = (nfb - 1) * 16
        need = [f"W{n+1}"] if n + 1 < NS else []
        if n == 1: need.append("xs")
        if n == 20: need += ["st2", "st3"]
        def barw(Kk, need=need, n=n, nfb=nfb):
            nv = min([Kk.vm_after(t) for t in need] + [63 if n + 1 < NS else 24])
            Kk.op(f"s_waitcnt vmcnt({nv}) lgkmcnt({Kk.lg_n([f'T{n}_{nfb-1}'])})")
        sc.put(lb - 1, barw); sc.put(lb - 1, "s_barrier")
        if n + 1 < NS:
            for i, e in enumerate(trr(n + 1, 0, bufc)): sc.put(lb + i, e)
        else:
            sc.put(lb - 2, f"v_mov_b32 v{V_KA}, v{V_L16}")
            for i in range(8): sc.put(lb + i, kread(i))
        dm = []
        if 1 <= n and n + 3 < NS: dm += issue_w(n + 3)
        if n == 0: dm += issue_w(2) + c_loads(3) + issue_w(3) + flagz
        if 1 <= n <= 4: dm += c_loads(n + 3)
        if n == 2: dm.append(touch(1, S_WUV, 233, 49))
        if n == 4: dm.append(touch(0, S_WQ, 233, 49))
        if n == 6:
            dm += [f"s_mul_i32 s49, s{S_P}, {64*2752}", f"s_mul_i32 s{S_T+6}, s{S_H}, 96", f"s_add_u32 s49, s49, s{S_T+6}", f"s_lshl_b32 s{S_T+6}, s{S_G}, 6", f"s_add_u32 s49, s49, s{S_T+6}", touch(1, S_W1, 234, 49)]
        if n == 2: dm.append(signal(72, 61))
        if n == 21: dm.append(lambda Kk: Kk.vmem(f"buffer_store_dword v61, v{V_SIG}, s[{S_WS}:{S_WS+3}], s74 offen{SC1}", "sig"))
        if n == 5:
            pl, pc = poll(f"buffer_load_dword v{V_ACT}, off, s[{S_DBG}:{S_DBG+3}], 0{SC1}", [f"v_cmp_gt_u32 vcc, 0x100, v{V_ACT}"], "px"); dm.append(pl)
        if n == 7: dm += pc
        if n in (8, 9):
            dm.append(f"s_and_b32 s{S_T+6}, s{S_H}, 3"); dm.append(f"s_lshl_b32 s{S_T+6}, s{S_T+6}, 14"); dm.append(f"s_add_u32 s{S_T+6}, s{S_T+6}, s{S_XN}")
            if n == 9: dm.append(f"s_add_u32 s{S_T+6}, s{S_T+6}, 8192")
            dm.append(f"v_lshlrev_b32 v{V_ACT}, 7, v{V_LANE}")
            dm.append(lambda Kk: Kk.vmem(f"buffer_load_dword v63, v{V_ACT}, s[{S_WS}:{S_WS+3}], s{S_T+6} offen{SC1}", "pf"))
        XL = {12: [(0, (0, 1))], 13: [(0, (2, 3))], 14: [(1, (0, 1, 2))], 15: [(1, (3,)), (2, (0, 1))], 16: [(2, (2, 3)), (3, (0,))], 17: [(3, (1, 2, 3))]}
        for x_ in XL.get(n, []): dm += xn_loads(*x_)
        if n == 13:
            dm.append(f"s_mul_i32 s{S_T+6}, s{S_H}, 96")
            dm += [lambda Kk, fb=fb: Kk.vmem(f"buffer_load_dwordx2 {v(B1R[fb],2)}, v2, s[{S_B1}:{S_B1+3}], s{S_T+6} offen offset:{fb*32}", "b1") for fb in range(3)]
        if n == 22:
            pl2, pc2 = poll(f"buffer_load_dword v{V_ACT}, v62, s[{S_WS}:{S_WS+3}], s47 offen{SC1}", [f"v_cmp_eq_u32 vcc, 0, v{V_ACT}"], "pk"); dm.append(pl2)
        if n == 24: dm += pc2
        if 25 <= n <= 27: dm += sum((fill(x_, 0) for x_ in [(0, 1), (2, 3, 4), (5, 6, 7)][n - 25]), [])
        if n >= NS - 3: dm += fill(2*(n - (NS - 3)) + 2, 1) + fill(2*(n - (NS - 3)) + 3, 1)
        pos = 1
        for e in dm:
            while sc.cost[pos] + sc.c(e) > 8 and pos < len(mf) - 1: pos += 1
            sc.put(pos, e)
            if getattr(e, "cost", 4) == 8: assert pos < lb - 1, (n, pos)
            if isinstance(e, str) and "m0," in e: pos += 1
        if n < 6:
            pos = max(pos, 44)
            for e in shuffle(n + 2):
                while sc.cost[pos] + 4 > 8 and pos < len(mf) - 1: pos += 1
                sc.put(pos, e)
        if n == 6:
            queue += [f"v_and_b32 v192, 15, v{V_LANE}", f"v_lshrrev_b32 v193, 4, v{V_LANE}", "v_lshlrev_b32 v193, 2, v193"]
            for r in range(4): queue += [f"v_add_u32 v194, {r}, v193", f"v_cmp_gt_u32 s[{S_MSK+2*r}:{S_MSK+2*r+1}], v194, v192"]
        if n == 8: queue += kv_epilogue(0)
        if n == 11: queue += kv_epilogue(1)
        if n == 15: queue = [lambda Kk: Kk.wait_vm(["b1"])] + queue; queue[1:1] = [x for fb in range(3) for r in range(2) for x in
                   (f"v_lshlrev_b32 v{BIAS+4*fb+2*r}, 16, v{B1R[fb]+r}", f"v_and_b32 v{BIAS+4*fb+2*r+1}, 0xffff0000, v{B1R[fb]+r}")]
        if n == 13: queue += kv_epilogue(2)
        if n == 16: queue += kv_epilogue(3)
        if n == 20: queue += h_epilogue()
        if n == 24: queue = q_pack(192) + queue
        if n == 25: queue = q_move(192, 0) + [f"v_mov_b32 v{192+i}, 0" for i in range(64)] + queue
        if n == 27: queue += [f"v_mov_b32 v{128+i}, 0" for i in range(64)] + [f"v_accvgpr_write_b32 a{A_L+i}, 0" for i in range(16)]
        pos = 10 if n in (16, 20, 24) else 0
        while queue and pos < len(mf):
            e = queue[0]
            if getattr(e, "store", False):
                if gpos + pos < last_st + PACE: pos += 1; continue
            if sc.cost[pos] + sc.c(e) <= 8:
                sc.put(pos, e); queue.pop(0)
                if getattr(e, "store", False): last_st = gpos + pos
            else: pos += 1
        gpos += len(mf)
        emit_slots(Kk, mf, sc.slots)
        STG = os.environ.get('STG')
        if STG is not None:
            if 0 <= n - int(STG) < 15: Kk.stamp(1 + n - int(STG), force=True)
            if STG == '99' and n < 3: Kk.stamp(13 + n, force=True)
        elif n in (3, 7, 11, 15, 19, 23, 27): Kk.stamp({3: 4, 7: 7, 11: 8, 15: 13, 19: 1, 23: 2, 27: 14}[n])
    print("mega proj leftover filler:", len(queue))
    em(Kk, queue)
    o("s_nop 7")
    em(Kk, q_pack(64) + q_move(64, 1))
    o("v_mov_b32 v56, 0x3f803f80")
    for r in range(4): o(f"v_accvgpr_write_b32 a{A_ONE+r}, v56")
    o(f"v_mov_b32 v{V_NEG}, 0xff800000")
    o(f"v_mov_b32 v15, v{V_SIG}"); o(f"v_mov_b32 v0, v{V_XNST}")
    o(f"s_lshl_b32 s{S_T}, s{S_G}, 14"); o(f"s_add_u32 s{S_T}, s{S_T}, {XOFF}"); o(f"v_add_u32 v{V_T0}, s{S_T}, v{V_L16}")
    o(f"s_cmp_eq_u32 s{S_G}, 0"); o(f"s_mov_b32 s{S_T+1}, 0x6000"); o(f"s_cselect_b32 s{S_T}, {XOFF + 15*1024}, s{S_T+1}"); o(f"v_add_u32 v{V_T1}, s{S_T}, v{V_L16}")
    o(f"s_cmp_lg_u32 s{S_ROLE}, 0"); o("s_cbranch_scc1 k2_nopub")
    for j in range(4):
        for ds in range(4):
            if j*4+ds < 15: o(f"ds_write_b128 v{V_T0}, {a(AQ(j, ds), 4)} offset:{(j*4+ds)*1024}")
            else: o(f"ds_write_b128 v{V_T1}, {a(AQ(j, ds), 4)}")
    Kk.label("k2_nopub")
    o("s_mov_b32 s50, s45")
    o(f"s_mov_b32 s{S_TGT}, 4"); o(f"s_mov_b32 s{S_FT}, {8*8192}"); o(f"s_mov_b32 s{S_PH}, 0"); o("s_mov_b32 s7, 0x4000"); o(f"s_mov_b32 s{S_NF}, 0")
    o("s_mov_b32 m0, s48")
    o(f"s_mov_b32 s48, s{S_WKB}")
    o(f"v_add_u32 v{V_KA}, 0x4000, v{V_L16}"); o(f"v_add_u32 v{V_VA}, 0x8000, v{V_L16}")
    o(f"v_lshlrev_b32 v{V_CNT}, 2, v{V_LANE}"); o(f"v_add_u32 v{V_CNT}, {CNTOFF}, v{V_CNT}"); o(f"v_mov_b32 v{V_ONE}, 1")
    o(f"s_cmp_eq_u32 s{S_ROLE}, 0"); o(f"s_cselect_b32 s{S_DST}, s{S_D4}, 0x7fffff00")
    Kk.stamp(5)
    Kk.mega = True
    attention(Kk)
    Kk.stamp(10)
    from mega_p4 import p4
    p4(Kk, poll_stub)
    Kk.stamp(15)
    Kk.stamp_flush(0, S_WAVE, S_WS)
    o("s_endpgm")
    emit_stubs(Kk)
    emit_pstubs(Kk)
    rare(Kk, 0)
    rare(Kk, 1)
    Kk.label("mg_exit")
    o("s_endpgm")
    kernel_desc(Kk, Kk.name, vgpr=512, accum=256)
    return Kk
```

```python
from att import *
def p4(Kk, poll_stub):
    o = Kk.op
    o("s_load_dwordx2 s[28:29], s[0:1], 0")
    o("s_load_dwordx2 s[30:31], s[0:1], 40")
    o("s_load_dwordx4 s[32:35], s[0:1], 72")
    o("s_and_b32 s41, s2, 7"); o("s_lshl_b32 s41, s41, 8")
    o("s_lshr_b32 s42, s2, 3"); o("s_and_b32 s42, s42, 3"); o("s_lshl_b32 s42, s42, 6"); o("s_add_u32 s41, s41, s42")
    o("s_lshr_b32 s42, s2, 5"); o("s_lshl_b32 s42, s42, 6")
    o("s_lshr_b32 s65, s41, 7"); o("s_sub_u32 s66, 15, s65"); o("s_min_u32 s66, s66, s65"); o("s_lshl_b32 s66, s66, 7"); o(f"s_add_u32 s66, s66, {HF_OFF}")
    o("v_and_b32 v17, 31, v1"); o("v_lshlrev_b32 v17, 2, v17")
    hl = f"buffer_load_dword v16, v17, s[{S_WS}:{S_WS+3}], s66 offen sc1"
    o("s_cmp_lg_u32 s40, 0"); o("s_cbranch_scc1 p4_nh0")
    o(hl)
    Kk.label("p4_nh0")
    o("s_lshl_b32 s65, s65, 8"); o(f"s_add_u32 s65, s65, {FLG_OFF}")
    o("v_lshrrev_b32 v48, 3, v1"); o("v_and_b32 v49, 7, v1"); o("v_bfe_u32 v50, v1, 4, 2"); o("v_lshlrev_b32 v50, 1, v50")
    o("v_xor_b32 v49, v49, v50"); o("v_lshlrev_b32 v48, 10, v48"); o("v_lshl_add_u32 v3, v49, 4, v48")
    for i in range(1, 4): o(f"v_add_u32 v{3+i}, {8192*i}, v3")
    o("v_lshrrev_b32 v48, 4, v1"); o("v_bfe_u32 v49, v1, 2, 2"); o("v_lshl_add_u32 v50, v48, 2, v49")
    o("v_bfe_u32 v51, v50, 1, 2")
    o("v_lshlrev_b32 v50, 7, v50"); o("v_and_b32 v52, 3, v1"); o("v_lshl_add_u32 v50, v52, 3, v50")
    o("s_lshl_b32 s47, s40, 14")
    o("v_add_u32 v50, s47, v50")
    o("v_mov_b32 v60, v10")
    for fb in range(4):
        o(f"v_xor_b32 v52, {fb}, v51"); o(f"v_lshl_add_u32 v{8+fb}, v52, 5, v50")
    for tb in range(4):
        if tb == 0: o("v_mov_b32 v12, v7")
        else: o(f"v_add_u32 v{12+tb}, {tb*NKS*1024}, v7")
    o("v_lshlrev_b32 v61, 2, v1")
    hc = ["v_cmp_eq_u32 vcc, 0, v16"]
    o("s_waitcnt vmcnt(0) lgkmcnt(0)")
    o("s_cmp_lg_u32 s40, 0"); o("s_cbranch_scc1 p4_nh1")
    o(hc[0]); o("s_nop 0")
    poll_stub(Kk, 16, hl, hc)(Kk)
    Kk.label("p4_nh1")
    o("s_barrier")
    o(f"s_cmp_eq_u32 s{S_ROLE}, 0"); o("s_cselect_b32 s67, s48, 0x7f000000")
    o(f"buffer_store_dword v60, v0, s[{S_WS}:{S_WS+3}], s67 offen sc1")
    Kk.srd(12, 32, SZ['w2'])
    Kk.srd(16, 28, SZ['x'])
    Kk.srd(20, 34, SZ['out'])
    o("s_lshl_b32 s52, s42, 1")
    o("s_lshr_b32 s53, s41, 4"); o(f"s_mul_i32 s53, s53, {NKS*1024}"); o(f"s_add_u32 s53, s53, {ACT_OFF}")
    o("s_lshl_b32 s54, s40, 20"); o("s_add_u32 s54, s54, s52")
    o("s_lshl_b32 s55, s40, 15"); o("s_add_u32 s55, s55, s53")
    o(f"s_mul_i32 s50, s40, {11*32768}"); o("s_add_u32 s50, s50, s52")
    o(f"s_mul_i32 s51, s40, {11*1024}"); o("s_add_u32 s51, s51, s53"); o(f"s_add_u32 s51, s51, {128*1024}")
    o("s_cmp_eq_u32 s40, 3"); o("s_cselect_b32 s56, 10, 43")
    o("s_mov_b32 s57, 0")
    ACC = 64; ACTR = 128; WF = 16; U = 4
    cl = f"buffer_load_dword v62, v61, s[{S_WS}:{S_WS+3}], s65 offen sc1"
    cc = ["v_cmp_eq_u32 vcc, 0, v62"]
    def hook(Kk):
        l1 = Kk.newlabel("p4_h"); l2 = Kk.newlabel("p4_h")
        o("s_cmp_lg_u32 s57, 7"); o(f"s_cbranch_scc1 {l1}")
        o(cl)
        Kk.label(l1)
        o("s_cmp_lg_u32 s57, 11"); o(f"s_cbranch_scc1 {l2}")
        o(cc[0]); o("s_nop 0")
        poll_stub(Kk, 62, cl, cc)(Kk)
        Kk.label(l2)
    def load_step(slot, hk):
        out = []
        if hk: out.append(hook)
        out.append("s_cmp_eq_u32 s57, s56")
        out.append("s_cselect_b32 s59, 0x7f000000, s51")
        for tb in range(4):
            out.append(f"buffer_load_dwordx4 {v(ACTR+slot*16+tb*4,4)}, v{12+tb}, s[{S_WS}:{S_WS+3}], s59 offen sc1")
        for i in range(4):
            out.append(f"s_add_u32 m0, s47, {slot*4096 + i*1024}")
            out.append(f"buffer_load_dwordx4 v{3+i}, s[12:15], s50 offen lds")
        out += ["s_add_u32 s57, s57, 1", "s_add_u32 s50, s50, 32768", "s_add_u32 s51, s51, 1024",
                "s_cmp_eq_u32 s57, 11", "s_cselect_b32 s50, s54, s50", "s_cselect_b32 s51, s55, s51",
                "s_cselect_b32 s12, s30, s12", "s_cselect_b32 s13, s31, s13", f"s_cselect_b32 s14, {SZ['wo']}, s14",
                "s_cmp_ge_u32 s57, 43", "s_cselect_b32 s50, 0x7f000000, s50", "s_cselect_b32 s51, 0x7f000000, s51"]
        return out
    def ems(lst):
        prev = False
        for e in lst:
            if callable(e): e(Kk); continue
            if prev and e.startswith("buffer"): o("s_nop 0")
            o(e); prev = "m0," in e
    def trr(slot, buf):
        return [f"ds_read_b64_tr_b16 {v(WF+buf*16+fb*4+rd*2,2)}, v{8+fb} offset:{slot*4096+rd*2048}" for fb in range(4) for rd in range(2)]
    for st in range(3): ems(load_step(st, False))
    o("v_and_b32 v48, 15, v1"); o("v_lshrrev_b32 v49, 4, v1"); o("v_lshlrev_b32 v48, 10, v48"); o("v_lshl_add_u32 v2, v49, 3, v48")
    o("s_lshl_b32 s62, s40, 4"); o("s_add_u32 s62, s62, s41"); o("s_lshl_b32 s62, s62, 10"); o("s_add_u32 s62, s62, s52")
    for i in range(64): o(f"v_mov_b32 v{ACC+i}, 0")
    o("s_waitcnt vmcnt(16)")
    for e in trr(0, 0): o(e)
    o("s_mov_b32 s63, 0")
    Kk.label("p4_loop")
    for u in range(U):
        mf = []
        for fb in range(4):
            for tb in range(4):
                D = v(ACC + (fb*4+tb)*4, 4)
                mf.append(mfma(D, v(WF + (u % 2)*16 + fb*4, 4), v(ACTR + u*16 + tb*4, 4), D))
        slots = {}
        def put(i, e): slots.setdefault(i, []).append(e)
        put(-1, "s_waitcnt vmcnt(8) lgkmcnt(0)")
        for i, e in enumerate(trr((u + 1) % U, (u + 1) % 2)): put(i, e)
        ls = load_step((u + 3) % U, u == 0)
        k = 3 if u == 0 else 2
        for e in ls[:k]: put(0, e)
        for i, e in enumerate(ls[k:k+4]): put(1 + i, e)
        for k2 in range(4):
            put(5 + 2*k2, ls[k + 4 + 2*k2]); put(6 + 2*k2, ls[k + 5 + 2*k2])
        for e in ls[k+12:]: put(14, e)
        emit_slots(Kk, mf, slots)
    o("s_add_u32 s63, s63, 1")
    if STAMPS:
        o("s_cmp_lg_u32 s63, 3"); o("s_cbranch_scc1 p4_ns")
        Kk.stamp(6)
        Kk.label("p4_ns")
    o("s_cmp_lt_u32 s63, 11")
    o("s_cbranch_scc1 p4_loop")
    for fb in range(4):
        o(f"buffer_load_dwordx2 {v(48+2*fb,2)}, v2, s[16:19], s62 offen offset:{fb*32}")
    o("s_waitcnt vmcnt(4) lgkmcnt(0)")
    o("s_barrier")
    o("v_add_u32 v3, s47, v7")
    for blk in range(16):
        o(f"ds_write_b128 v3, {v(ACC+blk*4,4)} offset:{blk*1024}")
    o("s_waitcnt lgkmcnt(0)")
    o("s_barrier")
    o("s_lshl_b32 s64, s40, 10"); o("v_add_u32 v3, s64, v7")
    for src in range(4):
        for fb in range(4):
            o(f"ds_read_b128 {v(128+src*16+fb*4,4)}, v3 offset:{src*16384 + fb*4096}")
    o("s_waitcnt vmcnt(0)")
    for fb in range(4):
        for r in range(2):
            o(f"v_lshlrev_b32 v{64+fb*4+2*r}, 16, v{48+2*fb+r}")
            o(f"v_and_b32 v{64+fb*4+2*r+1}, 0xffff0000, v{48+2*fb+r}")
    for src in range(4):
        o(f"s_waitcnt lgkmcnt({12-4*src})")
        for i in range(16):
            o(f"v_add_f32 v{64+i}, v{64+i}, v{128+src*16+i}")
    for fb in range(4):
        o(f"v_cvt_pk_bf16_f32 v{48+2*fb}, v{64+fb*4}, v{64+fb*4+1}")
        o(f"v_cvt_pk_bf16_f32 v{49+2*fb}, v{64+fb*4+2}, v{64+fb*4+3}")
        o(f"buffer_store_dwordx2 {v(48+2*fb,2)}, v2, s[20:23], s62 offen offset:{fb*32}")
```

```python
import re
M32 = 0xffffffff
def s32(x): x &= M32; return x - (1 << 32) if x >> 31 else x
def simulate(lines, wg, wave, wave_sreg_hint=None, take_rare=False, maxn=400000):
    labels = {}
    for i, ln in enumerate(lines):
        t = ln.strip()
        if t.endswith(":") and not t.startswith(";"): labels[t[:-1]] = i
    S = {2: wg, 0: 0, 1: 0}
    scc = 0
    trace = []; events = []
    def val(x):
        x = x.strip()
        if x == "m0": return S.get(124, 0)
        m = re.fullmatch(r"s(\d+)", x)
        if m: return S.get(int(m.group(1)), 0xdead0000)
        try: return int(x, 0) & M32
        except: return 0
    def setr(x, vv):
        x = x.strip()
        if x == "m0": S[124] = vv & M32; return
        m = re.fullmatch(r"s(\d+)", x)
        if m: S[int(m.group(1))] = vv & M32
    pc = 0; n = 0; instub = False
    while True:
        n += 1
        if n > maxn: raise RuntimeError("runaway")
        ln = lines[pc]; t = ln.split(";")[0].strip(); pc += 1
        if not t or t.endswith(":") or t.startswith("."): continue
        trace.append(ln)
        op, _, rest = t.partition(" ")
        a = [x.strip() for x in rest.split(",")]
        if op == "s_endpgm": break
        elif op == "s_barrier": events.append(("bar",))
        elif op in ("s_mov_b32", "s_movk_i32"): setr(a[0], val(a[1]))
        elif op in ("s_add_u32", "s_add_i32"): r = val(a[1]) + val(a[2]); scc = r >> 32 & 1; setr(a[0], r)
        elif op == "s_addc_u32": setr(a[0], val(a[1]) + val(a[2]) + scc)
        elif op in ("s_sub_u32", "s_sub_i32"): scc = int(val(a[1]) < val(a[2])); setr(a[0], val(a[1]) - val(a[2]))
        elif op == "s_and_b32":
            r = val(a[1]) & val(a[2]); setr(a[0], r); scc = int(r != 0)
        elif op == "s_andn2_b32": setr(a[0], val(a[1]) & ~val(a[2]))
        elif op == "s_or_b32": setr(a[0], val(a[1]) | val(a[2]))
        elif op == "s_xor_b32": setr(a[0], val(a[1]) ^ val(a[2]))
        elif op == "s_lshl_b32": setr(a[0], val(a[1]) << (val(a[2]) & 31))
        elif op == "s_lshr_b32": setr(a[0], val(a[1]) >> (val(a[2]) & 31))
        elif op == "s_mul_i32": setr(a[0], val(a[1]) * val(a[2]))
        elif op == "s_min_i32": setr(a[0], min(s32(val(a[1])), s32(val(a[2]))))
        elif op == "s_max_i32": setr(a[0], max(s32(val(a[1])), s32(val(a[2]))))
        elif op == "s_min_u32": setr(a[0], min(val(a[1]), val(a[2])))
        elif op.startswith("s_cmp_"):
            k, ty = op.split("_")[2:4]
            x, y = val(a[0]), val(a[1])
            if ty == "i32": x, y = s32(x), s32(y)
            scc = int({"eq": x == y, "lg": x != y, "lt": x < y, "le": x <= y, "gt": x > y, "ge": x >= y}[k])
        elif op == "s_bitcmp1_b32": scc = (val(a[0]) >> val(a[1])) & 1
        elif op == "s_cselect_b32": setr(a[0], val(a[1]) if scc else val(a[2]))
        elif op == "s_cbranch_scc1":
            if scc: pc = labels[a[0]]
        elif op == "s_cbranch_scc0":
            if not scc: pc = labels[a[0]]
        elif op == "s_branch": pc = labels[a[0]]; instub = False
        elif op == "s_cbranch_vccz":
            pc = labels[a[0]]
        elif op == "s_cbranch_vccnz":
            if take_rare and not a[0].endswith("_l"): pc = labels[a[0]]; instub = True
        elif op == "s_call_b64": S[1000] = pc; pc = labels[a[1]]
        elif op == "s_setpc_b64": pc = S[1000]
        elif op == "v_readfirstlane_b32": setr(a[0], wave)
        elif op.startswith("s_load"):
            m = re.search(r"s\[(\d+):(\d+)\]", a[0])
            for r in range(int(m.group(1)), int(m.group(2)) + 1): S[r] = 0
        elif op.startswith("buffer_load") and t.endswith("lds"):
            m = re.search(r"s\[(\d+):\d+\], (s\d+|0)", t); off = re.search(r"offset:(\d+)", t); off = int(off.group(1)) if off else 0
            srd = int(m.group(1))
            events.append(("dma", srd, S.get(srd, 0) + val(m.group(2)) + off, S.get(124, 0) + off, val(m.group(2)) + off >= S.get(srd + 2, 0)))
        elif op.startswith("ds_read_b128"): events.append(("dsr", a[0], a[1]))
        elif op.startswith("ds_add_u32"): events.append(("arr",))
        elif op.startswith("v_cmp_gt_u32") and a[0] == "vcc":
            if not instub: events.append(("chk", val(a[1])))
        elif op in ("v_add_u32", "v_and_b32", "v_mov_b32"): events.append(("valu", op, a[0], a[1], a[2] if len(a) > 2 else None, val(a[1])))
        elif op.startswith("s_waitcnt"): events.append(("wait", t))
        elif op.startswith("buffer_store"): events.append(("st",))
        elif op.startswith("buffer_load") or op.startswith("global_load"): events.append(("ld",))
    return trace, events
```

```python
import sys
from gen_common import *
from mega import gen_mega
from check import check
from sim import simulate
NAME = "parallel_sum__compressed_kv_cla__dense_activation_mish__prompt"
def main():
    out = sys.argv[1]
    if os.path.exists(out): os.remove(out)
    k = gen_mega(NAME + "_kernel")
    ref = open("cdna_kernels/" + NAME + ".s.ref").read().split("\n")
    hdr = [l for l in ref if l.startswith(";") and "@launch" not in l and "Override" not in l and "grid=ceil" not in l][:15]
    if len(sys.argv) > 2 and sys.argv[2] == "list":
        hdr.append(f"; @launch kernel={k.name} grid=(256,1,1) block=(256,1,1) lds=163840")
    else:
        hdr.append("; @launch grid=(256,1,1) block=(256,1,1) lds=163840")
    hdr.append('.amdgcn_target "amdgcn-amd-amdhsa--gfx950"')
    open(out, "w").write("\n".join(hdr) + "\n" + k.text())
    n = 0; info = set(); seen = set()
    for wg in (5, 45, 100, 229):
        for w in range(4):
            for tr_ in (False, True):
                tr, ev = simulate(k.lines, wg, w, take_rare=tr_)
                errs = check(tr, f"wg{wg}w{w}")
                for e in errs[:3]:
                    if e.split(':',1)[1] not in seen: seen.add(e.split(':',1)[1]); print(e)
                n += len(errs)
                info.add((sum(1 for x in ev if x[0] == "bar"), sum(1 for x in ev if x[0] == "arr")))
    print("hazard errors:", n, "lines", len(k.lines), "bar/arr", info)
    if (n and not os.environ.get("FORCE")) or len(info) != 1:
        os.remove(out); sys.exit(1)
main()
```

```python
from att import *
from gen_k1 import ln_rows
LOG2E = 1.4426950408889634
KSCALE = 0x3e0293ee
S_XN = 3; S_WQB = 4; S_W1B = 5; S_LDSW = 6
S_C = 28; S_WUK = 32; S_WUV = 36; S_DBG = 96
S_KST = 50; S_VST = 51; S_STT = 52; S_WKB = 53; S_AO = 56
VQ, VH, TR = 48, 52, 8
V_ACT = 3; V_SIG = 6; V_SHW = 56; V_SHR = 58; V_XNST = 60
WF = 16; BIAS = 176
SC1 = " sc1"
KVSC = os.environ.get("KVSC", " sc1")
if KVSC == "none": KVSC = ""

class Sched:
    def __init__(self, n): self.n = n; self.slots = {i: [] for i in range(-1, n)}; self.cost = {i: 0 for i in range(-1, n)}
    def c(self, e):
        if callable(e): return getattr(e, "cost", 4)
        return 8 if e.startswith(("v_exp", "v_rcp")) else 4
    def put(self, i, e): self.slots[i].append(e); self.cost[i] += self.c(e)

def poll_stub(Kk, reg, load_txt, cmp_ops):
    st = Kk.newlabel("mg_ps"); bk = Kk.newlabel("mg_pb")
    Kk.pstubs.append((st, bk, load_txt, cmp_ops))
    def f(Kk):
        Kk.op(f"s_cbranch_vccnz {st}"); Kk.label(bk)
    return f
def emit_pstubs(Kk):
    o = Kk.op
    for st, bk, ld, cmp_ops in Kk.pstubs:
        Kk.label(st)
        o("s_mov_b32 s49, 0x4000")
        Kk.label(st + "_l")
        o("s_sleep 12")
        o(ld)
        o("s_sub_u32 s49, s49, 1")
        o("s_waitcnt vmcnt(0)")
        o(f"s_cbranch_scc1 {bk}")
        for c in cmp_ops: o(c)
        o("s_nop 0")
        o(f"s_cbranch_vccnz {st}_l")
        o(f"s_branch {bk}")

def gen_mega(name):
    Kk = K(name)
    Kk.pstubs = []
    o = Kk.op
    kernel_header(Kk, Kk.name)
    o("s_cmp_ge_u32 s2, 256")
    o("s_cbranch_scc1 mg_exit")
    if STAMPS:
        for i in range(16): o(f"s_mov_b32 s{80+i}, 0")
    Kk.stamp(0)
    o("s_load_dwordx16 s[64:79], s[0:1], 0")
    o("s_load_dwordx2 s[54:55], s[0:1], 64")
    o("s_load_dwordx4 s[56:59], s[0:1], 88")
    o(f"v_and_b32 v{V_LANE}, 63, v0")
    o("v_lshrrev_b32 v62, 6, v0")
    o(f"v_lshlrev_b32 v{V_L16}, 4, v{V_LANE}")
    o(f"v_readfirstlane_b32 s{S_WAVE}, v62")
    o(f"s_and_b32 s{S_H}, s2, 7"); o(f"s_lshl_b32 s{S_H}, s{S_H}, 2")
    o(f"s_lshr_b32 s3, s2, 3"); o(f"s_and_b32 s3, s3, 3"); o(f"s_add_u32 s{S_H}, s{S_H}, s3")
    o(f"s_lshr_b32 s{S_P}, s2, 5")
    o(f"s_and_b32 s{S_G}, s{S_WAVE}, 1"); o(f"s_lshr_b32 s{S_ROLE}, s{S_WAVE}, 1")
    o(f"v_lshrrev_b32 v61, 3, v{V_LANE}"); o(f"v_and_b32 v62, 7, v{V_LANE}")
    o(f"s_lshl_b32 s3, s{S_WAVE}, 15"); o("s_mov_b32 s7, s3")
    o(f"v_lshrrev_b32 v63, 4, v{V_LANE}"); o("v_xor_b32 v16, v62, v63")
    o("v_lshlrev_b32 v17, 10, v61")
    o(f"v_lshl_add_u32 v{V_SHW}, v16, 4, v17"); o(f"v_xor_b32 v{V_SHW+1}, 64, v{V_SHW}")
    o(f"v_and_b32 v16, 15, v{V_LANE}"); o("v_lshrrev_b32 v17, 1, v16"); o("v_xor_b32 v17, v17, v63")
    o("v_lshlrev_b32 v16, 7, v16"); o("v_add_u32 v16, s3, v16")
    o(f"v_lshl_add_u32 v{V_SHR}, v17, 4, v16"); o(f"v_xor_b32 v{V_SHR+1}, 64, v{V_SHR}")
    o(f"v_lshrrev_b32 v16, 2, v{V_LANE}"); o(f"v_and_b32 v17, 3, v{V_LANE}")
    o("v_lshlrev_b32 v16, 10, v16"); o(f"v_lshl_add_u32 v{V_XNST}, v17, 8, v16")
    o(f"v_bfe_u32 v16, v{V_LANE}, 4, 1"); o("v_lshlrev_b32 v16, 1, v16"); o("v_xor_b32 v16, v62, v16"); o("v_xor_b32 v17, 4, v16")
    for base, stride in ((VQ, 8192), (VH, 2752)):
        o(f"v_mul_u32_u24 v18, {stride}, v61")
        for i in range(4):
            o(f"v_lshl_add_u32 v{base+i}, v{16 if i % 2 == 0 else 17}, 4, v18")
            if i: o(f"v_add_u32 v{base+i}, {8*i*stride}, v{base+i}")
    o(f"v_bfe_u32 v16, v{V_LANE}, 2, 2"); o("v_lshl_add_u32 v17, v63, 3, v16"); o("v_lshlrev_b32 v17, 7, v17")
    o(f"v_and_b32 v18, 3, v{V_LANE}"); o("v_lshl_add_u32 v17, v18, 3, v17"); o("v_add_u32 v17, 0x2000, v17")
    o(f"v_bfe_u32 v18, v{V_LANE}, 3, 1"); o(f"v_bfe_u32 v19, v{V_LANE}, 4, 1"); o("v_lshl_or_b32 v18, v19, 1, v18")
    for fb in range(4):
        o(f"v_xor_b32 v19, {fb}, v18"); o(f"v_lshl_add_u32 v{TR+fb}, v19, 5, v17")
    for tb in range(4):
        if tb: o(f"v_add_u32 v{12+tb}, {tb*NKS*1024}, v{V_L16}")
        else: o(f"v_mov_b32 v12, v{V_L16}")
    o(f"s_lshl_b32 s3, s{S_G}, 12"); o(f"v_add_u32 v{V_FET}, s3, v{V_L16}"); o(f"v_add_u32 v{V_FET2}, 0x2000, v{V_FET}")
    o(f"s_lshl_b32 s48, s{S_WAVE}, 12")
    o(f"v_lshlrev_b32 v2, 3, v63")
    o(f"v_lshlrev_b32 v16, 2, v{V_LANE}"); o(f"v_add_u32 v16, {CNTOFF}, v16"); o("v_mov_b32 v17, 0"); o("ds_write_b32 v16, v17")
    o("v_cmp_eq_u32 vcc, 0, v0"); o("v_mov_b32 v16, 0x7f000000"); o("s_nop 0"); o(f"v_cndmask_b32 v{V_SIG}, v16, v17, vcc")
    o("s_waitcnt lgkmcnt(0)")
    if os.environ.get('STG') == '99': Kk.stamp(1, force=True)
    Kk.srd(S_WS, 58, SZ['ws']); Kk.srd(S_C, 66, SZ['c']); Kk.srd(S_WUK, 70, SZ['wuk']); Kk.srd(S_WUV, 72, SZ['wuv'])
    Kk.srd(S_FS, 64, SZ['x'])
    Kk.srd(S_WQ, 68, SZ['wq']); Kk.srd(S_W1, 78, SZ['w1']); Kk.srd(S_B1, 54, SZ['b1']); Kk.srd(S_DBG, 56, 256)
    LNB = 192
    o(f"s_lshl_b32 s{S_T}, s2, 3"); o(f"s_lshl_b32 s{S_T+1}, s{S_WAVE}, 1"); o(f"s_add_u32 s{S_T}, s{S_T}, s{S_T+1}"); o(f"s_lshl_b32 s{S_T}, s{S_T}, 10")
    Kk.vmem(f"buffer_load_dwordx4 {v(LNB,4)}, v{V_L16}, s[{S_FS}:{S_FS+3}], s{S_T} offen", "x")
    Kk.vmem(f"buffer_load_dwordx4 {v(LNB+4,4)}, v{V_L16}, s[{S_FS}:{S_FS+3}], s{S_T} offen offset:1024", "x")
    if os.environ.get('STG') == '99': Kk.stamp(2, force=True)
    o(f"s_lshr_b32 s70, s{S_T}, 14"); o("s_lshl_b32 s70, s70, 14"); o(f"s_lshr_b32 s{S_T}, s{S_T}, 6"); o(f"s_and_b32 s{S_T}, s{S_T}, 0xf0"); o(f"s_add_u32 s70, s70, s{S_T}")
    o(f"s_lshl_b32 s{S_T}, s{S_P}, 8"); o(f"s_lshl_b32 s{S_T+1}, s{S_WAVE}, 6"); o(f"s_add_u32 s{S_T}, s{S_T}, s{S_T+1}")
    for i in range(8):
        o(f"s_add_u32 s{S_AO+i}, s{S_T}, {8*i}"); o(f"s_lshl_b32 s{S_AO+i}, s{S_AO+i}, 10")
    o(f"s_lshl_b32 s{S_KST}, s{S_H}, 19"); o(f"s_lshl_b32 s{S_T}, s{S_T}, 8"); o(f"s_add_u32 s{S_KST}, s{S_KST}, s{S_T}")
    o(f"s_add_u32 s{S_VST}, s{S_KST}, {VF_OFF}"); o(f"s_add_u32 s{S_KST}, s{S_KST}, {KF_OFF}")
    o(f"s_lshl_b32 s{S_WQB}, s{S_WAVE}, 18"); o(f"s_lshl_b32 s{S_T}, s{S_H}, 8"); o(f"s_add_u32 s{S_WQB}, s{S_WQB}, s{S_T}")
    o(f"s_mul_i32 s{S_W1B}, s{S_WAVE}, {32*2752}"); o(f"s_mul_i32 s{S_T}, s{S_H}, 96"); o(f"s_add_u32 s{S_W1B}, s{S_W1B}, s{S_T}")
    o(f"s_lshl_b32 s{S_LDSW}, s{S_ROLE}, 14"); o(f"s_lshl_b32 s{S_T}, s{S_G}, 12"); o(f"s_add_u32 s{S_LDSW}, s{S_LDSW}, s{S_T}"); o(f"s_add_u32 s{S_LDSW}, s{S_LDSW}, 0x2000")

    NS = 28
    GR = [('K', 64, 4), ('K', 128, 4), ('V', 192, 4), ('V', 64, 4), ('H', 128, 3), ('Q', 192, 4), ('Q', 64, 4)]
    ST = [(0,0),(1,0),(0,1),(1,1),(0,2),(1,2),(0,3),(1,3), (2,0),(2,1),(2,2),(3,0),(2,3),(3,1),(3,2),(3,3)] + [(G, q) for G in (4, 5, 6) for q in range(4)]
    def issue_w(n):
        G, q = ST[n]
        if G == 4: srd, sb, off, vd = S_W1, S_W1B, q * 128 * 2752, VH
        else:
            srd = [S_WUK, S_WUK, S_WUV, S_WUV, None, S_WQ, S_WQ][G]
            sb, off, vd = S_WQB, q * 128 * 8192 + ((G % 2) if G < 4 else (G - 5)) * 128, VQ
        out = [f"s_add_u32 s{S_T+4}, s{sb}, {off}"]
        for i in range(4):
            out.append(f"s_add_u32 m0, s{S_LDSW}, {((n + 1) % 4) * 32768 + i * 1024}")
            out.append(lambda Kk, i=i: Kk.vmem(f"buffer_load_dwordx4 v{vd+i}, s[{srd}:{srd+3}], s{S_T+4} offen lds", f"W{n}"))
        return out
    def areg(u, i): return a(((i // 2) * 16 + 2 * u + (i % 2)) * 4, 4)
    def c_loads(u):
        out = []
        for i in range(8):
            out.append(f"s_add_u32 m0, s7, {(u % 2) * 16384 + i * 1024}")
            out.append(lambda Kk, i=i: Kk.vmem(f"buffer_load_dwordx4 v{V_SHW + i % 2}, s[{S_C}:{S_C+3}], s{S_AO+i} offen lds", f"A{u}"))
        out += [f"v_add_u32 v{V_SHW}, 0x80, v{V_SHW}", f"v_add_u32 v{V_SHW+1}, 0x80, v{V_SHW+1}"]
        if u >= 2: out = [lambda Kk: Kk.wait_lg([f"S{u-2}"])] + out
        return out
    def shuffle(u):
        out = [lambda Kk: Kk.wait_vm([f"A{u}"])]
        out += [lambda Kk, i=i: Kk.lds(f"ds_read_b128 {areg(u, i)}, v{V_SHR + i % 2} offset:{(u % 2) * 16384 + (i//2)*2048}", f"S{u}") for i in range(8)]
        return out
    def xn_loads(q, tbs):
        out = []
        for tb in tbs:
            out.append(f"s_add_u32 s{S_T+5}, s{S_XN}, {tb*16384 + q*4096}")
            for k in range(4):
                out.append(lambda Kk, tb=tb, k=k: Kk.vmem(f"buffer_load_dwordx4 {a((tb*16+4*q+k)*4,4)}, v{V_L16}, s[{S_WS}:{S_WS+3}], s{S_T+5} offen offset:{k*1024}{SC1}", f"X{q}"))
        return out
    def fill(slot, kind):
        lab = Kk.newlabel("mg_fs")
        def f(Kk):
            o(f"s_cmp_lg_u32 s{S_ROLE}, {kind}"); o(f"s_cbranch_scc1 {lab}")
            o(f"s_add_u32 m0, s48, {slot*16384}"); o(f"s_mov_b32 s{S_T+6}, {slot*8192}")
            for i in range(4): o(f"buffer_load_dwordx4 v{V_FET}, s[{S_FS}:{S_FS+3}], s{S_T+6} offen offset:{i*1024}{SC1} lds")
            Kk.label(lab)
        f.cost = 8
        return [f]
    def ems(lst):
        prev = False
        for e in lst:
            if callable(e):
                if prev: o("s_nop 0")
                e(Kk); prev = False
            else:
                o(e); prev = "m0," in e
    half = [0, 0, 0, 0]
    def trr(n, fb, buf):
        hi = 1 if (n + 1) % 4 >= 2 else 0
        out = []
        if half[fb] != hi:
            out.append(f"v_xor_b32 v{TR+fb}, 0x10000, v{TR+fb}"); half[fb] = hi
        return out + [lambda Kk, ksl=ksl, rd=rd: Kk.lds(f"ds_read_b64_tr_b16 {v(WF + buf*16 + ksl*4 + rd*2, 2)}, v{TR+fb} offset:{((n+1) % 2)*32768 + (ksl//2)*16384 + (ksl%2)*4096 + rd*512}", f"T{n}_{fb}")
                for ksl in range(4) for rd in range(2)]
    def signal(dw, val_reg):
        return lambda Kk: Kk.vmem(f"buffer_atomic_add v{val_reg}, v{V_SIG}, s[{S_DBG}:{S_DBG+3}], s{dw} offen", "sig")

    TD = 236
    o(f"v_lshlrev_b32 v232, 10, v{V_LANE}")
    o(f"v_lshlrev_b32 v233, 13, v{V_LANE}")
    o(f"v_mul_u32_u24 v234, 2752, v{V_LANE}")
    o("s_lshr_b32 s66, s2, 3"); o("s_lshl_b32 s66, s66, 16"); o(f"s_lshl_b32 s67, s{S_WAVE}, 7"); o("s_add_u32 s66, s66, s67")
    Kk.vmem(f"buffer_load_dword v{TD}, v232, s[{S_C}:{S_C+3}], s66 offen", "pf")
    o(f"s_lshl_b32 s67, s{S_P}, 19"); o(f"s_lshl_b32 s68, s{S_H}, 8"); o("s_add_u32 s67, s67, s68"); o(f"s_lshl_b32 s68, s{S_G}, 7"); o("s_add_u32 s67, s67, s68")
    o(f"s_cmp_lg_u32 s{S_ROLE}, 0"); o("s_cbranch_scc1 mg_t1")
    o(f"buffer_load_dword v{TD}, v233, s[{S_WUK}:{S_WUK+3}], s67 offen")
    o("s_branch mg_t2")
    Kk.label("mg_t1")
    o("s_getpc_b64 s[68:69]")
    Kk.label("mg_pc")
    o("s_lshr_b32 s71, s2, 3"); o("s_lshl_b32 s71, s71, 1"); o(f"s_add_u32 s71, s71, s{S_G}"); o("s_lshl_b32 s71, s71, 10")
    o(f"v_and_b32 v235, 7, v{V_LANE}"); o("v_lshlrev_b32 v235, 7, v235"); o("v_add_u32 v235, s71, v235")
    o("v_min_u32 v235, mg_exit-mg_pc, v235")
    o(f"global_load_dword v{TD}, v235, s[68:69]")
    Kk.label("mg_t2")
    Kk.vm.append("pf")
    if os.environ.get('STG') == '99': Kk.stamp(3, force=True)
    ems(issue_w(0)); ems(c_loads(0))
    if os.environ.get('STG') == '99': Kk.stamp(4, force=True)
    ems(c_loads(1)); ems(issue_w(1))
    if os.environ.get('STG') == '99': Kk.stamp(5, force=True)
    o("s_mov_b32 s72, s66"); o("s_mov_b32 s49, s67")
    Kk.wait_vm(["x"])
    Kk.stamp(11)
    if os.environ.get('STG') == '99': Kk.stamp(6, force=True)
    ln_rows(Kk, LNB)
    if os.environ.get('STG') == '99': Kk.stamp(7, force=True)
    ems(shuffle(0)); ems(shuffle(1))
    if os.environ.get('STG') == '99': Kk.stamp(8, force=True)
    Kk.vmem(f"buffer_load_dword v{TD}, v232, s[{S_C}:{S_C+3}], s72 offen offset:512", "pf")
    for i in range(4, 8):
        o(f"s_add_u32 s{S_AO+i}, s{S_AO}, {8192*i}")
    ems(c_loads(2))
    if os.environ.get('STG') == '99': Kk.stamp(9, force=True)
    Kk.vmem(f"buffer_store_dwordx4 {v(LNB,4)}, v{V_XNST}, s[{S_WS}:{S_WS+3}], s70 offen{SC1}", "xs")
    Kk.vmem(f"buffer_store_dwordx4 {v(LNB+4,4)}, v{V_XNST}, s[{S_WS}:{S_WS+3}], s70 offen offset:16{SC1}", "xs")
    if os.environ.get('STG') == '99': Kk.stamp(10, force=True)
    o(f"s_sub_u32 s{S_T}, 15, s{S_P}"); o(f"s_cmp_eq_u32 s{S_ROLE}, 0"); o(f"s_cselect_b32 s{S_T+1}, s{S_T}, s{S_P}")
    o(f"s_lshl_b32 s{S_T+1}, s{S_T+1}, 3"); o(f"s_lshl_b32 s{S_T+2}, s{S_G}, 2"); o(f"s_add_u32 s{S_T+1}, s{S_T+1}, s{S_T+2}")
    o(f"s_lshl_b32 s{S_T}, s{S_T}, 3"); o(f"s_add_u32 s{S_T}, s{S_T}, s{S_T+2}")
    o(f"s_lshl_b32 s{S_T+2}, s{S_H}, 12"); o(f"s_add_u32 s{S_T+2}, s{S_T+2}, {ACT_OFF}")
    o(f"s_mul_i32 s{S_CTX}, s{S_T+1}, {NKS*1024}"); o(f"s_add_u32 s{S_CTX}, s{S_CTX}, s{S_T+2}")
    o(f"s_mul_i32 s{S_CTXL}, s{S_T}, {NKS*1024}"); o(f"s_add_u32 s{S_CTXL}, s{S_CTXL}, s{S_T+2}")
    o(f"s_lshl_b32 s{S_XN}, s{S_T+1}, 14")
    for fb in range(3):
        o(f"s_mul_i32 s{S_T+3}, s{S_H}, 3"); o(f"s_add_u32 s{S_T+3}, s{S_T+3}, {fb}")
        o(f"s_lshr_b32 s{S_T+4}, s{S_T+3}, 1"); o(f"s_lshl_b32 s{S_T+4}, s{S_T+4}, 10")
        o(f"s_and_b32 s{S_T+5}, s{S_T+3}, 1"); o(f"s_lshl_b32 s{S_T+5}, s{S_T+5}, 3"); o(f"s_add_u32 s{S_T+4}, s{S_T+4}, s{S_T+5}")
        o(f"s_mul_i32 s{S_T+5}, s{S_T+1}, {NKS*1024}"); o(f"s_add_u32 s{S_T+4}, s{S_T+4}, s{S_T+5}")
        o(f"s_add_u32 s{S_T+4}, s{S_T+4}, {ACT_OFF + 128*1024}")
        o(f"s_cmp_lt_u32 s{S_T+3}, 86"); o(f"s_cselect_b32 s{76+fb}, s{S_T+4}, 0x7f000000")
    o(f"s_lshl_b32 s{S_T+3}, s{S_P}, 2"); o(f"s_sub_u32 s79, 64, s{S_T+3}"); o(f"s_lshl_b32 s{S_D4}, s{S_P}, 4"); o(f"s_add_u32 s{S_D4}, s{S_D4}, 32")
    o(f"s_lshl_b32 s{S_T+3}, s{S_H}, 19")
    o(f"s_cmp_eq_u32 s{S_ROLE}, 0"); o(f"s_mov_b32 s{S_T+5}, {VF_OFF - 16384}"); o(f"s_cselect_b32 s{S_T+4}, {KF_OFF}, s{S_T+5}"); o(f"s_cselect_b32 s{S_T+5}, 0, 16384")
    o(f"s_add_u32 s{S_T+4}, s{S_T+4}, s{S_T+3}"); o(f"s_add_u32 s{S_FS}, s{S_WS}, s{S_T+4}"); o(f"s_addc_u32 s{S_FS+1}, s{S_WS+1}, 0")
    o(f"s_lshl_b32 s{S_FS+2}, s79, 13"); o(f"s_add_u32 s{S_FS+2}, s{S_FS+2}, s{S_T+5}")
    o("s_mov_b32 s72, 0")
    o(f"s_lshl_b32 s47, s{S_H}, 7"); o(f"s_add_u32 s47, s47, {KVF_OFF}"); o(f"s_lshl_b32 s73, s{S_P}, 2"); o("s_add_u32 s74, s47, s73")
    o(f"s_lshl_b32 s45, s{S_P}, 7"); o(f"s_lshl_b32 s73, s{S_H}, 2"); o("s_add_u32 s45, s45, s73"); o(f"s_add_u32 s45, s45, {HF_OFF}")
    o(f"s_lshr_b32 s{S_T+1}, s{S_T+1}, 3"); o(f"s_lshl_b32 s{S_T+1}, s{S_T+1}, 8"); o(f"s_lshl_b32 s{S_T+2}, s{S_H}, 3"); o(f"s_add_u32 s{S_T+1}, s{S_T+1}, s{S_T+2}")
    o(f"s_lshl_b32 s{S_T+2}, s{S_G}, 2"); o(f"s_add_u32 s{S_T+1}, s{S_T+1}, s{S_T+2}"); o(f"s_add_u32 s{S_WKB}, s{S_T+1}, {FLG_OFF}")
    o(f"v_cmp_eq_u32 vcc, 0, v{V_LANE}"); o("v_mov_b32 v62, 0x7f000000"); o("v_mov_b32 v63, 0"); o(f"v_cndmask_b32 v{V_XNST}, v62, v63, vcc")
    o("v_mov_b32 v61, 1")
    o(f"v_and_b32 v62, 7, v{V_LANE}"); o("v_lshlrev_b32 v62, 2, v62")
    Kk.stamp(12)
    if os.environ.get('STG') == '99': Kk.stamp(11, force=True)
    flagz = [lambda Kk: Kk.vmem(f"buffer_store_dword v63, v{V_XNST}, s[{S_WS}:{S_WS+3}], s{S_WKB} offen{SC1}", "xs"),
             lambda Kk: Kk.vmem(f"buffer_store_dword v63, v{V_SIG}, s[{S_WS}:{S_WS+3}], s74 offen{SC1}", "xs"),
             lambda Kk: Kk.vmem(f"buffer_store_dword v63, v{V_SIG}, s[{S_WS}:{S_WS+3}], s45 offen{SC1}", "xs")]
    def touch(role, srd, vreg, sreg):
        lab = Kk.newlabel("mg_tc")
        def f(Kk):
            o(f"s_cmp_lg_u32 s{S_ROLE}, {role}"); o(f"s_cbranch_scc1 {lab}")
            o(f"buffer_load_dword v63, v{vreg}, s[{srd}:{srd+3}], s{sreg} offen")
            Kk.label(lab)
        f.cost = 7
        return f
    Kk.wait_vm(["W0"])
    o("s_barrier")
    Kk.stamp(3)
    if os.environ.get('STG') == '99': Kk.stamp(12, force=True)
    ems(trr(0, 0, 0))

    def kv_epilogue(G):
        kind, acc, _ = GR[G]; gi = G % 2
        out = []
        if kind == 'K':
            for tb in range(4):
                out.append(f"s_add_u32 s{S_STT}, s{S_KST}, {tb*4096 + gi*2048}")
                for dsl in range(2):
                    q0 = acc + ((2*dsl)*4 + tb)*4; q1 = acc + ((2*dsl+1)*4 + tb)*4
                    out += [f"v_mul_f32 v{x+r}, {hex(KSCALE)}, v{x+r}" for x in (q0, q1) for r in range(4)]
                    out += [f"v_cvt_pk_bf16_f32 v{q0}, v{q0}, v{q0+1}", f"v_cvt_pk_bf16_f32 v{q0+1}, v{q0+2}, v{q0+3}",
                            f"v_cvt_pk_bf16_f32 v{q0+2}, v{q1}, v{q1+1}", f"v_cvt_pk_bf16_f32 v{q0+3}, v{q1+2}, v{q1+3}"]
                    out.append(lambda Kk, q0=q0, dsl=dsl: Kk.vmem(f"buffer_store_dwordx4 {v(q0,4)}, v{V_L16}, s[{S_WS}:{S_WS+3}], s{S_STT} offen offset:{dsl*1024}{KVSC}", f"st{G}"))
        else:
            for tp in range(2):
                out.append(f"s_add_u32 s{S_STT}, s{S_VST}, {tp*8192 + gi*4096}")
                for fb in range(4):
                    q0 = acc + (fb*4 + 2*tp)*4; q1 = q0 + 4
                    out += [f"v_cvt_pk_bf16_f32 v{q0}, v{q0}, v{q0+1}", f"v_cvt_pk_bf16_f32 v{q0+1}, v{q0+2}, v{q0+3}",
                            f"v_cvt_pk_bf16_f32 v{q0+2}, v{q1}, v{q1+1}", f"v_cvt_pk_bf16_f32 v{q0+3}, v{q1+2}, v{q1+3}"]
                    out.append(lambda Kk, q0=q0, fb=fb: Kk.vmem(f"buffer_store_dwordx4 {v(q0,4)}, v{V_L16}, s[{S_WS}:{S_WS+3}], s{S_STT} offen offset:{fb*1024}{KVSC}", f"st{G}"))
        for e in out:
            if callable(e): e.store = True
        return out
    def h_epilogue():
        out = []
        acc = 128; T0, T1 = 56, 176
        for fb in range(3):
            for tb in range(4):
                b = acc + (fb*4+tb)*4
                R4 = range(4)
                out += [f"v_mul_f32 v{T0+r}, {hex(fbits(LOG2E))}, v{b+r}" for r in R4]
                out += [f"v_min_f32 v{T0+r}, {hex(fbits(20*LOG2E))}, v{T0+r}" for r in R4]
                out += [f"v_exp_f32 v{T0+r}, v{T0+r}" for r in R4]
                out += [f"v_add_f32 v{T1+r}, 2.0, v{T0+r}" for r in R4]
                out += [f"v_mul_f32 v{b+r}, v{b+r}, v{T0+r}" for r in R4]
                out += [f"v_mul_f32 v{b+r}, v{b+r}, v{T1+r}" for r in R4]
                out += [f"v_fma_f32 v{T1+r}, v{T0+r}, v{T1+r}, 2.0" for r in R4]
                out += [f"v_rcp_f32 v{T1+r}, v{T1+r}" for r in R4]
                out += [f"v_mul_f32 v{b+r}, v{b+r}, v{T1+r}" for r in R4]
                out += [f"v_cvt_pk_bf16_f32 v{b}, v{b}, v{b+1}", f"v_cvt_pk_bf16_f32 v{b+1}, v{b+2}, v{b+3}"]
                out.append(lambda Kk, b=b, tb=tb, fb=fb: Kk.vmem(f"buffer_store_dwordx2 {v(b,2)}, v{12+tb}, s[{S_WS}:{S_WS+3}], s{76+fb} offen{'' if os.environ.get('HPLAIN') else SC1}", "hs"))
        return out
    def q_pack(acc):
        out = []
        for tb in range(4):
            for dsl in range(2):
                q0 = acc + ((2*dsl)*4 + tb)*4; q1 = acc + ((2*dsl+1)*4 + tb)*4
                out += [f"v_cvt_pk_bf16_f32 v{q0}, v{q0}, v{q0+1}", f"v_cvt_pk_bf16_f32 v{q0+1}, v{q0+2}, v{q0+3}",
                        f"v_cvt_pk_bf16_f32 v{q0+2}, v{q1}, v{q1+1}", f"v_cvt_pk_bf16_f32 v{q0+3}, v{q1+2}, v{q1+3}"]
        return out
    def q_move(acc, half):
        return [f"v_accvgpr_write_b32 a{AQ(tb, 2*half+dsl)+r}, v{acc + ((2*dsl)*4 + tb)*4 + r}" for tb in range(4) for dsl in range(2) for r in range(4)]
    def poll(ld, cmp_ops, tag):
        def issue(Kk):
            l = Kk.newlabel("mg_pw")
            o(f"s_cmp_lg_u32 s{S_WAVE}, 0"); o(f"s_cbranch_scc1 {l}")
            o(ld); Kk.label(l)
            Kk.vm.append(None); Kk.vm.pop(); Kk.pollmark = len(Kk.vm)
        def chk(Kk):
            l = Kk.newlabel("mg_pw")
            o(f"s_cmp_lg_u32 s{S_WAVE}, 0"); o(f"s_cbranch_scc1 {l}")
            o(f"s_waitcnt vmcnt({min(63, len(Kk.vm) - Kk.pollmark)})")
            for c in cmp_ops: o(c)
            o("s_nop 0")
            poll_stub(Kk, V_ACT, ld, cmp_ops)(Kk)
            Kk.label(l)
        issue.cost = 8; chk.cost = 8
        return issue, [chk]

    queue = []
    bufc = 0
    B1R = [56, 58, 2]
    gpos = 0; last_st = -100; PACE = int(os.environ.get('PACE', 17))
    for n in range(NS):
        G, q = ST[n]
        kind, acc, nfb = GR[G]
        mf = []; bufs = []
        for fb in range(nfb):
            buf = (bufc + fb) % 2; bufs.append(buf)
            for tb in range(4):
                for ksl in range(4):
                    D = v(acc + (fb*4+tb)*4, 4)
                    C = D if (q or ksl) else (v(BIAS + 4*fb, 4) if kind == 'H' else "0")
                    Wr = v(WF + buf*16 + ksl*4, 4); Xr = a((tb*16 + 4*q + ksl)*4, 4)
                    mf.append(mfma(D, Xr, Wr, C) if kind == 'V' else mfma(D, Wr, Xr, C))
        bufc = (bufc + nfb) % 2
        sc = Sched(len(mf))
        if n in (11, 20): assert not queue, (n, len(queue))
        w0 = [f"T{n}_0"] + ([f"S{2*q}", f"S{2*q+1}"] if G == 0 else [])
        if G == 4: sc.put(-1, lambda Kk, q=q: Kk.wait_vm([f"X{q}"]))
        sc.put(-1, lambda Kk, w0=w0: Kk.wait_lg(w0))
        for fb in range(nfb - 1):
            for i, e in enumerate(trr(n, fb + 1, bufs[fb + 1])): sc.put(fb*16 + i, e)
            if fb < nfb - 2: sc.put(fb*16 + 15, lambda Kk, n=n, fb=fb: Kk.wait_lg([f"T{n}_{fb+1}"]))
        lb = (nfb - 1) * 16
        need = [f"W{n+1}"] if n + 1 < NS else []
        if n == 1: need.append("xs")
        if n == 20: need += ["st2", "st3"]
        def barw(Kk, need=need, n=n, nfb=nfb):
            nv = min([Kk.vm_after(t) for t in need] + [63 if n + 1 < NS else 24])
            Kk.op(f"s_waitcnt vmcnt({nv}) lgkmcnt({Kk.lg_n([f'T{n}_{nfb-1}'])})")
        sc.put(lb - 1, barw); sc.put(lb - 1, "s_barrier")
        if n + 1 < NS:
            for i, e in enumerate(trr(n + 1, 0, bufc)): sc.put(lb + i, e)
        else:
            sc.put(lb - 2, f"v_mov_b32 v{V_KA}, v{V_L16}")
            for i in range(8): sc.put(lb + i, kread(i))
        dm = []
        if 1 <= n and n + 3 < NS: dm += issue_w(n + 3)
        if n == 0: dm += issue_w(2) + c_loads(3) + issue_w(3) + flagz
        if 1 <= n <= 4: dm += c_loads(n + 3)
        if n == 2: dm.append(touch(1, S_WUV, 233, 49))
        if n == 4: dm.append(touch(0, S_WQ, 233, 49))
        if n == 6:
            dm += [f"s_mul_i32 s49, s{S_P}, {64*2752}", f"s_mul_i32 s{S_T+6}, s{S_H}, 96", f"s_add_u32 s49, s49, s{S_T+6}", f"s_lshl_b32 s{S_T+6}, s{S_G}, 6", f"s_add_u32 s49, s49, s{S_T+6}", touch(1, S_W1, 234, 49)]
        if n == 2: dm.append(signal(72, 61))
        if n == 21: dm.append(lambda Kk: Kk.vmem(f"buffer_store_dword v61, v{V_SIG}, s[{S_WS}:{S_WS+3}], s74 offen{SC1}", "sig"))
        if n == 5:
            pl, pc = poll(f"buffer_load_dword v{V_ACT}, off, s[{S_DBG}:{S_DBG+3}], 0{SC1}", [f"v_cmp_gt_u32 vcc, 0x100, v{V_ACT}"], "px"); dm.append(pl)
        if n == 7: dm += pc
        if n in (8, 9):
            dm.append(f"s_and_b32 s{S_T+6}, s{S_H}, 3"); dm.append(f"s_lshl_b32 s{S_T+6}, s{S_T+6}, 14"); dm.append(f"s_add_u32 s{S_T+6}, s{S_T+6}, s{S_XN}")
            if n == 9: dm.append(f"s_add_u32 s{S_T+6}, s{S_T+6}, 8192")
            dm.append(f"v_lshlrev_b32 v{V_ACT}, 7, v{V_LANE}")
            dm.append(lambda Kk: Kk.vmem(f"buffer_load_dword v63, v{V_ACT}, s[{S_WS}:{S_WS+3}], s{S_T+6} offen{SC1}", "pf"))
        XL = {12: [(0, (0, 1))], 13: [(0, (2, 3))], 14: [(1, (0, 1, 2))], 15: [(1, (3,)), (2, (0, 1))], 16: [(2, (2, 3)), (3, (0,))], 17: [(3, (1, 2, 3))]}
        for x_ in XL.get(n, []): dm += xn_loads(*x_)
        if n == 13:
            dm.append(f"s_mul_i32 s{S_T+6}, s{S_H}, 96")
            dm += [lambda Kk, fb=fb: Kk.vmem(f"buffer_load_dwordx2 {v(B1R[fb],2)}, v2, s[{S_B1}:{S_B1+3}], s{S_T+6} offen offset:{fb*32}", "b1") for fb in range(3)]
        if n == 22:
            pl2, pc2 = poll(f"buffer_load_dword v{V_ACT}, v62, s[{S_WS}:{S_WS+3}], s47 offen{SC1}", [f"v_cmp_eq_u32 vcc, 0, v{V_ACT}"], "pk"); dm.append(pl2)
        if n == 24: dm += pc2
        if 25 <= n <= 27: dm += sum((fill(x_, 0) for x_ in [(0, 1), (2, 3, 4), (5, 6, 7)][n - 25]), [])
        if n >= NS - 3: dm += fill(2*(n - (NS - 3)) + 2, 1) + fill(2*(n - (NS - 3)) + 3, 1)
        pos = 1
        for e in dm:
            while sc.cost[pos] + sc.c(e) > 8 and pos < len(mf) - 1: pos += 1
            sc.put(pos, e)
            if getattr(e, "cost", 4) == 8: assert pos < lb - 1, (n, pos)
            if isinstance(e, str) and "m0," in e: pos += 1
        if n < 6:
            pos = max(pos, 44)
            for e in shuffle(n + 2):
                while sc.cost[pos] + 4 > 8 and pos < len(mf) - 1: pos += 1
                sc.put(pos, e)
        if n == 6:
            queue += [f"v_and_b32 v192, 15, v{V_LANE}", f"v_lshrrev_b32 v193, 4, v{V_LANE}", "v_lshlrev_b32 v193, 2, v193"]
            for r in range(4): queue += [f"v_add_u32 v194, {r}, v193", f"v_cmp_gt_u32 s[{S_MSK+2*r}:{S_MSK+2*r+1}], v194, v192"]
        if n == 8: queue += kv_epilogue(0)
        if n == 11: queue += kv_epilogue(1)
        if n == 15: queue = [lambda Kk: Kk.wait_vm(["b1"])] + queue; queue[1:1] = [x for fb in range(3) for r in range(2) for x in
                   (f"v_lshlrev_b32 v{BIAS+4*fb+2*r}, 16, v{B1R[fb]+r}", f"v_and_b32 v{BIAS+4*fb+2*r+1}, 0xffff0000, v{B1R[fb]+r}")]
        if n == 13: queue += kv_epilogue(2)
        if n == 16: queue += kv_epilogue(3)
        if n == 20: queue += h_epilogue()
        if n == 24: queue = q_pack(192) + queue
        if n == 25: queue = q_move(192, 0) + [f"v_mov_b32 v{192+i}, 0" for i in range(64)] + queue
        if n == 27: queue += [f"v_mov_b32 v{128+i}, 0" for i in range(64)] + [f"v_accvgpr_write_b32 a{A_L+i}, 0" for i in range(16)]
        pos = 10 if n in (16, 20, 24) else 0
        while queue and pos < len(mf):
            e = queue[0]
            if getattr(e, "store", False):
                if gpos + pos < last_st + PACE: pos += 1; continue
            if sc.cost[pos] + sc.c(e) <= 8:
                sc.put(pos, e); queue.pop(0)
                if getattr(e, "store", False): last_st = gpos + pos
            else: pos += 1
        gpos += len(mf)
        emit_slots(Kk, mf, sc.slots)
        STG = os.environ.get('STG')
        if STG is not None:
            if 0 <= n - int(STG) < 15: Kk.stamp(1 + n - int(STG), force=True)
            if STG == '99' and n < 3: Kk.stamp(13 + n, force=True)
        elif n in (3, 7, 11, 15, 19, 23, 27): Kk.stamp({3: 4, 7: 7, 11: 8, 15: 13, 19: 1, 23: 2, 27: 14}[n])
    print("mega proj leftover filler:", len(queue))
    em(Kk, queue)
    o("s_nop 7")
    em(Kk, q_pack(64) + q_move(64, 1))
    o("v_mov_b32 v56, 0x3f803f80")
    for r in range(4): o(f"v_accvgpr_write_b32 a{A_ONE+r}, v56")
    o(f"v_mov_b32 v{V_NEG}, 0xff800000")
    o(f"v_mov_b32 v15, v{V_SIG}"); o(f"v_mov_b32 v0, v{V_XNST}")
    o(f"s_lshl_b32 s{S_T}, s{S_G}, 14"); o(f"s_add_u32 s{S_T}, s{S_T}, {XOFF}"); o(f"v_add_u32 v{V_T0}, s{S_T}, v{V_L16}")
    o(f"s_cmp_eq_u32 s{S_G}, 0"); o(f"s_mov_b32 s{S_T+1}, 0x6000"); o(f"s_cselect_b32 s{S_T}, {XOFF + 15*1024}, s{S_T+1}"); o(f"v_add_u32 v{V_T1}, s{S_T}, v{V_L16}")
    o(f"s_cmp_lg_u32 s{S_ROLE}, 0"); o("s_cbranch_scc1 k2_nopub")
    for j in range(4):
        for ds in range(4):
            if j*4+ds < 15: o(f"ds_write_b128 v{V_T0}, {a(AQ(j, ds), 4)} offset:{(j*4+ds)*1024}")
            else: o(f"ds_write_b128 v{V_T1}, {a(AQ(j, ds), 4)}")
    Kk.label("k2_nopub")
    o("s_mov_b32 s50, s45")
    o(f"s_mov_b32 s{S_TGT}, 4"); o(f"s_mov_b32 s{S_FT}, {8*8192}"); o(f"s_mov_b32 s{S_PH}, 0"); o("s_mov_b32 s7, 0x4000"); o(f"s_mov_b32 s{S_NF}, 0")
    o("s_mov_b32 m0, s48")
    o(f"s_mov_b32 s48, s{S_WKB}")
    o(f"v_add_u32 v{V_KA}, 0x4000, v{V_L16}"); o(f"v_add_u32 v{V_VA}, 0x8000, v{V_L16}")
    o(f"v_lshlrev_b32 v{V_CNT}, 2, v{V_LANE}"); o(f"v_add_u32 v{V_CNT}, {CNTOFF}, v{V_CNT}"); o(f"v_mov_b32 v{V_ONE}, 1")
    o(f"s_cmp_eq_u32 s{S_ROLE}, 0"); o(f"s_cselect_b32 s{S_DST}, s{S_D4}, 0x7fffff00")
    Kk.stamp(5)
    Kk.mega = True
    attention(Kk)
    Kk.stamp(10)
    from mega_p4 import p4
    p4(Kk, poll_stub)
    Kk.stamp(15)
    if os.environ.get("DBGOUT"):
        o("s_cmp_lg_u32 s2, 100"); o("s_cbranch_scc1 mg_nodbg"); o(f"s_cmp_lg_u32 s{S_WAVE}, 0"); o("s_cbranch_scc1 mg_nodbg")
        o("s_mov_b64 exec, 1")
        for k_, i in enumerate((11, 3, 4, 7, 8, 13, 1, 2, 14, 5, 9, 10, 6, 15)):
            o(f"s_sub_u32 s65, s{80+i}, s80"); o("v_mov_b32 v0, s65")
            o(f"buffer_store_dword v0, off, s[{S_DBG}:{S_DBG+3}], 0 offset:{4+4*k_}")
        Kk.label("mg_nodbg")
    else:
        Kk.stamp_flush(0, S_WAVE, S_WS)
    o("s_endpgm")
    emit_stubs(Kk)
    emit_pstubs(Kk)
    rare(Kk, 0)
    rare(Kk, 1)
    Kk.label("mg_exit")
    o("s_endpgm")
    kernel_desc(Kk, Kk.name, vgpr=512, accum=256)
    return Kk
```

```python
from att import *
from gen_k1 import ln_rows
LOG2E = 1.4426950408889634
KSCALE = 0x3e0293ee
S_XN = 3; S_WQB = 4; S_W1B = 5; S_LDSW = 6
S_C = 28; S_WUK = 32; S_WUV = 36; S_DBG = 96
S_KST = 50; S_VST = 51; S_STT = 52; S_WKB = 53; S_AO = 56
VQ, VH, TR = 48, 52, 8
V_ACT = 3; V_SIG = 6; V_SHW = 56; V_SHR = 58; V_XNST = 60
WF = 16; BIAS = 176
SC1 = " sc1"
KVSC = os.environ.get("KVSC", " sc1")
if KVSC == "none": KVSC = ""

class Sched:
    def __init__(self, n): self.n = n; self.slots = {i: [] for i in range(-1, n)}; self.cost = {i: 0 for i in range(-1, n)}
    def c(self, e):
        if callable(e): return getattr(e, "cost", 4)
        return 8 if e.startswith(("v_exp", "v_rcp")) else 4
    def put(self, i, e): self.slots[i].append(e); self.cost[i] += self.c(e)

def poll_stub(Kk, reg, load_txt, cmp_ops):
    st = Kk.newlabel("mg_ps"); bk = Kk.newlabel("mg_pb")
    Kk.pstubs.append((st, bk, load_txt, cmp_ops))
    def f(Kk):
        Kk.op(f"s_cbranch_vccnz {st}"); Kk.label(bk)
    return f
def emit_pstubs(Kk):
    o = Kk.op
    for st, bk, ld, cmp_ops in Kk.pstubs:
        Kk.label(st)
        o("s_mov_b32 s49, 0x4000")
        Kk.label(st + "_l")
        o("s_sleep 12")
        o(ld)
        o("s_sub_u32 s49, s49, 1")
        o("s_waitcnt vmcnt(0)")
        o(f"s_cbranch_scc1 {bk}")
        for c in cmp_ops: o(c)
        o("s_nop 0")
        o(f"s_cbranch_vccnz {st}_l")
        o(f"s_branch {bk}")

def gen_mega(name):
    Kk = K(name)
    Kk.pstubs = []
    o = Kk.op
    kernel_header(Kk, Kk.name)
    o("s_cmp_ge_u32 s2, 256")
    o("s_cbranch_scc1 mg_exit")
    if STAMPS:
        for i in range(16): o(f"s_mov_b32 s{80+i}, 0")
    Kk.stamp(0)
    o("s_load_dwordx16 s[64:79], s[0:1], 0")
    o("s_load_dwordx2 s[54:55], s[0:1], 64")
    o("s_load_dwordx4 s[56:59], s[0:1], 88")
    o(f"v_and_b32 v{V_LANE}, 63, v0")
    o("v_lshrrev_b32 v62, 6, v0")
    o(f"v_lshlrev_b32 v{V_L16}, 4, v{V_LANE}")
    o(f"v_readfirstlane_b32 s{S_WAVE}, v62")
    o(f"s_and_b32 s{S_H}, s2, 7"); o(f"s_lshl_b32 s{S_H}, s{S_H}, 2")
    o(f"s_lshr_b32 s3, s2, 3"); o(f"s_and_b32 s3, s3, 3"); o(f"s_add_u32 s{S_H}, s{S_H}, s3")
    o(f"s_lshr_b32 s{S_P}, s2, 5")
    o(f"s_and_b32 s{S_G}, s{S_WAVE}, 1"); o(f"s_lshr_b32 s{S_ROLE}, s{S_WAVE}, 1")
    o(f"v_lshrrev_b32 v61, 3, v{V_LANE}"); o(f"v_and_b32 v62, 7, v{V_LANE}")
    o(f"s_lshl_b32 s3, s{S_WAVE}, 15"); o("s_mov_b32 s7, s3")
    o(f"v_lshrrev_b32 v63, 4, v{V_LANE}"); o("v_xor_b32 v16, v62, v63")
    o("v_lshlrev_b32 v17, 10, v61")
    o(f"v_lshl_add_u32 v{V_SHW}, v16, 4, v17"); o(f"v_xor_b32 v{V_SHW+1}, 64, v{V_SHW}")
    o(f"v_and_b32 v16, 15, v{V_LANE}"); o("v_lshrrev_b32 v17, 1, v16"); o("v_xor_b32 v17, v17, v63")
    o("v_lshlrev_b32 v16, 7, v16"); o("v_add_u32 v16, s3, v16")
    o(f"v_lshl_add_u32 v{V_SHR}, v17, 4, v16"); o(f"v_xor_b32 v{V_SHR+1}, 64, v{V_SHR}")
    o(f"v_lshrrev_b32 v16, 2, v{V_LANE}"); o(f"v_and_b32 v17, 3, v{V_LANE}")
    o("v_lshlrev_b32 v16, 10, v16"); o(f"v_lshl_add_u32 v{V_XNST}, v17, 8, v16")
    o(f"v_bfe_u32 v16, v{V_LANE}, 4, 1"); o("v_lshlrev_b32 v16, 1, v16"); o("v_xor_b32 v16, v62, v16"); o("v_xor_b32 v17, 4, v16")
    for base, stride in ((VQ, 8192), (VH, 2752)):
        o(f"v_mul_u32_u24 v18, {stride}, v61")
        for i in range(4):
            o(f"v_lshl_add_u32 v{base+i}, v{16 if i % 2 == 0 else 17}, 4, v18")
            if i: o(f"v_add_u32 v{base+i}, {8*i*stride}, v{base+i}")
    o(f"v_bfe_u32 v16, v{V_LANE}, 2, 2"); o("v_lshl_add_u32 v17, v63, 3, v16"); o("v_lshlrev_b32 v17, 7, v17")
    o(f"v_and_b32 v18, 3, v{V_LANE}"); o("v_lshl_add_u32 v17, v18, 3, v17"); o("v_add_u32 v17, 0x2000, v17")
    o(f"v_bfe_u32 v18, v{V_LANE}, 3, 1"); o(f"v_bfe_u32 v19, v{V_LANE}, 4, 1"); o("v_lshl_or_b32 v18, v19, 1, v18")
    for fb in range(4):
        o(f"v_xor_b32 v19, {fb}, v18"); o(f"v_lshl_add_u32 v{TR+fb}, v19, 5, v17")
    for tb in range(4):
        if tb: o(f"v_add_u32 v{12+tb}, {tb*NKS*1024}, v{V_L16}")
        else: o(f"v_mov_b32 v12, v{V_L16}")
    o(f"s_lshl_b32 s3, s{S_G}, 12"); o(f"v_add_u32 v{V_FET}, s3, v{V_L16}"); o(f"v_add_u32 v{V_FET2}, 0x2000, v{V_FET}")
    o(f"s_lshl_b32 s48, s{S_WAVE}, 12")
    o(f"v_lshlrev_b32 v2, 3, v63")
    o(f"v_lshlrev_b32 v16, 2, v{V_LANE}"); o(f"v_add_u32 v16, {CNTOFF}, v16"); o("v_mov_b32 v17, 0"); o("ds_write_b32 v16, v17")
    o("v_cmp_eq_u32 vcc, 0, v0"); o("v_mov_b32 v16, 0x7f000000"); o("s_nop 0"); o(f"v_cndmask_b32 v{V_SIG}, v16, v17, vcc")
    o("s_waitcnt lgkmcnt(0)")
    if os.environ.get('STG') == '99': Kk.stamp(1, force=True)
    Kk.srd(S_WS, 58, SZ['ws']); Kk.srd(S_C, 66, SZ['c']); Kk.srd(S_WUK, 70, SZ['wuk']); Kk.srd(S_WUV, 72, SZ['wuv'])
    Kk.srd(S_FS, 64, SZ['x'])
    Kk.srd(S_WQ, 68, SZ['wq']); Kk.srd(S_W1, 78, SZ['w1']); Kk.srd(S_B1, 54, SZ['b1']); Kk.srd(S_DBG, 56, 256)
    LNB = 192
    o(f"s_lshl_b32 s{S_T}, s2, 3"); o(f"s_lshl_b32 s{S_T+1}, s{S_WAVE}, 1"); o(f"s_add_u32 s{S_T}, s{S_T}, s{S_T+1}"); o(f"s_lshl_b32 s{S_T}, s{S_T}, 10")
    Kk.vmem(f"buffer_load_dwordx4 {v(LNB,4)}, v{V_L16}, s[{S_FS}:{S_FS+3}], s{S_T} offen", "x")
    Kk.vmem(f"buffer_load_dwordx4 {v(LNB+4,4)}, v{V_L16}, s[{S_FS}:{S_FS+3}], s{S_T} offen offset:1024", "x")
    if os.environ.get('STG') == '99': Kk.stamp(2, force=True)
    o(f"s_lshr_b32 s70, s{S_T}, 14"); o("s_lshl_b32 s70, s70, 14"); o(f"s_lshr_b32 s{S_T}, s{S_T}, 6"); o(f"s_and_b32 s{S_T}, s{S_T}, 0xf0"); o(f"s_add_u32 s70, s70, s{S_T}")
    o(f"s_lshl_b32 s{S_T}, s{S_P}, 8"); o(f"s_lshl_b32 s{S_T+1}, s{S_WAVE}, 6"); o(f"s_add_u32 s{S_T}, s{S_T}, s{S_T+1}")
    for i in range(8):
        o(f"s_add_u32 s{S_AO+i}, s{S_T}, {8*i}"); o(f"s_lshl_b32 s{S_AO+i}, s{S_AO+i}, 10")
    o(f"s_lshl_b32 s{S_KST}, s{S_H}, 19"); o(f"s_lshl_b32 s{S_T}, s{S_T}, 8"); o(f"s_add_u32 s{S_KST}, s{S_KST}, s{S_T}")
    o(f"s_add_u32 s{S_VST}, s{S_KST}, {VF_OFF}"); o(f"s_add_u32 s{S_KST}, s{S_KST}, {KF_OFF}")
    o(f"s_lshl_b32 s{S_WQB}, s{S_WAVE}, 18"); o(f"s_lshl_b32 s{S_T}, s{S_H}, 8"); o(f"s_add_u32 s{S_WQB}, s{S_WQB}, s{S_T}")
    o(f"s_mul_i32 s{S_W1B}, s{S_WAVE}, {32*2752}"); o(f"s_mul_i32 s{S_T}, s{S_H}, 96"); o(f"s_add_u32 s{S_W1B}, s{S_W1B}, s{S_T}")
    o(f"s_lshl_b32 s{S_LDSW}, s{S_ROLE}, 14"); o(f"s_lshl_b32 s{S_T}, s{S_G}, 12"); o(f"s_add_u32 s{S_LDSW}, s{S_LDSW}, s{S_T}"); o(f"s_add_u32 s{S_LDSW}, s{S_LDSW}, 0x2000")

    NS = 28
    GR = [('K', 64, 4), ('K', 128, 4), ('V', 192, 4), ('V', 64, 4), ('H', 128, 3), ('Q', 192, 4), ('Q', 64, 4)]
    ST = [(0,0),(1,0),(0,1),(1,1),(0,2),(1,2),(0,3),(1,3), (2,0),(2,1),(2,2),(3,0),(2,3),(3,1),(3,2),(3,3)] + [(G, q) for G in (4, 5, 6) for q in range(4)]
    def issue_w(n):
        G, q = ST[n]
        if G == 4: srd, sb, off, vd = S_W1, S_W1B, q * 128 * 2752, VH
        else:
            srd = [S_WUK, S_WUK, S_WUV, S_WUV, None, S_WQ, S_WQ][G]
            sb, off, vd = S_WQB, q * 128 * 8192 + ((G % 2) if G < 4 else (G - 5)) * 128, VQ
        out = [f"s_add_u32 s{S_T+4}, s{sb}, {off}"]
        for i in range(4):
            out.append(f"s_add_u32 m0, s{S_LDSW}, {((n + 1) % 4) * 32768 + i * 1024}")
            out.append(lambda Kk, i=i: Kk.vmem(f"buffer_load_dwordx4 v{vd+i}, s[{srd}:{srd+3}], s{S_T+4} offen lds", f"W{n}"))
        return out
    def areg(u, i): return a(((i // 2) * 16 + 2 * u + (i % 2)) * 4, 4)
    def c_loads(u):
        out = []
        for i in range(8):
            out.append(f"s_add_u32 m0, s7, {(u % 2) * 16384 + i * 1024}")
            out.append(lambda Kk, i=i: Kk.vmem(f"buffer_load_dwordx4 v{V_SHW + i % 2}, s[{S_C}:{S_C+3}], s{S_AO+i} offen lds", f"A{u}"))
        out += [f"v_add_u32 v{V_SHW}, 0x80, v{V_SHW}", f"v_add_u32 v{V_SHW+1}, 0x80, v{V_SHW+1}"]
        if u >= 2: out = [lambda Kk: Kk.wait_lg([f"S{u-2}"])] + out
        return out
    def shuffle(u):
        out = [lambda Kk: Kk.wait_vm([f"A{u}"])]
        out += [lambda Kk, i=i: Kk.lds(f"ds_read_b128 {areg(u, i)}, v{V_SHR + i % 2} offset:{(u % 2) * 16384 + (i//2)*2048}", f"S{u}") for i in range(8)]
        return out
    def xn_loads(q, tbs):
        out = []
        for tb in tbs:
            out.append(f"s_add_u32 s{S_T+5}, s{S_XN}, {tb*16384 + q*4096}")
            for k in range(4):
                out.append(lambda Kk, tb=tb, k=k: Kk.vmem(f"buffer_load_dwordx4 {a((tb*16+4*q+k)*4,4)}, v{V_L16}, s[{S_WS}:{S_WS+3}], s{S_T+5} offen offset:{k*1024}{SC1}", f"X{q}"))
        return out
    def fill(slot, kind):
        lab = Kk.newlabel("mg_fs")
        def f(Kk):
            o(f"s_cmp_lg_u32 s{S_ROLE}, {kind}"); o(f"s_cbranch_scc1 {lab}")
            o(f"s_add_u32 m0, s48, {slot*16384}"); o(f"s_mov_b32 s{S_T+6}, {slot*8192}")
            for i in range(4): o(f"buffer_load_dwordx4 v{V_FET}, s[{S_FS}:{S_FS+3}], s{S_T+6} offen offset:{i*1024}{SC1} lds")
            Kk.label(lab)
        f.cost = 8
        return [f]
    def ems(lst):
        prev = False
        for e in lst:
            if callable(e):
                if prev: o("s_nop 0")
                e(Kk); prev = False
            else:
                o(e); prev = "m0," in e
    half = [0, 0, 0, 0]
    def trr(n, fb, buf):
        hi = 1 if (n + 1) % 4 >= 2 else 0
        out = []
        if half[fb] != hi:
            out.append(f"v_xor_b32 v{TR+fb}, 0x10000, v{TR+fb}"); half[fb] = hi
        return out + [lambda Kk, ksl=ksl, rd=rd: Kk.lds(f"ds_read_b64_tr_b16 {v(WF + buf*16 + ksl*4 + rd*2, 2)}, v{TR+fb} offset:{((n+1) % 2)*32768 + (ksl//2)*16384 + (ksl%2)*4096 + rd*512}", f"T{n}_{fb}")
                for ksl in range(4) for rd in range(2)]
    def signal(dw, val_reg):
        return lambda Kk: Kk.vmem(f"buffer_atomic_add v{val_reg}, v{V_SIG}, s[{S_DBG}:{S_DBG+3}], s{dw} offen", "sig")

    TD = 236
    o(f"v_lshlrev_b32 v232, 10, v{V_LANE}")
    o(f"v_lshlrev_b32 v233, 13, v{V_LANE}")
    o(f"v_mul_u32_u24 v234, 2752, v{V_LANE}")
    o("s_lshr_b32 s66, s2, 3"); o("s_lshl_b32 s66, s66, 16"); o(f"s_lshl_b32 s67, s{S_WAVE}, 7"); o("s_add_u32 s66, s66, s67")
    Kk.vmem(f"buffer_load_dword v{TD}, v232, s[{S_C}:{S_C+3}], s66 offen", "pf")
    o(f"s_lshl_b32 s67, s{S_P}, 19"); o(f"s_lshl_b32 s68, s{S_H}, 8"); o("s_add_u32 s67, s67, s68"); o(f"s_lshl_b32 s68, s{S_G}, 7"); o("s_add_u32 s67, s67, s68")
    o(f"s_cmp_lg_u32 s{S_ROLE}, 0"); o("s_cbranch_scc1 mg_t1")
    o(f"buffer_load_dword v{TD}, v233, s[{S_WUK}:{S_WUK+3}], s67 offen")
    o("s_branch mg_t2")
    Kk.label("mg_t1")
    o("s_getpc_b64 s[68:69]")
    Kk.label("mg_pc")
    o("s_lshr_b32 s71, s2, 3"); o("s_lshl_b32 s71, s71, 1"); o(f"s_add_u32 s71, s71, s{S_G}"); o("s_lshl_b32 s71, s71, 10")
    o(f"v_and_b32 v235, 7, v{V_LANE}"); o("v_lshlrev_b32 v235, 7, v235"); o("v_add_u32 v235, s71, v235")
    o("v_min_u32 v235, mg_exit-mg_pc, v235")
    o(f"global_load_dword v{TD}, v235, s[68:69]")
    Kk.label("mg_t2")
    Kk.vm.append("pf")
    if os.environ.get('STG') == '99': Kk.stamp(3, force=True)
    ems(issue_w(0)); ems(c_loads(0))
    if os.environ.get('STG') == '99': Kk.stamp(4, force=True)
    ems(c_loads(1)); ems(issue_w(1))
    if os.environ.get('STG') == '99': Kk.stamp(5, force=True)
    o("s_mov_b32 s72, s66"); o("s_mov_b32 s49, s67")
    Kk.wait_vm(["x"])
    Kk.stamp(11)
    if os.environ.get('STG') == '99': Kk.stamp(6, force=True)
    ln_rows(Kk, LNB)
    if os.environ.get('STG') == '99': Kk.stamp(7, force=True)
    ems(shuffle(0)); ems(shuffle(1))
    if os.environ.get('STG') == '99': Kk.stamp(8, force=True)
    Kk.vmem(f"buffer_load_dword v{TD}, v232, s[{S_C}:{S_C+3}], s72 offen offset:512", "pf")
    for i in range(4, 8):
        o(f"s_add_u32 s{S_AO+i}, s{S_AO}, {8192*i}")
    ems(c_loads(2))
    if os.environ.get('STG') == '99': Kk.stamp(9, force=True)
    Kk.vmem(f"buffer_store_dwordx4 {v(LNB,4)}, v{V_XNST}, s[{S_WS}:{S_WS+3}], s70 offen{SC1}", "xs")
    Kk.vmem(f"buffer_store_dwordx4 {v(LNB+4,4)}, v{V_XNST}, s[{S_WS}:{S_WS+3}], s70 offen offset:16{SC1}", "xs")
    if os.environ.get('STG') == '99': Kk.stamp(10, force=True)
    o(f"s_sub_u32 s{S_T}, 15, s{S_P}"); o(f"s_cmp_eq_u32 s{S_ROLE}, 0"); o(f"s_cselect_b32 s{S_T+1}, s{S_T}, s{S_P}")
    o(f"s_lshl_b32 s{S_T+1}, s{S_T+1}, 3"); o(f"s_lshl_b32 s{S_T+2}, s{S_G}, 2"); o(f"s_add_u32 s{S_T+1}, s{S_T+1}, s{S_T+2}")
    o(f"s_lshl_b32 s{S_T}, s{S_T}, 3"); o(f"s_add_u32 s{S_T}, s{S_T}, s{S_T+2}")
    o(f"s_lshl_b32 s{S_T+2}, s{S_H}, 12"); o(f"s_add_u32 s{S_T+2}, s{S_T+2}, {ACT_OFF}")
    o(f"s_mul_i32 s{S_CTX}, s{S_T+1}, {NKS*1024}"); o(f"s_add_u32 s{S_CTX}, s{S_CTX}, s{S_T+2}")
    o(f"s_mul_i32 s{S_CTXL}, s{S_T}, {NKS*1024}"); o(f"s_add_u32 s{S_CTXL}, s{S_CTXL}, s{S_T+2}")
    o(f"s_lshl_b32 s{S_XN}, s{S_T+1}, 14")
    for fb in range(3):
        o(f"s_mul_i32 s{S_T+3}, s{S_H}, 3"); o(f"s_add_u32 s{S_T+3}, s{S_T+3}, {fb}")
        o(f"s_lshr_b32 s{S_T+4}, s{S_T+3}, 1"); o(f"s_lshl_b32 s{S_T+4}, s{S_T+4}, 10")
        o(f"s_and_b32 s{S_T+5}, s{S_T+3}, 1"); o(f"s_lshl_b32 s{S_T+5}, s{S_T+5}, 3"); o(f"s_add_u32 s{S_T+4}, s{S_T+4}, s{S_T+5}")
        o(f"s_mul_i32 s{S_T+5}, s{S_T+1}, {NKS*1024}"); o(f"s_add_u32 s{S_T+4}, s{S_T+4}, s{S_T+5}")
        o(f"s_add_u32 s{S_T+4}, s{S_T+4}, {ACT_OFF + 128*1024}")
        o(f"s_cmp_lt_u32 s{S_T+3}, 86"); o(f"s_cselect_b32 s{76+fb}, s{S_T+4}, 0x7f000000")
    o(f"s_lshl_b32 s{S_T+3}, s{S_P}, 2"); o(f"s_sub_u32 s79, 64, s{S_T+3}"); o(f"s_lshl_b32 s{S_D4}, s{S_P}, 4"); o(f"s_add_u32 s{S_D4}, s{S_D4}, 32")
    o(f"s_lshl_b32 s{S_T+3}, s{S_H}, 19")
    o(f"s_cmp_eq_u32 s{S_ROLE}, 0"); o(f"s_mov_b32 s{S_T+5}, {VF_OFF - 16384}"); o(f"s_cselect_b32 s{S_T+4}, {KF_OFF}, s{S_T+5}"); o(f"s_cselect_b32 s{S_T+5}, 0, 16384")
    o(f"s_add_u32 s{S_T+4}, s{S_T+4}, s{S_T+3}"); o(f"s_add_u32 s{S_FS}, s{S_WS}, s{S_T+4}"); o(f"s_addc_u32 s{S_FS+1}, s{S_WS+1}, 0")
    o(f"s_lshl_b32 s{S_FS+2}, s79, 13"); o(f"s_add_u32 s{S_FS+2}, s{S_FS+2}, s{S_T+5}")
    o("s_mov_b32 s72, 0")
    o(f"s_lshl_b32 s47, s{S_H}, 7"); o(f"s_add_u32 s47, s47, {KVF_OFF}"); o(f"s_lshl_b32 s73, s{S_P}, 2"); o("s_add_u32 s74, s47, s73")
    o(f"s_lshl_b32 s45, s{S_P}, 7"); o(f"s_lshl_b32 s73, s{S_H}, 2"); o("s_add_u32 s45, s45, s73"); o(f"s_add_u32 s45, s45, {HF_OFF}")
    o(f"s_lshr_b32 s{S_T+1}, s{S_T+1}, 3"); o(f"s_lshl_b32 s{S_T+1}, s{S_T+1}, 8"); o(f"s_lshl_b32 s{S_T+2}, s{S_H}, 3"); o(f"s_add_u32 s{S_T+1}, s{S_T+1}, s{S_T+2}")
    o(f"s_lshl_b32 s{S_T+2}, s{S_G}, 2"); o(f"s_add_u32 s{S_T+1}, s{S_T+1}, s{S_T+2}"); o(f"s_add_u32 s{S_WKB}, s{S_T+1}, {FLG_OFF}")
    o(f"v_cmp_eq_u32 vcc, 0, v{V_LANE}"); o("v_mov_b32 v62, 0x7f000000"); o("v_mov_b32 v63, 0"); o(f"v_cndmask_b32 v{V_XNST}, v62, v63, vcc")
    o("v_mov_b32 v61, 1")
    o(f"v_and_b32 v62, 7, v{V_LANE}"); o("v_lshlrev_b32 v62, 2, v62")
    Kk.stamp(12)
    if os.environ.get('STG') == '99': Kk.stamp(11, force=True)
    flagz = [lambda Kk: Kk.vmem(f"buffer_store_dword v63, v{V_XNST}, s[{S_WS}:{S_WS+3}], s{S_WKB} offen{SC1}", "xs"),
             lambda Kk: Kk.vmem(f"buffer_store_dword v63, v{V_SIG}, s[{S_WS}:{S_WS+3}], s74 offen{SC1}", "xs"),
             lambda Kk: Kk.vmem(f"buffer_store_dword v63, v{V_SIG}, s[{S_WS}:{S_WS+3}], s45 offen{SC1}", "xs")]
    def touch(role, srd, vreg, sreg):
        lab = Kk.newlabel("mg_tc")
        def f(Kk):
            o(f"s_cmp_lg_u32 s{S_ROLE}, {role}"); o(f"s_cbranch_scc1 {lab}")
            o(f"buffer_load_dword v63, v{vreg}, s[{srd}:{srd+3}], s{sreg} offen")
            Kk.label(lab)
        f.cost = 7
        return f
    Kk.wait_vm(["W0"])
    o("s_barrier")
    Kk.stamp(3)
    if os.environ.get('STG') == '99': Kk.stamp(12, force=True)
    ems(trr(0, 0, 0))

    def kv_epilogue(G):
        kind, acc, _ = GR[G]; gi = G % 2
        out = []
        if kind == 'K':
            for tb in range(4):
                out.append(f"s_add_u32 s{S_STT}, s{S_KST}, {tb*4096 + gi*2048}")
                for dsl in range(2):
                    q0 = acc + ((2*dsl)*4 + tb)*4; q1 = acc + ((2*dsl+1)*4 + tb)*4
                    out += [f"v_mul_f32 v{x+r}, {hex(KSCALE)}, v{x+r}" for x in (q0, q1) for r in range(4)]
                    out += [f"v_cvt_pk_bf16_f32 v{q0}, v{q0}, v{q0+1}", f"v_cvt_pk_bf16_f32 v{q0+1}, v{q0+2}, v{q0+3}",
                            f"v_cvt_pk_bf16_f32 v{q0+2}, v{q1}, v{q1+1}", f"v_cvt_pk_bf16_f32 v{q0+3}, v{q1+2}, v{q1+3}"]
                    out.append(lambda Kk, q0=q0, dsl=dsl: Kk.vmem(f"buffer_store_dwordx4 {v(q0,4)}, v{V_L16}, s[{S_WS}:{S_WS+3}], s{S_STT} offen offset:{dsl*1024}{KVSC}", f"st{G}"))
        else:
            for tp in range(2):
                out.append(f"s_add_u32 s{S_STT}, s{S_VST}, {tp*8192 + gi*4096}")
                for fb in range(4):
                    q0 = acc + (fb*4 + 2*tp)*4; q1 = q0 + 4
                    out += [f"v_cvt_pk_bf16_f32 v{q0}, v{q0}, v{q0+1}", f"v_cvt_pk_bf16_f32 v{q0+1}, v{q0+2}, v{q0+3}",
                            f"v_cvt_pk_bf16_f32 v{q0+2}, v{q1}, v{q1+1}", f"v_cvt_pk_bf16_f32 v{q0+3}, v{q1+2}, v{q1+3}"]
                    out.append(lambda Kk, q0=q0, fb=fb: Kk.vmem(f"buffer_store_dwordx4 {v(q0,4)}, v{V_L16}, s[{S_WS}:{S_WS+3}], s{S_STT} offen offset:{fb*1024}{KVSC}", f"st{G}"))
        for e in out:
            if callable(e): e.store = True
        return out
    def h_epilogue():
        out = []
        acc = 128; T0, T1 = 56, 176
        for fb in range(3):
            for tb in range(4):
                b = acc + (fb*4+tb)*4
                R4 = range(4)
                out += [f"v_mul_f32 v{T0+r}, {hex(fbits(LOG2E))}, v{b+r}" for r in R4]
                out += [f"v_min_f32 v{T0+r}, {hex(fbits(20*LOG2E))}, v{T0+r}" for r in R4]
                out += [f"v_exp_f32 v{T0+r}, v{T0+r}" for r in R4]
                out += [f"v_add_f32 v{T1+r}, 2.0, v{T0+r}" for r in R4]
                out += [f"v_mul_f32 v{b+r}, v{b+r}, v{T0+r}" for r in R4]
                out += [f"v_mul_f32 v{b+r}, v{b+r}, v{T1+r}" for r in R4]
                out += [f"v_fma_f32 v{T1+r}, v{T0+r}, v{T1+r}, 2.0" for r in R4]
                out += [f"v_rcp_f32 v{T1+r}, v{T1+r}" for r in R4]
                out += [f"v_mul_f32 v{b+r}, v{b+r}, v{T1+r}" for r in R4]
                out += [f"v_cvt_pk_bf16_f32 v{b}, v{b}, v{b+1}", f"v_cvt_pk_bf16_f32 v{b+1}, v{b+2}, v{b+3}"]
                out.append(lambda Kk, b=b, tb=tb, fb=fb: Kk.vmem(f"buffer_store_dwordx2 {v(b,2)}, v{12+tb}, s[{S_WS}:{S_WS+3}], s{76+fb} offen{'' if os.environ.get('HPLAIN') else SC1}", "hs"))
        return out
    def q_pack(acc):
        out = []
        for tb in range(4):
            for dsl in range(2):
                q0 = acc + ((2*dsl)*4 + tb)*4; q1 = acc + ((2*dsl+1)*4 + tb)*4
                out += [f"v_cvt_pk_bf16_f32 v{q0}, v{q0}, v{q0+1}", f"v_cvt_pk_bf16_f32 v{q0+1}, v{q0+2}, v{q0+3}",
                        f"v_cvt_pk_bf16_f32 v{q0+2}, v{q1}, v{q1+1}", f"v_cvt_pk_bf16_f32 v{q0+3}, v{q1+2}, v{q1+3}"]
        return out
    def q_move(acc, half):
        return [f"v_accvgpr_write_b32 a{AQ(tb, 2*half+dsl)+r}, v{acc + ((2*dsl)*4 + tb)*4 + r}" for tb in range(4) for dsl in range(2) for r in range(4)]
    def poll(ld, cmp_ops, tag):
        def issue(Kk):
            l = Kk.newlabel("mg_pw")
            o(f"s_cmp_lg_u32 s{S_WAVE}, 0"); o(f"s_cbranch_scc1 {l}")
            o(ld); Kk.label(l)
            Kk.vm.append(None); Kk.vm.pop(); Kk.pollmark = len(Kk.vm)
        def chk(Kk):
            l = Kk.newlabel("mg_pw")
            o(f"s_cmp_lg_u32 s{S_WAVE}, 0"); o(f"s_cbranch_scc1 {l}")
            o(f"s_waitcnt vmcnt({min(63, len(Kk.vm) - Kk.pollmark)})")
            for c in cmp_ops: o(c)
            o("s_nop 0")
            poll_stub(Kk, V_ACT, ld, cmp_ops)(Kk)
            Kk.label(l)
        issue.cost = 8; chk.cost = 8
        return issue, [chk]

    queue = []
    bufc = 0
    B1R = [56, 58, 2]
    gpos = 0; last_st = -100; PACE = int(os.environ.get('PACE', 17))
    for n in range(NS):
        G, q = ST[n]
        kind, acc, nfb = GR[G]
        mf = []; bufs = []
        for fb in range(nfb):
            buf = (bufc + fb) % 2; bufs.append(buf)
            for tb in range(4):
                for ksl in range(4):
                    D = v(acc + (fb*4+tb)*4, 4)
                    C = D if (q or ksl) else (v(BIAS + 4*fb, 4) if kind == 'H' else "0")
                    Wr = v(WF + buf*16 + ksl*4, 4); Xr = a((tb*16 + 4*q + ksl)*4, 4)
                    mf.append(mfma(D, Xr, Wr, C) if kind == 'V' else mfma(D, Wr, Xr, C))
        bufc = (bufc + nfb) % 2
        sc = Sched(len(mf))
        if n in (11, 20): assert not queue, (n, len(queue))
        w0 = [f"T{n}_0"] + ([f"S{2*q}", f"S{2*q+1}"] if G == 0 else [])
        if G == 4: sc.put(-1, lambda Kk, q=q: Kk.wait_vm([f"X{q}"]))
        sc.put(-1, lambda Kk, w0=w0: Kk.wait_lg(w0))
        for fb in range(nfb - 1):
            for i, e in enumerate(trr(n, fb + 1, bufs[fb + 1])): sc.put(fb*16 + i, e)
            if fb < nfb - 2: sc.put(fb*16 + 15, lambda Kk, n=n, fb=fb: Kk.wait_lg([f"T{n}_{fb+1}"]))
        lb = (nfb - 1) * 16
        need = [f"W{n+1}"] if n + 1 < NS else []
        if n == 1: need.append("xs")
        if n == 20: need += ["st2", "st3"]
        def barw(Kk, need=need, n=n, nfb=nfb):
            nv = min([Kk.vm_after(t) for t in need] + [63 if n + 1 < NS else 24])
            Kk.op(f"s_waitcnt vmcnt({nv}) lgkmcnt({Kk.lg_n([f'T{n}_{nfb-1}'])})")
        sc.put(lb - 1, barw); sc.put(lb - 1, "s_barrier")
        if n + 1 < NS:
            for i, e in enumerate(trr(n + 1, 0, bufc)): sc.put(lb + i, e)
        else:
            sc.put(lb - 2, f"v_mov_b32 v{V_KA}, v{V_L16}")
            for i in range(8): sc.put(lb + i, kread(i))
        dm = []
        if 1 <= n and n + 3 < NS: dm += issue_w(n + 3)
        if n == 0: dm += issue_w(2) + c_loads(3) + issue_w(3) + flagz
        if 1 <= n <= 4: dm += c_loads(n + 3)
        if n == 2: dm.append(touch(1, S_WUV, 233, 49))
        if n == 4: dm.append(touch(0, S_WQ, 233, 49))
        if n == 6:
            dm += [f"s_mul_i32 s49, s{S_P}, {64*2752}", f"s_mul_i32 s{S_T+6}, s{S_H}, 96", f"s_add_u32 s49, s49, s{S_T+6}", f"s_lshl_b32 s{S_T+6}, s{S_G}, 6", f"s_add_u32 s49, s49, s{S_T+6}", touch(1, S_W1, 234, 49)]
        if n == 2: dm.append(signal(72, 61))
        if n == 21: dm.append(lambda Kk: Kk.vmem(f"buffer_store_dword v61, v{V_SIG}, s[{S_WS}:{S_WS+3}], s74 offen{SC1}", "sig"))
        if n == 5:
            pl, pc = poll(f"buffer_load_dword v{V_ACT}, off, s[{S_DBG}:{S_DBG+3}], 0{SC1}", [f"v_cmp_gt_u32 vcc, 0x100, v{V_ACT}"], "px"); dm.append(pl)
        if n == 7: dm += pc
        if n in (8, 9):
            dm.append(f"s_and_b32 s{S_T+6}, s{S_H}, 3"); dm.append(f"s_lshl_b32 s{S_T+6}, s{S_T+6}, 14"); dm.append(f"s_add_u32 s{S_T+6}, s{S_T+6}, s{S_XN}")
            if n == 9: dm.append(f"s_add_u32 s{S_T+6}, s{S_T+6}, 8192")
            dm.append(f"v_lshlrev_b32 v{V_ACT}, 7, v{V_LANE}")
            dm.append(lambda Kk: Kk.vmem(f"buffer_load_dword v63, v{V_ACT}, s[{S_WS}:{S_WS+3}], s{S_T+6} offen{SC1}", "pf"))
        XL = {12: [(0, (0, 1))], 13: [(0, (2, 3))], 14: [(1, (0, 1, 2))], 15: [(1, (3,)), (2, (0, 1))], 16: [(2, (2, 3)), (3, (0,))], 17: [(3, (1, 2, 3))]}
        for x_ in XL.get(n, []): dm += xn_loads(*x_)
        if n == 13:
            dm.append(f"s_mul_i32 s{S_T+6}, s{S_H}, 96")
            dm += [lambda Kk, fb=fb: Kk.vmem(f"buffer_load_dwordx2 {v(B1R[fb],2)}, v2, s[{S_B1}:{S_B1+3}], s{S_T+6} offen offset:{fb*32}", "b1") for fb in range(3)]
        if n == 22:
            pl2, pc2 = poll(f"buffer_load_dword v{V_ACT}, v62, s[{S_WS}:{S_WS+3}], s47 offen{SC1}", [f"v_cmp_eq_u32 vcc, 0, v{V_ACT}"], "pk"); dm.append(pl2)
        if n == 24: dm += pc2
        if 25 <= n <= 27: dm += sum((fill(x_, 0) for x_ in [(0, 1), (2, 3, 4), (5, 6, 7)][n - 25]), [])
        if n >= NS - 3: dm += fill(2*(n - (NS - 3)) + 2, 1) + fill(2*(n - (NS - 3)) + 3, 1)
        pos = 1
        for e in dm:
            while sc.cost[pos] + sc.c(e) > 8 and pos < len(mf) - 1: pos += 1
            sc.put(pos, e)
            if getattr(e, "cost", 4) == 8: assert pos < lb - 1, (n, pos)
            if isinstance(e, str) and "m0," in e: pos += 1
        if n < 6:
            pos = max(pos, 44)
            for e in shuffle(n + 2):
                while sc.cost[pos] + 4 > 8 and pos < len(mf) - 1: pos += 1
                sc.put(pos, e)
        if n == 6:
            queue += [f"v_and_b32 v192, 15, v{V_LANE}", f"v_lshrrev_b32 v193, 4, v{V_LANE}", "v_lshlrev_b32 v193, 2, v193"]
            for r in range(4): queue += [f"v_add_u32 v194, {r}, v193", f"v_cmp_gt_u32 s[{S_MSK+2*r}:{S_MSK+2*r+1}], v194, v192"]
        if n == 8: queue += kv_epilogue(0)
        if n == 11: queue += kv_epilogue(1)
        if n == 15: queue = [lambda Kk: Kk.wait_vm(["b1"])] + queue; queue[1:1] = [x for fb in range(3) for r in range(2) for x in
                   (f"v_lshlrev_b32 v{BIAS+4*fb+2*r}, 16, v{B1R[fb]+r}", f"v_and_b32 v{BIAS+4*fb+2*r+1}, 0xffff0000, v{B1R[fb]+r}")]
        if n == 13: queue += kv_epilogue(2)
        if n == 16: queue += kv_epilogue(3)
        if n == 20: queue += h_epilogue()
        if n == 24: queue = q_pack(192) + queue
        if n == 25: queue = q_move(192, 0) + [f"v_mov_b32 v{192+i}, 0" for i in range(64)] + queue
        if n == 27: queue += [f"v_mov_b32 v{128+i}, 0" for i in range(64)] + [f"v_accvgpr_write_b32 a{A_L+i}, 0" for i in range(16)]
        pos = 10 if n in (16, 20, 24) else 0
        while queue and pos < len(mf):
            e = queue[0]
            if getattr(e, "store", False):
                if gpos + pos < last_st + PACE: pos += 1; continue
            if sc.cost[pos] + sc.c(e) <= 8:
                sc.put(pos, e); queue.pop(0)
                if getattr(e, "store", False): last_st = gpos + pos
            else: pos += 1
        gpos += len(mf)
        emit_slots(Kk, mf, sc.slots)
        STG = os.environ.get('STG')
        if STG is not None:
            if 0 <= n - int(STG) < 15: Kk.stamp(1 + n - int(STG), force=True)
            if STG == '99' and n < 3: Kk.stamp(13 + n, force=True)
        elif n in (3, 7, 11, 15, 19, 23, 27): Kk.stamp({3: 4, 7: 7, 11: 8, 15: 13, 19: 1, 23: 2, 27: 14}[n])
    print("mega proj leftover filler:", len(queue))
    em(Kk, queue)
    o("s_nop 7")
    em(Kk, q_pack(64) + q_move(64, 1))
    o("v_mov_b32 v56, 0x3f803f80")
    for r in range(4): o(f"v_accvgpr_write_b32 a{A_ONE+r}, v56")
    o(f"v_mov_b32 v{V_NEG}, 0xff800000")
    o(f"v_mov_b32 v15, v{V_SIG}"); o(f"v_mov_b32 v0, v{V_XNST}")
    o(f"s_lshl_b32 s{S_T}, s{S_G}, 14"); o(f"s_add_u32 s{S_T}, s{S_T}, {XOFF}"); o(f"v_add_u32 v{V_T0}, s{S_T}, v{V_L16}")
    o(f"s_cmp_eq_u32 s{S_G}, 0"); o(f"s_mov_b32 s{S_T+1}, 0x6000"); o(f"s_cselect_b32 s{S_T}, {XOFF + 15*1024}, s{S_T+1}"); o(f"v_add_u32 v{V_T1}, s{S_T}, v{V_L16}")
    o(f"s_cmp_lg_u32 s{S_ROLE}, 0"); o("s_cbranch_scc1 k2_nopub")
    for j in range(4):
        for ds in range(4):
            if j*4+ds < 15: o(f"ds_write_b128 v{V_T0}, {a(AQ(j, ds), 4)} offset:{(j*4+ds)*1024}")
            else: o(f"ds_write_b128 v{V_T1}, {a(AQ(j, ds), 4)}")
    Kk.label("k2_nopub")
    o("s_mov_b32 s50, s45")
    o(f"s_mov_b32 s{S_TGT}, 4"); o(f"s_mov_b32 s{S_FT}, {8*8192}"); o(f"s_mov_b32 s{S_PH}, 0"); o("s_mov_b32 s7, 0x4000"); o(f"s_mov_b32 s{S_NF}, 0")
    o("s_mov_b32 m0, s48")
    o(f"s_mov_b32 s48, s{S_WKB}")
    o(f"v_add_u32 v{V_KA}, 0x4000, v{V_L16}"); o(f"v_add_u32 v{V_VA}, 0x8000, v{V_L16}")
    o(f"v_lshlrev_b32 v{V_CNT}, 2, v{V_LANE}"); o(f"v_add_u32 v{V_CNT}, {CNTOFF}, v{V_CNT}"); o(f"v_mov_b32 v{V_ONE}, 1")
    o(f"s_cmp_eq_u32 s{S_ROLE}, 0"); o(f"s_cselect_b32 s{S_DST}, s{S_D4}, 0x7fffff00")
    if not os.environ.get("NOMPF"):
        o("s_load_dwordx2 s[28:29], s[0:1], 40"); o("s_load_dwordx2 s[32:33], s[0:1], 72")
        o(f"s_lshl_b32 s{S_T}, s2, 2"); o(f"s_add_u32 s{S_T}, s{S_T}, s{S_WAVE}")
        o(f"v_and_b32 v112, 31, v{V_LANE}"); o("v_lshlrev_b32 v112, 7, v112")
        o(f"s_lshl_b32 s36, s{S_T}, 12"); o(f"s_lshl_b32 s37, s{S_T}, 11")
        o(f"v_and_b32 v113, 15, v{V_LANE}"); o("v_lshlrev_b32 v113, 7, v113")
        o("s_waitcnt lgkmcnt(0)")
        o(f"s_mov_b32 s30, {SZ['wo']}"); o(f"s_mov_b32 s34, {SZ['w2']}")
        Kk.pro_extra = ["buffer_load_dword v110, v112, s[28:31], s36 offen", "buffer_load_dword v110, v113, s[32:35], s37 offen"]
    Kk.stamp(5)
    Kk.mega = True
    attention(Kk)
    Kk.stamp(10)
    from mega_p4 import p4
    p4(Kk, poll_stub)
    Kk.stamp(15)
    if os.environ.get("DBGOUT"):
        o("s_cmp_lg_u32 s2, 100"); o("s_cbranch_scc1 mg_nodbg"); o(f"s_cmp_lg_u32 s{S_WAVE}, 0"); o("s_cbranch_scc1 mg_nodbg")
        o("s_mov_b64 exec, 1")
        for k_, i in enumerate((11, 3, 4, 7, 8, 13, 1, 2, 14, 5, 9, 10, 6, 15)):
            o(f"s_sub_u32 s65, s{80+i}, s80"); o("v_mov_b32 v0, s65")
            o(f"buffer_store_dword v0, off, s[{S_DBG}:{S_DBG+3}], 0 offset:{4+4*k_}")
        Kk.label("mg_nodbg")
    else:
        Kk.stamp_flush(0, S_WAVE, S_WS)
    o("s_endpgm")
    emit_stubs(Kk)
    emit_pstubs(Kk)
    rare(Kk, 0)
    rare(Kk, 1)
    Kk.label("mg_exit")
    o("s_endpgm")
    kernel_desc(Kk, Kk.name, vgpr=512, accum=256)
    return Kk
```

```python
from att import *
def p4(Kk, poll_stub):
    o = Kk.op
    o("s_load_dwordx2 s[28:29], s[0:1], 0")
    o("s_load_dwordx2 s[30:31], s[0:1], 40")
    o("s_load_dwordx4 s[32:35], s[0:1], 72")
    o("s_and_b32 s41, s2, 7"); o("s_lshl_b32 s41, s41, 8")
    o("s_lshr_b32 s42, s2, 3"); o("s_and_b32 s42, s42, 3"); o("s_lshl_b32 s42, s42, 6"); o("s_add_u32 s41, s41, s42")
    o("s_lshr_b32 s42, s2, 5"); o("s_lshl_b32 s42, s42, 6")
    o("s_lshr_b32 s65, s41, 7"); o("s_sub_u32 s66, 15, s65"); o("s_min_u32 s66, s66, s65"); o("s_lshl_b32 s66, s66, 7"); o(f"s_add_u32 s66, s66, {HF_OFF}")
    o("v_and_b32 v17, 31, v1"); o("v_lshlrev_b32 v17, 2, v17")
    hl = f"buffer_load_dword v16, v17, s[{S_WS}:{S_WS+3}], s66 offen sc1"
    o("s_cmp_lg_u32 s40, 0"); o("s_cbranch_scc1 p4_nh0")
    o(hl)
    Kk.label("p4_nh0")
    o("s_lshl_b32 s65, s65, 8"); o(f"s_add_u32 s65, s65, {FLG_OFF}")
    o("v_lshrrev_b32 v48, 3, v1"); o("v_and_b32 v49, 7, v1"); o("v_bfe_u32 v50, v1, 4, 2"); o("v_lshlrev_b32 v50, 1, v50")
    o("v_xor_b32 v49, v49, v50"); o("v_lshlrev_b32 v48, 10, v48"); o("v_lshl_add_u32 v3, v49, 4, v48")
    for i in range(1, 4): o(f"v_add_u32 v{3+i}, {8192*i}, v3")
    o("v_lshrrev_b32 v48, 4, v1"); o("v_bfe_u32 v49, v1, 2, 2"); o("v_lshl_add_u32 v50, v48, 2, v49")
    o("v_bfe_u32 v51, v50, 1, 2")
    o("v_lshlrev_b32 v50, 7, v50"); o("v_and_b32 v52, 3, v1"); o("v_lshl_add_u32 v50, v52, 3, v50")
    o("s_lshl_b32 s47, s40, 14")
    o("v_add_u32 v50, s47, v50")
    o("v_mov_b32 v60, v10")
    for fb in range(4):
        o(f"v_xor_b32 v52, {fb}, v51"); o(f"v_lshl_add_u32 v{8+fb}, v52, 5, v50")
    for tb in range(4):
        if tb == 0: o("v_mov_b32 v12, v7")
        else: o(f"v_add_u32 v{12+tb}, {tb*NKS*1024}, v7")
    o("v_lshlrev_b32 v61, 2, v1")
    hc = ["v_cmp_eq_u32 vcc, 0, v16"]
    o("s_waitcnt vmcnt(0) lgkmcnt(0)")
    o("s_cmp_lg_u32 s40, 0"); o("s_cbranch_scc1 p4_nh1")
    o(hc[0]); o("s_nop 0")
    poll_stub(Kk, 16, hl, hc)(Kk)
    Kk.label("p4_nh1")
    o("s_barrier")
    o(f"s_cmp_eq_u32 s{S_ROLE}, 0"); o("s_cselect_b32 s67, s48, 0x7f000000")
    o(f"buffer_store_dword v60, v0, s[{S_WS}:{S_WS+3}], s67 offen sc1")
    Kk.srd(12, 32, SZ['w2'])
    Kk.srd(16, 28, SZ['x'])
    Kk.srd(20, 34, SZ['out'])
    o("s_lshl_b32 s52, s42, 1")
    o("s_lshr_b32 s53, s41, 4"); o(f"s_mul_i32 s53, s53, {NKS*1024}"); o(f"s_add_u32 s53, s53, {ACT_OFF}")
    o("s_lshl_b32 s54, s40, 20"); o("s_add_u32 s54, s54, s52")
    o("s_lshl_b32 s55, s40, 15"); o("s_add_u32 s55, s55, s53")
    o(f"s_mul_i32 s50, s40, {11*32768}"); o("s_add_u32 s50, s50, s52")
    o(f"s_mul_i32 s51, s40, {11*1024}"); o("s_add_u32 s51, s51, s53"); o(f"s_add_u32 s51, s51, {128*1024}")
    o("s_cmp_eq_u32 s40, 3"); o("s_cselect_b32 s56, 10, 43")
    TCH = not os.environ.get("NOTCH")
    LA = int(os.environ.get("LA", 8))
    Kk.srd(24, 30, SZ['wo'])
    o("s_lshr_b32 s68, s2, 5"); o("s_lshl_b32 s68, s68, 9")
    o("v_bfe_u32 v56, v1, 2, 2"); o(f"v_mul_u32_u24 v56, {NKS*1024}, v56"); o("v_and_b32 v57, 3, v1"); o("v_lshl_add_u32 v56, v57, 7, v56"); o("v_add_u32 v56, s68, v56")
    o("v_lshrrev_b32 v58, 4, v1"); o("v_lshl_add_u32 v58, v58, 12, v56")
    o("s_lshr_b32 s68, s2, 3"); o("s_and_b32 s68, s68, 3"); o("s_lshl_b32 s68, s68, 15")
    o("v_and_b32 v57, 31, v1"); o("v_lshlrev_b32 v57, 10, v57"); o("v_add_u32 v57, s68, v57")
    o("v_lshrrev_b32 v59, 5, v1"); o("v_lshl_add_u32 v59, v59, 17, v57")
    o("v_cmp_gt_u32 vcc, 48, v1"); o("v_mov_b32 v63, 0x7f000000"); o("s_nop 0"); o("v_cndmask_b32 v58, v63, v58, vcc")
    if TCH:
        o("buffer_load_dword v63, v59, s[12:15], s50 offen")
        o(f"buffer_load_dword v63, v58, s[{S_WS}:{S_WS+3}], s51 offen sc1")
        o("s_add_u32 s68, s50, 0x40000")
        o("buffer_load_dword v63, v57, s[12:15], s68 offen")
        o("buffer_load_dword v63, v59, s[24:27], s54 offen")
    o("s_add_u32 s70, s54, 0x40000")
    o("s_mov_b32 s71, s55")
    o("s_mov_b32 s69, 0")
    o("s_mov_b32 s57, 0")
    ACC = 64; ACTR = 128; WF = 16; U = 4
    cl = f"buffer_load_dword v62, v61, s[{S_WS}:{S_WS+3}], s65 offen sc1"
    cc = ["v_cmp_eq_u32 vcc, 0, v62"]
    def hook(Kk):
        l1 = Kk.newlabel("p4_h"); l2 = Kk.newlabel("p4_h"); l3 = Kk.newlabel("p4_h"); l4 = Kk.newlabel("p4_h")
        o("s_cmp_lg_u32 s69, 0"); o(f"s_cbranch_scc1 {l2}")
        o("s_cmp_eq_u32 s57, 3"); o(f"s_cbranch_scc1 {l1}")
        o(cc[0]); o("s_cmp_eq_u32 s57, 11"); o(f"s_cbranch_scc1 {l3}")
        o(f"s_cbranch_vccnz {l1}")
        o(f"s_branch {l4}")
        Kk.label(l3)
        poll_stub(Kk, 62, cl, cc)(Kk)
        Kk.label(l4)
        o("s_mov_b32 s69, 1")
        if TCH:
            o("v_lshrrev_b32 v58, 4, v1"); o("v_lshl_add_u32 v58, v58, 12, v56")
            o(f"buffer_load_dword v63, v58, s[{S_WS}:{S_WS+3}], s71 offen sc1")
            o("s_add_u32 s71, s71, 0x4000")
        o(f"s_branch {l2}_e")
        Kk.label(l1)
        o(cl)
        o(f"s_branch {l2}_e")
        Kk.label(l2)
        if TCH:
            o("s_sub_u32 s68, s71, s55"); o("s_cmp_ge_u32 s68, 0x8000"); o("s_cselect_b32 s68, 0x7f000000, s71")
            o(f"buffer_load_dword v63, v56, s[{S_WS}:{S_WS+3}], s68 offen sc1")
            o("s_add_u32 s71, s71, 0x1000")
        Kk.label(f"{l2}_e")
        if TCH:
            o("s_sub_u32 s68, s70, s54"); o("s_cmp_ge_u32 s68, 0x100000"); o("s_cselect_b32 s68, 0x7f000000, s70")
            o("buffer_load_dword v63, v57, s[24:27], s68 offen")
            o("s_add_u32 s70, s70, 0x20000")
    def load_step(slot, hk):
        out = []
        if hk: out.append(hook)
        out.append("s_cmp_eq_u32 s57, s56")
        out.append("s_cselect_b32 s59, 0x7f000000, s51")
        for tb in range(4):
            out.append(f"buffer_load_dwordx4 {v(ACTR+slot*16+tb*4,4)}, v{12+tb}, s[{S_WS}:{S_WS+3}], s59 offen sc1")
        for i in range(4):
            out.append(f"s_add_u32 m0, s47, {slot*4096 + i*1024}")
            out.append(f"buffer_load_dwordx4 v{3+i}, s[12:15], s50 offen lds")
        out += ["s_add_u32 s57, s57, 1", "s_add_u32 s50, s50, 32768", "s_add_u32 s51, s51, 1024",
                "s_cmp_eq_u32 s57, 11", "s_cselect_b32 s50, s54, s50", "s_cselect_b32 s51, s55, s51",
                "s_cselect_b32 s12, s30, s12", "s_cselect_b32 s13, s31, s13", f"s_cselect_b32 s14, {SZ['wo']}, s14",
                "s_cmp_ge_u32 s57, 43", "s_cselect_b32 s50, 0x7f000000, s50", "s_cselect_b32 s51, 0x7f000000, s51"]
        return out
    def ems(lst):
        prev = False
        for e in lst:
            if callable(e): e(Kk); continue
            if prev and e.startswith("buffer"): o("s_nop 0")
            o(e); prev = "m0," in e
    def trr(slot, buf):
        return [f"ds_read_b64_tr_b16 {v(WF+buf*16+fb*4+rd*2,2)}, v{8+fb} offset:{slot*4096+rd*2048}" for fb in range(4) for rd in range(2)]
    for st in range(3): ems(load_step(st, False))
    o("v_and_b32 v48, 15, v1"); o("v_lshrrev_b32 v49, 4, v1"); o("v_lshlrev_b32 v48, 10, v48"); o("v_lshl_add_u32 v2, v49, 3, v48")
    o("s_lshl_b32 s62, s40, 4"); o("s_add_u32 s62, s62, s41"); o("s_lshl_b32 s62, s62, 10"); o("s_add_u32 s62, s62, s52")
    for i in range(64): o(f"v_mov_b32 v{ACC+i}, 0")
    o("s_waitcnt vmcnt(16)")
    for e in trr(0, 0): o(e)
    o("s_mov_b32 s63, 0")
    Kk.label("p4_loop")
    for u in range(U):
        mf = []
        for fb in range(4):
            for tb in range(4):
                D = v(ACC + (fb*4+tb)*4, 4)
                mf.append(mfma(D, v(WF + (u % 2)*16 + fb*4, 4), v(ACTR + u*16 + tb*4, 4), D))
        slots = {}
        def put(i, e): slots.setdefault(i, []).append(e)
        put(-1, "s_waitcnt vmcnt(8) lgkmcnt(0)")
        for i, e in enumerate(trr((u + 1) % U, (u + 1) % 2)): put(i, e)
        ls = load_step((u + 3) % U, u == 0)
        k = 3 if u == 0 else 2
        for e in ls[:k]: put(0, e)
        for i, e in enumerate(ls[k:k+4]): put(1 + i, e)
        for k2 in range(4):
            put(5 + 2*k2, ls[k + 4 + 2*k2]); put(6 + 2*k2, ls[k + 5 + 2*k2])
        for e in ls[k+12:]: put(14, e)
        emit_slots(Kk, mf, slots)
    o("s_add_u32 s63, s63, 1")
    if STAMPS:
        o("s_cmp_lg_u32 s63, 3"); o("s_cbranch_scc1 p4_ns")
        Kk.stamp(6)
        Kk.label("p4_ns")
    o("s_cmp_lt_u32 s63, 11")
    o("s_cbranch_scc1 p4_loop")
    for fb in range(4):
        o(f"buffer_load_dwordx2 {v(48+2*fb,2)}, v2, s[16:19], s62 offen offset:{fb*32}")
    o("s_waitcnt vmcnt(4) lgkmcnt(0)")
    o("s_barrier")
    o("v_add_u32 v3, s47, v7")
    for blk in range(16):
        o(f"ds_write_b128 v3, {v(ACC+blk*4,4)} offset:{blk*1024}")
    o("s_waitcnt lgkmcnt(0)")
    o("s_barrier")
    o("s_lshl_b32 s64, s40, 10"); o("v_add_u32 v3, s64, v7")
    for src in range(4):
        for fb in range(4):
            o(f"ds_read_b128 {v(128+src*16+fb*4,4)}, v3 offset:{src*16384 + fb*4096}")
    o("s_waitcnt vmcnt(0)")
    for fb in range(4):
        for r in range(2):
            o(f"v_lshlrev_b32 v{64+fb*4+2*r}, 16, v{48+2*fb+r}")
            o(f"v_and_b32 v{64+fb*4+2*r+1}, 0xffff0000, v{48+2*fb+r}")
    for src in range(4):
        o(f"s_waitcnt lgkmcnt({12-4*src})")
        for i in range(16):
            o(f"v_add_f32 v{64+i}, v{64+i}, v{128+src*16+i}")
    for fb in range(4):
        o(f"v_cvt_pk_bf16_f32 v{48+2*fb}, v{64+fb*4}, v{64+fb*4+1}")
        o(f"v_cvt_pk_bf16_f32 v{49+2*fb}, v{64+fb*4+2}, v{64+fb*4+3}")
        o(f"buffer_store_dwordx2 {v(48+2*fb,2)}, v2, s[20:23], s62 offen offset:{fb*32}")
```

```python
from gen_common import *
from lsched import Item, schedule
import struct
def fbits(x): return struct.unpack("<I", struct.pack("<f", x))[0]
MARGIN = 32.0
V_LANE = 1; V_L16 = 7
V_KA = 2; V_VA = 3; V_FET = 4; V_FET2 = 5; V_T0 = 6
V_NEG = 8; V_CNT = 9; V_ONE = 10; V_FLG = 11; V_OR = 12
V_T1 = 14
V_S = 16; V_E = 48; V_P = 56; V_NM = 72; V_TMP = 88; V_E2 = 120; V_O = 128
A_K = 16; A_V = 80; A_L = 144; A_ONE = 160; A_Z = 164
def AQ(j, ds): return j * 64 + ds * 4
def AQP(j, ds): return j * 64 + 48 + ds * 4
S_WS = 8; S_WQ = 12; S_W1 = 16; S_B1 = 20; S_FS = 24
S_WAVE = 40; S_H = 41; S_P = 42; S_G = 43; S_ROLE = 44
S_TGT = 45; S_D4 = 46; S_FT = 47
S_STK = 51; S_STV = 52; S_END = 53; S_RET = 54; S_MSK = 56
S_CTX = 64; S_T = 65
S_DST = 72; S_NF = 73; S_PH = 74; S_CTXL = 75
XOFF = 0x20000; CNTOFF = 0x27f00
def T4(tau): return 4 * (tau + 2)

def S(j, mb): return V_S + (j * 2 + mb) * 4
def O(db, j): return V_O + (j * 8 + db) * 4
def E(j): return V_E if j % 2 == 0 else V_E2
def blk_mode(ttype, j, mb):
    if ttype == 'F': return 'n'
    d = 16 * (j - mb) + (0 if ttype == 'A' else -32)
    return 'n' if d > 0 else ('d' if d == 0 else 'a')
def qk(j, cinit=True):
    out = []
    for mb in range(2):
        for ds in range(4):
            D = v(S(j, mb), 4)
            C = D if ds else (v(V_NM + 4 * j, 4) if cinit else "0")
            out.append(mfma(D, a(A_K + (mb * 4 + ds) * 4, 4), a(AQ(j, ds), 4), C))
    return out
def pv(j, c0=False):
    out = []
    for db in range(8):
        D = v(O(db, j), 4)
        out.append(mfma(D, a(A_V + db * 4, 4), v(V_P + 4 * j, 4), "0" if c0 else D))
    L = a(A_L + 4 * j, 4)
    out.append(mfma(L, a(A_ONE, 4), v(V_P + 4 * j, 4), "0" if c0 else L))
    return out
def zero_mf(js):
    out = []
    for j in js:
        out += [mfma(v(O(db, j), 4), a(A_Z, 4), a(A_Z, 4), "0") for db in range(8)] + [mfma(a(A_L + 4 * j, 4), a(A_Z, 4), a(A_Z, 4), "0")]
    return out
def mask_op(ttype, j, i):
    md = blk_mode(ttype, j, i // 4); r = i % 4; x = S(j, i // 4) + r
    if md == 'd': return f"v_cndmask_b32 v{x}, v{x}, v{V_NEG}, s[{S_MSK+2*r}:{S_MSK+2*r+1}]"
    if md == 'a': return f"v_mov_b32 v{x}, v{V_NEG}"
    return None
def ex_op(j, i, e=None): return f"v_exp_f32 v{(E(j) if e is None else e)+i}, v{S(j, i//4) + i%4}"
def cv_op(j, i, e=None):
    e = E(j) if e is None else e
    return f"v_cvt_pk_bf16_f32 v{V_P+4*j+i}, v{e+2*i}, v{e+2*i+1}"
def or_ops(j):
    P = V_P + 4 * j; R = V_OR + j // 2
    if j % 2 == 0: return [f"v_or3_b32 v{R}, v{P}, v{P+1}, v{P+2}", f"v_or_b32 v{R}, v{R}, v{P+3}"]
    return [f"v_or3_b32 v{R}, v{R}, v{P}, v{P+1}", f"v_or3_b32 v{R}, v{R}, v{P+2}, v{P+3}"]
def kread(i, reg=V_KA): return f"ds_read_b128 {a(A_K+4*i,4)}, v{reg} offset:{i*1024}"
def vread(i, reg=V_VA): return f"ds_read_b128 {a(A_V+4*i,4)}, v{reg} offset:{8192+i*1024}"
def dma(i, vreg=V_FET): return f"buffer_load_dwordx4 v{vreg}, s[{S_FS}:{S_FS+3}], s{S_FT} offen offset:{i*1024} sc1 lds"

def stub_branch(Kk, kind):
    st = Kk.newlabel("k2_st"); bk = Kk.newlabel("k2_bk")
    Kk.stubs.append((st, bk, kind))
    def f(Kk, st=st, bk=bk):
        Kk.op(f"s_cbranch_vccnz {st}"); Kk.label(bk)
    return f
def emit_stubs(Kk):
    o = Kk.op
    for st, bk, kind in Kk.stubs:
        Kk.label(st)
        if isinstance(kind, tuple):
            o("s_mov_b32 s49, 0x100000")
            Kk.label(st + "_l")
            o(f"ds_read_b32 v{V_FLG}, v234 offset:{kind[0]}")
            o("s_sub_u32 s49, s49, 1")
            o(f"s_cbranch_scc1 {bk}")
            o("s_waitcnt lgkmcnt(0)")
            o(f"v_cmp_gt_u32 vcc, {kind[1]}, v{V_FLG}")
            o(f"s_cbranch_vccnz {st}_l")
        elif kind == 'spin' or kind == 'spin2':
            o("s_mov_b32 s49, 0x100000")
            Kk.label(st + "_l")
            o(f"ds_read_b32 v{V_FLG}, v{V_CNT if kind == 'spin' else 234}")
            o("s_sub_u32 s49, s49, 1")
            o(f"s_cbranch_scc1 {bk}")
            o("s_waitcnt lgkmcnt(0)")
            o(f"v_cmp_gt_u32 vcc, s{S_TGT if kind == 'spin' else S_D4}, v{V_FLG}")
            o(f"s_cbranch_vccnz {st}_l")
        else:
            o(f"s_call_b64 s[{S_RET}:{S_RET+1}], k2_rare{kind}")
        o(f"s_branch {bk}")

def arrive_g(Kk):
    o = Kk.op
    l1 = Kk.newlabel("k2_ag")
    o("s_waitcnt vmcnt(8) lgkmcnt(0)")
    o(f"s_cmp_lt_u32 s{S_FT}, s{S_FS+2}"); o(f"s_cbranch_scc1 {l1}")
    o("s_waitcnt vmcnt(0)")
    Kk.label(l1)
def duty_generic(Kk):
    o = Kk.op
    skip = Kk.newlabel("k2_dsk")
    o(f"s_cmp_ge_u32 s{S_FT}, s{S_FS+2}"); o(f"s_cbranch_scc1 {skip}")
    for i in range(4): o(dma(i))
    o("s_add_u32 m0, m0, 0x4000"); o("s_and_b32 m0, m0, 0x1ffff"); o(f"s_add_u32 s{S_FT}, s{S_FT}, 0x2000")
    o(f"s_cmp_lt_u32 s{S_TGT}, s{S_D4}"); o(f"s_cbranch_scc1 {skip}")
    for i in range(4): o(dma(i))
    o("s_add_u32 m0, m0, 0x4000"); o("s_and_b32 m0, m0, 0x1ffff"); o(f"s_add_u32 s{S_FT}, s{S_FT}, 0x2000")
    Kk.label(skip)
def arrive(): return ["s_waitcnt vmcnt(8) lgkmcnt(0)", f"ds_add_u32 v{V_CNT}, v{V_ONE}"]
def sync_check(Kk):
    b = stub_branch(Kk, 'spin')
    return [f"ds_read_b32 v{V_FLG}, v{V_CNT}", "s_waitcnt lgkmcnt(0)", f"v_cmp_gt_u32 vcc, s{S_TGT}, v{V_FLG}", b]
def step_update():
    return [f"s_add_i32 s{S_T+1}, s{S_TGT}, 8", f"s_cmp_ge_i32 s{S_T+1}, s{S_DST}", f"s_cselect_b32 s{S_STK}, 0x8000, s7",
            f"s_cmp_gt_i32 s{S_T+1}, s{S_DST}", f"s_cselect_b32 s{S_STV}, 0x8000, s7"]
def adv(reg, st): return [f"v_add_u32 v{reg}, {st}, v{reg}", f"v_and_b32 v{reg}, 0x1ffff, v{reg}"]
def em(Kk, lst):
    for e in lst:
        e(Kk) if callable(e) else Kk.op(e)

def period(Kk, nxt, dmode, cur='F', has_qk=True, loop=None):
    mf = []
    for st in range(4):
        if has_qk: mf += qk(st)
        if has_qk or st < 3: mf += pv((st + 1) % 4)
    n = len(mf)
    it = []
    def add(*a_, **k): it.append(Item(*a_, **k))
    W = 17 if has_qk else 9
    pv2 = 25 if has_qk else 9
    def softmax(j, tt, lo0, lo1, hi, prevcv):
        for i in range(8):
            lo = lo0 if i < 4 else lo1
            dep = []
            mk = mask_op(tt, j, i)
            if mk: add(f"mk{j}_{i}", mk, lo, hi); dep.append((f"mk{j}_{i}", 0))
            if prevcv: dep.append((f"cv{prevcv}_{i//2}", 0))
            if i: dep.append((f"ex{j}_{i-1}", 0))
            add(f"ex{j}_{i}", ex_op(j, i), lo, hi, after=dep)
        for i in range(4): add(f"cv{j}_{i}", cv_op(j, i), lo0, hi, after=[(f"ex{j}_{2*i+1}", 1), (f"ex{j}_{2*i}", 1)])
        o_ = or_ops(j)
        d0 = [(f"cv{j}_{i}", 0) for i in range(3 if j % 2 == 0 else 2)]
        if j == 1: d0.append(("or0_1", 0))
        add(f"or{j}_0", o_[0], lo0, hi, after=d0)
        add(f"or{j}_1", o_[1], lo0, hi, after=[(f"or{j}_0", 0), (f"cv{j}_3", 0), (f"cv{j}_2", 0)])
    def check(p, last, hi, extra=()):
        add(f"and{p}", f"v_and_b32 v{V_OR+p}, 0x40004000, v{V_OR+p}", -1, hi, after=[(last, 0)])
        add(f"cmp{p}", f"v_cmp_ne_u32 vcc, 0, v{V_OR+p}", -1, hi, after=[(f"and{p}", 0)] + list(extra))
        add(f"br{p}", stub_branch(Kk, p), -1, hi, after=[(f"cmp{p}", 1)], cost=4)
    softmax(3, cur, 0 if has_qk else -1, 0 if has_qk else -1, pv2 - 1, None)
    check(1, "or3_1", pv2 - 1)
    ar = arrive()
    if dmode == 'g': ar[0] = arrive_g
    if has_qk:
        add("wk0", "s_waitcnt lgkmcnt(4)", -1, -1, first=True)
        add("wk1", ar[0], 3, 3, cost=4)
    else:
        add("wk1", ar[0], 0, 0, cost=4)
    add("arr", ar[1], 0, 8, after=[("wk1", 0)])
    if dmode == 'g':
        add("duty", lambda Kk: duty_generic(Kk), 4, 30, after=[("wk1", 0)], cost=8)
    else:
        for i in range(4): add(f"da{i}", dma(i), 4, 30, after=[("wk1", 0)] + ([(f"da{i-1}", 0)] if i else []))
        add("m0a", "s_add_u32 m0, m0, 0x4000", 4, 40, after=[("da3", 0)])
        if dmode == 'd':
            for i in range(4): add(f"db{i}", dma(i, V_FET2), 4, 40, after=[("m0a", 1)] + ([(f"db{i-1}", 0)] if i else []))
            add("m0b", "s_add_u32 m0, m0, 0x4000", 4, 66, after=[("db3", 0)])
            add("m0c", "s_and_b32 m0, m0, 0x1ffff", 4, 66, after=[("m0b", 0)])
            add("ft", f"s_add_u32 s{S_FT}, s{S_FT}, 0x4000", 4, 66, after=[("db3", 0)])
        else:
            add("m0c", "s_and_b32 m0, m0, 0x1ffff", 4, 66, after=[("m0a", 0)])
            add("ft", f"s_add_u32 s{S_FT}, s{S_FT}, 0x2000", 4, 66, after=[("da3", 0)])
    sc = sync_check(Kk)
    if has_qk:
        softmax(0, nxt, 11, 15, 57, None)
        softmax(1, nxt, 28, 32, 57, "3")
        check(0, "or1_1", 58, extra=[("sbr", 0)])
        softmax(2, nxt, 45, 49, 67, "0")
        add("sfr", sc[0], 33, 37)
        add("sfw", sc[1], 36, 40, after=[("sfr", 3)])
        add("sfc", sc[2], 36, 40, after=[("sfw", 0), ("br1", 0)])
        add("sbr", sc[3], 36, 41, after=[("sfc", 1)], cost=4)
        vr = V_KA if dmode == 'd' else V_VA
        for i in range(8):
            add(f"vr{i}", vread(i, vr), 42 + i, 50 + i, after=[("sbr", 0)] + ([(f"vr{i-1}", 0)] if i else []))
            add(f"kr{i}", kread(i), 51 + i, 58 + i, after=[("vr7", 0)] + ([(f"kr{i-1}", 0)] if i else []))
        add("wv0", "WAITL vr3", 58, 58); add("wv1", "WAITL vr7", 62, 62)
        if dmode == 'd':
            ad = adv(V_KA, "0x8000")
            add("pa0", ad[0], 58, 67, after=[("kr7", 0)]); add("pa1", ad[1], 58, 67, after=[("pa0", 0)])
        else:
            su = step_update()
            add("su0", su[0], 44, 64)
            add("su2", lambda Kk: em(Kk, su[1:3]), 44, 64, after=[("su0", 0)], cost=8)
            add("su4", lambda Kk: em(Kk, su[3:5]), 44, 64, after=[("su2", 0)], cost=8)
            ad = adv(V_KA, f"s{S_STK}") ; add("pa0", ad[0], 58, 67, after=[("kr7", 0), ("su4", 0)]); add("pa1", ad[1], 58, 67, after=[("pa0", 0)])
            ad = adv(V_VA, f"s{S_STV}") ; add("pb0", ad[0], 50, 67, after=[("vr7", 0), ("su4", 0)]); add("pb1", ad[1], 50, 67, after=[("pb0", 0)])
        tdeps = [("sfc", 0)] + ([("su0", 0)] if dmode != 'd' else []) + ([("duty", 0)] if dmode == 'g' else [])
        add("tgt", f"s_add_u32 s{S_TGT}, s{S_TGT}, 4", 42, 67, after=tdeps + [("sbr", 0)] + ([("su4", 0)] if dmode != 'd' else []))
        if loop:
            add("lc", f"s_cmp_lt_u32 s{S_TGT}, s{loop[0]}", 66, 67, after=[("tgt", 0), ("m0c", 0), ("ft", 0)])
            add("lb", f"s_cbranch_scc1 {loop[1]}", 67, 67, after=[("lc", 0), ("pa1", 0), ("or2_1", 0)] + ([("pb1", 0)] if dmode != 'd' else []))
    else:
        add("sfr", sc[0], 16, 20); add("sfw", sc[1], 20, 24, after=[("sfr", 3)]); add("sfc", sc[2], 20, 24, after=[("sfw", 0), ("br1", 0)])
        add("sbr", sc[3], 20, 25, after=[("sfc", 1)], cost=4)
        add("tgt", f"s_add_u32 s{S_TGT}, s{S_TGT}, 4", 20, 26, after=[("sbr", 0), ("duty", 0)])
        for i_, x_ in enumerate(getattr(Kk, "drn_extra", [])): add(f"dx{i_}", x_, 10, 26, after=[("duty", 0)])
    slots = schedule(n, it, verbose=True)
    seq = []
    for g in range(-1, n): seq += slots[g]
    lds = []
    for x in seq:
        if isinstance(x.txt, str) and x.txt.startswith("WAITL"):
            tgt = x.txt.split()[1]
            k = len(lds) - 1 - lds.index(tgt)
            x.txt = f"s_waitcnt lgkmcnt({min(k, 15)})"
        elif isinstance(x.txt, str) and x.txt.startswith("ds_"): lds.append(x.name)
    X = os.environ.get("XP", "")
    def keep(e):
        if not X or dmode == 'g' or callable(e): return True
        if 'c' in X and e.startswith(("v_and_b32 v1", "v_cmp_ne", "v_or")): return False
        if 'm' in X and e.startswith("buffer_load"): return False
        if 'd' in X and e.startswith("ds_read_b128"): return False
        return True
    emit_slots(Kk, mf, {g: [x.txt for x in slots[g] if keep(x.txt)] for g in slots})

def rowmax(Kk, j, dst, tmp):
    o = Kk.op
    s0, s1 = S(j, 0), S(j, 1)
    o(f"v_max3_f32 v{dst}, v{s0}, v{s0+1}, v{s0+2}")
    o(f"v_max3_f32 v{tmp}, v{s0+3}, v{s1}, v{s1+1}")
    o(f"v_max3_f32 v{dst}, v{dst}, v{s1+2}, v{s1+3}")
    o(f"v_max_f32 v{dst}, v{dst}, v{tmp}")
    o(f"v_mov_b32 v{tmp}, v{dst}")
    o("s_nop 1")
    o(f"v_permlane16_swap_b32 v{dst}, v{tmp}")
    o(f"v_max_f32 v{dst}, v{dst}, v{tmp}")
    o(f"v_mov_b32 v{tmp}, v{dst}")
    o("s_nop 1")
    o(f"v_permlane32_swap_b32 v{dst}, v{tmp}")
    o(f"v_max_f32 v{dst}, v{dst}, v{tmp}")
def softmax_plain(Kk, j, e=None):
    for i in range(8): Kk.op(ex_op(j, i, e))
    Kk.op("s_nop 0")
    for i in range(4): Kk.op(cv_op(j, i, e))
def rare(Kk, pair):
    o = Kk.op
    Kk.label(f"k2_rare{pair}")
    o("s_nop 7"); o("s_nop 7")
    T, U, F = V_TMP, V_TMP + 1, V_TMP + 2
    for j in (2 * pair, 2 * pair + 1):
        rowmax(Kk, j, T, U)
        o(f"v_add_f32 v{T}, {hex(fbits(MARGIN))}, v{T}")
        o(f"v_max_f32 v{T}, 0, v{T}")
        o(f"v_sub_f32 v{U}, 0, v{T}")
        o(f"v_exp_f32 v{F}, v{U}")
        for r in range(4): o(f"v_sub_f32 v{V_NM+4*j+r}, v{V_NM+4*j+r}, v{T}")
        for i in range(8): o(f"v_sub_f32 v{S(j, i//4)+i%4}, v{S(j, i//4)+i%4}, v{T}")
        for db in range(8):
            for r in range(4): o(f"v_mul_f32 v{O(db,j)+r}, v{O(db,j)+r}, v{F}")
        for r in range(4):
            o(f"v_accvgpr_read_b32 v{U}, a{A_L+4*j+r}")
            o(f"v_mul_f32 v{U}, v{U}, v{F}")
            o(f"v_accvgpr_write_b32 a{A_L+4*j+r}, v{U}")
        softmax_plain(Kk, j, V_TMP + 8)
    o("s_nop 1")
    o(f"s_setpc_b64 s[{S_RET}:{S_RET+1}]")

def prologue(Kk, ttype, first=False):
    o = Kk.op
    mf = []
    for j in range(4): mf += qk(j, cinit=False)
    sl = {g: [] for g in range(-1, 32)}
    sl[-1] += [arrive_g, arrive()[1]]
    mega = getattr(Kk, "mega", False)
    if first and mega:
        sl[-1][0] = "s_waitcnt vmcnt(0) lgkmcnt(0)"
        sl[21].append(f"buffer_store_dword v{V_ONE}, v15, s[{S_WS}:{S_WS+3}], s50 offen sc1")
        for i_, x_ in enumerate(getattr(Kk, "pro_extra", [])): sl[22 + i_].append(x_)
    if not first: sl[0].append(lambda Kk: duty_generic(Kk))
    sc = sync_check(Kk)
    sl[14].append(sc[0]); sl[18] += sc[1:3]; sl[19] += sc[3:]
    for i in range(8): sl[20 + i // 2].append(vread(i))
    for i in range(8): sl[24 + i].append(kread(i))
    sl[31] += step_update() + adv(V_KA, f"s{S_STK}") + adv(V_VA, f"s{S_STV}") + [f"s_add_u32 s{S_TGT}, s{S_TGT}, 4"]
    emit_slots(Kk, mf, sl)
    T, U = V_TMP, V_TMP + 1
    B = K("tmp"); ob = B.op
    for j in range(4):
        for i in range(8):
            mk = mask_op(ttype, j, i)
            if mk: ob(mk)
        rowmax(B, j, T, U)
        ob(f"v_max_f32 v{T}, 0xf149f2ca, v{T}")
        ob(f"v_add_f32 v{T}, {hex(fbits(MARGIN))}, v{T}")
        for r in range(4): ob(f"v_sub_f32 v{V_NM+4*j+r}, 0, v{T}")
        for i in range(8): ob(f"v_sub_f32 v{S(j, i//4)+i%4}, v{S(j, i//4)+i%4}, v{T}")
        if j < 3: softmax_plain(B, j)
        if j == 1:
            ob("s_waitcnt lgkmcnt(8)")
            B.lines.append("PV0")
    zm = zero_mf((1, 2, 3)); p0 = pv(0, c0=True); live = zm
    cnt = 0
    for ln in B.lines:
        if ln == "PV0": live = p0 + zm; zm = live; continue
        tx = ln.strip()
        if tx == "s_nop 1" and len(zm) >= 2: o(zm.pop(0)); o(zm.pop(0)); cnt = 0; continue
        if tx == "s_nop 0" and zm: o(zm.pop(0)); cnt = 0; continue
        o(tx); cnt += 1
        if cnt >= 5 and zm: o(zm.pop(0)); cnt = 0
    for x in zm: o(x)
    o(f"v_mov_b32 v{V_OR+1}, 0")
    if first:
        sk = Kk.newlabel("k2_nq")
        o(f"s_cmp_eq_u32 s{S_ROLE}, 0"); o(f"s_cbranch_scc1 {sk}")
        for j in range(4):
            for ds in range(4):
                if j * 4 + ds < 15: o(f"ds_read_b128 {a(AQP(j, ds), 4)}, v{V_T0} offset:{(j*4+ds)*1024}")
                else: o(f"ds_read_b128 {a(AQP(j, ds), 4)}, v{V_T1}")
        o("s_waitcnt lgkmcnt(0)")
        Kk.label(sk)

def idle(Kk, tail=False):
    if tail: em(Kk, ["s_waitcnt lgkmcnt(0)", arrive()[1]])
    else:
        em(Kk, [arrive_g, arrive()[1]])
        duty_generic(Kk)
    em(Kk, sync_check(Kk))
    Kk.op(f"s_add_u32 s{S_TGT}, s{S_TGT}, 4")

def fin(Kk):
    o = Kk.op
    em(Kk, [arrive_g, arrive()[1]])
    duty_generic(Kk)
    for j in range(4):
        R = V_TMP
        o(f"v_accvgpr_read_b32 v{R}, a{A_L+4*j}")
        o(f"s_add_u32 s{S_T+2}, s{S_CTX}, {j*NKS*1024}")
        o(f"v_rcp_f32 v{R}, v{R}")
        o("s_nop 0")
        for dp in range(4):
            Pk = V_TMP + 4 + (dp % 2) * 4 + (j % 2) * 8
            for hh in range(2):
                b = O(2 * dp + hh, j)
                for r in range(4): o(f"v_mul_f32 v{b+r}, v{b+r}, v{R}")
                o(f"v_cvt_pk_bf16_f32 v{Pk+2*hh}, v{b}, v{b+1}")
                o(f"v_cvt_pk_bf16_f32 v{Pk+2*hh+1}, v{b+2}, v{b+3}")
            o(f"buffer_store_dwordx4 {v(Pk,4)}, v{V_L16}, s[{S_WS}:{S_WS+3}], s{S_T+2} offen offset:{dp*1024} sc1")

def merge(Kk):
    o = Kk.op
    Kk.p4_pre0(Kk)
    o(f"s_mul_i32 s{S_T}, s{S_WAVE}, 0x5000"); o(f"s_xor_b32 s{S_T+1}, s{S_WAVE}, 2"); o(f"s_mul_i32 s{S_T+1}, s{S_T+1}, 0x5000")
    o(f"v_add_u32 v{V_KA}, s{S_T}, v{V_L16}"); o(f"v_add_u32 v{V_VA}, s{S_T+1}, v{V_L16}")
    o(f"s_cmp_eq_u32 s{S_ROLE}, 0"); o(f"s_cselect_b32 s{S_T}, 0x7f000000, s48"); o(f"s_cselect_b32 s48, s48, s36")
    o(f"v_mov_b32 v{V_FLG}, 1")
    ML = V_TMP
    for j in range(4):
        o(f"v_mov_b32 v{ML+j}, v{V_NM+4*j}")
    for j in range(4):
        o(f"v_accvgpr_read_b32 v{ML+4+j}, a{A_L+4*j}")
    o(f"buffer_store_dwordx2 v[{V_ONE}:{V_ONE+1}], v0, s[{S_WS}:{S_WS+3}], s{S_T} offen sc1")
    o("s_waitcnt lgkmcnt(0)")
    o(f"ds_write_b128 v{V_KA}, {v(ML,4)} offset:16384")
    o(f"ds_write_b128 v{V_KA}, {v(ML+4,4)} offset:17408")
    o(f"s_cmp_eq_u32 s{S_ROLE}, 0")
    o("s_cbranch_scc0 k2_mg_h")
    def send(lo):
        pre = K("tmp"); pre.stubs = Kk.stubs; pre.pstubs = Kk.pstubs; pre._lab = Kk._lab + 1000 * (1 + lo)
        Kk.p4_pre(pre)
        pl = list(pre.lines)
        per = (len(pl) + 15) // 16
        for j in range(4):
            for d in range(4):
                o(f"ds_write_b128 v{V_KA}, {v(O(lo+d, j),4)} offset:{(j*4+d)*1024}")
                for x in pl[:per]: Kk.lines.append(x)
                pl = pl[per:]
        Kk.p4_pre2(Kk)
    def combine(keep):
        o("s_waitcnt lgkmcnt(0)")
        o("s_barrier")
        PM = V_TMP + 8
        o(f"ds_read_b128 {v(PM,4)}, v{V_VA} offset:16384")
        o(f"ds_read_b128 {v(PM+4,4)}, v{V_VA} offset:17408")
        other = 4 - keep
        for j in range(4):
            for d in range(4): o(f"ds_read_b128 {v(O(other+d, j),4)}, v{V_VA} offset:{(j*4+d)*1024}")
        o("s_waitcnt lgkmcnt(14)")
        FA, FB = V_TMP + 16, V_TMP + 20
        for j in range(4):
            t = V_TMP + 24
            o(f"v_min_f32 v{t}, v{ML+j}, v{PM+j}")
            o(f"v_sub_f32 v{FA+j}, v{t}, v{ML+j}")
            o(f"v_sub_f32 v{FB+j}, v{t}, v{PM+j}")
            o(f"v_exp_f32 v{FA+j}, v{FA+j}")
            o(f"v_exp_f32 v{FB+j}, v{FB+j}")
            o("s_nop 0")
            o(f"v_mul_f32 v{t}, v{ML+4+j}, v{FA+j}")
            o(f"v_fmac_f32 v{t}, v{PM+4+j}, v{FB+j}")
            o(f"v_rcp_f32 v{t}, v{t}")
            o("s_nop 0")
            o(f"v_mul_f32 v{FA+j}, v{FA+j}, v{t}")
            o(f"v_mul_f32 v{FB+j}, v{FB+j}, v{t}")
        for j in range(4):
            o(f"s_waitcnt lgkmcnt({12-4*j})")
            o(f"s_add_u32 s{S_T+2}, s{S_CTX}, {j*NKS*1024 + (keep//2)*1024}")
            for dp in range(2):
                Pk = V_TMP + 28 + (dp % 2) * 4
                for hh in range(2):
                    b = O(keep + 2*dp + hh, j); c = O(other + 2*dp + hh, j)
                    for r in range(4):
                        o(f"v_mul_f32 v{b+r}, v{b+r}, v{FA+j}")
                        o(f"v_fmac_f32 v{b+r}, v{c+r}, v{FB+j}")
                    o(f"v_cvt_pk_bf16_f32 v{Pk+2*hh}, v{b}, v{b+1}")
                    o(f"v_cvt_pk_bf16_f32 v{Pk+2*hh+1}, v{b+2}, v{b+3}")
                o(f"buffer_store_dwordx4 {v(Pk,4)}, v{V_L16}, s[{S_WS}:{S_WS+3}], s{S_T+2} offen offset:{dp*1024} sc1")
                o("s_nop 0")
    send(4); combine(0)
    o("s_branch k2_done")
    Kk.label("k2_mg_h")
    send(0); combine(4)

def attention(Kk):
    o = Kk.op
    o(f"s_lshl_b32 s{S_T}, s{S_P}, 2"); o(f"s_add_u32 s{S_T}, s{S_T}, s{S_WAVE}"); o(f"s_cmp_eq_u32 s{S_T}, 2")
    o("s_cbranch_scc1 k2_proA")
    prologue(Kk, 'F', first=True)
    if not getattr(Kk, 'mega', False): Kk.stamp(6)
    o(f"s_lshl_b32 s{S_T+1}, s{S_G}, 2"); o(f"s_add_u32 s{S_NF}, s{S_T+1}, {T4(32)}")
    o(f"s_lshl_b32 s{S_T}, s{S_P}, 1"); o(f"s_add_u32 s{S_T}, s{S_T}, s{S_G}"); o(f"s_cmp_eq_u32 s{S_T}, 14"); o(f"s_cselect_b32 s{S_NF}, {T4(31)}, s{S_NF}")
    o(f"s_lshl_b32 s{S_T}, s{S_G}, 3"); o(f"s_add_u32 s{S_T}, s{S_T}, s{S_D4}"); o(f"s_sub_u32 s{S_T}, s{S_T}, 28")
    o(f"s_cmp_eq_u32 s{S_ROLE}, 0"); o(f"s_cselect_b32 s{S_NF}, s{S_NF}, s{S_T}")
    o(f"s_min_u32 s{S_END}, s{S_NF}, s{S_D4}")
    o(f"s_cmp_ge_u32 s{S_TGT}, s{S_END}"); o("s_cbranch_scc1 k2_sdone")
    o(".p2align 3")
    Kk.label("k2_sloop")
    period(Kk, 'F', 's', loop=(S_END, "k2_sloop"))
    Kk.label("k2_sdone")
    if not getattr(Kk, 'mega', False): Kk.stamp(11)
    Kk.label("k2_dentry")
    o(f"s_cmp_ge_u32 s{S_TGT}, s{S_NF}"); o("s_cbranch_scc1 k2_ddone")
    o(".p2align 3")
    Kk.label("k2_dloop")
    period(Kk, 'F', 'd', loop=(S_NF, "k2_dloop"))
    o(f"v_mov_b32 v{V_VA}, v{V_KA}")
    Kk.label("k2_ddone")
    if not getattr(Kk, 'mega', False): Kk.stamp(12)
    o(f"s_cmp_eq_u32 s{S_PH}, 1"); o("s_cbranch_scc1 k2_perB")
    period(Kk, 'A', 'g')
    o(f"s_cmp_eq_u32 s{S_NF}, {T4(31)}"); o("s_cbranch_scc1 k2_perB")
    o(f"s_cmp_eq_u32 s{S_ROLE}, 1"); o("s_cbranch_scc1 k2_perB")
    period(Kk, None, 'g', cur='A', has_qk=False)
    o("s_branch k2_tail")
    Kk.label("k2_proA")
    prologue(Kk, 'A', first=True)
    Kk.label("k2_perB")
    period(Kk, 'B', 'g')
    Kk.label("k2_drnB")
    period(Kk, None, 'g', cur='B', has_qk=False)
    o(f"s_cmp_eq_u32 s{S_ROLE}, 0"); o("s_cbranch_scc1 k2_tail")
    o(f"s_cmp_eq_u32 s{S_PH}, 1"); o("s_cbranch_scc1 k2_tail")
    Kk.stamp(7)
    fin(Kk)
    for j in range(4):
        for ds in range(4):
            for r in range(4): o(f"v_accvgpr_mov_b32 a{AQ(j, ds)+r}, a{AQP(j, ds)+r}")
    for j in range(4):
        for r in range(4): o(f"v_mov_b32 v{V_NM+4*j+r}, 0x7149f2ca")
    em(Kk, sync_check(Kk))
    o(f"s_add_u32 s{S_TGT}, s{S_TGT}, 4")
    Kk.stamp(8)
    o(f"s_mov_b32 s{S_PH}, 1"); o(f"s_mov_b32 s{S_CTX}, s{S_CTXL}")
    Kk.label("k2_hidle")
    o(f"s_add_u32 s{S_T}, s{S_TGT}, 4"); o(f"s_cmp_ge_u32 s{S_T}, s{S_D4}"); o("s_cbranch_scc1 k2_hset")
    idle(Kk)
    o("s_branch k2_hidle")
    Kk.label("k2_hset")
    o(f"s_lshl_b32 s{S_T}, s{S_P}, 1"); o(f"s_add_u32 s{S_T}, s{S_T}, s{S_G}"); o(f"s_cmp_eq_u32 s{S_T}, 14"); o("s_cbranch_scc0 k2_hgo")
    for x in zero_mf((0, 1, 2, 3)): o(x)
    o("s_waitcnt vmcnt(0)")
    o("s_branch k2_tail")
    Kk.label("k2_hgo")
    o(f"s_lshl_b32 s{S_T}, s{S_D4}, 12"); o(f"s_add_u32 s{S_T}, s{S_T}, 0x1c000"); o(f"s_and_b32 s{S_T}, s{S_T}, 0x1ffff")
    o(f"v_add_u32 v{V_KA}, s{S_T}, v{V_L16}")
    for i in range(8): o(kread(i))
    em(Kk, adv(V_KA, "0x8000")); o(f"v_mov_b32 v{V_VA}, v{V_KA}")
    o(f"s_mov_b32 s{S_DST}, -1000")
    o(f"s_lshl_b32 s{S_T+1}, s{S_G}, 2"); o(f"s_add_u32 s{S_NF}, s{S_T+1}, {T4(32)}")
    o(f"s_cmp_eq_u32 s{S_P}, 7"); o("s_cbranch_scc1 k2_proB")
    prologue(Kk, 'F')
    o("s_branch k2_dentry")
    Kk.label("k2_proB")
    prologue(Kk, 'B')
    o("s_branch k2_drnB")
    Kk.label("k2_tail")
    o(f"s_cmp_gt_u32 s{S_TGT}, {T4(34)}"); o("s_cbranch_scc1 k2_merge")
    idle(Kk, tail=True)
    o("s_branch k2_tail")
    Kk.label("k2_merge")
    Kk.stamp(9)
    merge(Kk)
    Kk.label("k2_done")
```

```python
from asmlib import *
import re

XN_OFF  = 0
KF_OFF  = 2 << 20
VF_OFF  = 18 << 20
ACT_OFF = 34 << 20
NKS     = 171
ACT_BYTES = 128 * NKS * 1024
FLG_OFF = ACT_OFF + ACT_BYTES
KVF_OFF = FLG_OFF + 8192
HF_OFF = KVF_OFF + 4096
EXF_OFF = HF_OFF + 1024
EX_OFF = EXF_OFF + 32768
WS_SIZE = EX_OFF + (16 << 20)
KA = dict(x=0, c=8, wq=16, wuk=24, wuv=32, wo=40, bx=48, w1=56, b1=64, w2=72, out=80, dbg=88, ws=96)
SZ = dict(x=2097152, c=2097152, wq=4194304, wuk=4194304, wuv=4194304, wo=4194304, w1=512*1376*2, b1=2752, w2=1376*512*2, out=2097152, ws=WS_SIZE, dbg=256)

STAMP_OFF = 96 << 20
import os
STAMPS = bool(os.environ.get("STAMPS"))
class K(Asm):
    def __init__(self, name):
        super().__init__()
        self.name = name
        self.vm = []
        self.lg = []
        self.stubs = []
    def stamp(self, idx, force=False):
        if not STAMPS: return
        if os.environ.get("STG") is not None and idx != 0 and not force: return
        self.op("s_memtime s[100:101]" if os.environ.get("STAMPCLK") else "s_memrealtime s[100:101]")
        self.op("s_waitcnt lgkmcnt(0)")
        self.op(f"s_mov_b32 s{80+idx}, s100")
    def stamp_flush(self, kidx, wave_s, wsptr_s, n=16):
        if not STAMPS: return
        o = self.op
        o(f"s_mov_b32 s100, s{wsptr_s}"); o(f"s_mov_b32 s101, s{wsptr_s+1}")
        o(f"s_lshl_b32 s65, s2, 2"); o(f"s_add_u32 s65, s65, s{wave_s}"); o("s_lshl_b32 s65, s65, 6")
        o(f"s_add_u32 s65, s65, {STAMP_OFF + kidx*65536*2}")
        o("s_mov_b64 exec, 1")
        for i in range(n):
            o(f"v_mov_b32 v0, s{80+i}"); o(f"v_mov_b32 v1, s65")
            o(f"global_store_dword v1, v0, s[100:101] offset:{i*4}")
        o("s_mov_b64 exec, -1")
    def vmem(self, txt, tag=None):
        self.op(txt); self.vm.append(tag)
    def vm_after(self, tag):
        idx = max(i for i, t in enumerate(self.vm) if t == tag)
        return len(self.vm) - 1 - idx
    def wait_vm(self, tags, lgkm=None):
        n = min(self.vm_after(t) for t in tags)
        n = min(n, 63)
        self.op(f"s_waitcnt vmcnt({n})" + (f" lgkmcnt({lgkm})" if lgkm is not None else ""))
    def lds(self, txt, tag=None):
        self.op(txt); self.lg.append(tag)
    def lg_n(self, tags):
        n = 15
        for t in tags:
            idx = [i for i, x in enumerate(self.lg) if x == t]
            assert idx, t
            n = min(n, len(self.lg) - 1 - max(idx))
        return n
    def wait_lg(self, tags):
        self.op(f"s_waitcnt lgkmcnt({self.lg_n(tags)})")
    def srd(self, d, ptr_s, size):
        self.op(f"s_mov_b32 s{d}, s{ptr_s}")
        self.op(f"s_mov_b32 s{d+1}, s{ptr_s+1}")
        self.op(f"s_mov_b32 s{d+2}, {size}")
        self.op(f"s_mov_b32 s{d+3}, 0x20000")

def mfma(d, a_, b_, c):
    return f"v_mfma_f32_16x16x32_bf16 {d}, {a_}, {b_}, {c}"

def emit_slots(Kk, mf, slots):
    def em(e):
        if callable(e): e(Kk)
        else: Kk.op(e)
    for e in slots.get(-1, []): em(e)
    for i, m in enumerate(mf):
        em(m)
        for e in slots.get(i, []): em(e)

def code_prefetch(Kk, end_label, vtmp, stmp, nbytes):
    o = Kk.op
    o(f"s_getpc_b64 s[{stmp}:{stmp+1}]")
    lab = Kk.newlabel(Kk.name + "_pc")
    Kk.label(lab)
    o(f"v_lshlrev_b32 v{vtmp}, 6, v0")
    n = (nbytes + 16383) // 16384
    for i in range(n):
        if i:
            o(f"v_add_u32 v{vtmp}, 0x4000, v{vtmp}")
        o(f"v_min_u32 v{vtmp+1}, {end_label}-{lab}, v{vtmp}")
        Kk.vmem(f"global_load_dword v{vtmp+2}, v{vtmp+1}, s[{stmp}:{stmp+1}]", "pf")
```

```python
from att import *
from gen_k1 import ln_rows
LOG2E = 1.4426950408889634
KSCALE = 0x3e0293ee
S_XN = 3; S_WQB = 4; S_W1B = 5; S_LDSW = 6
S_C = 28; S_WUK = 32; S_WUV = 36; S_DBG = 96
S_KST = 50; S_VST = 51; S_STT = 52; S_WKB = 53; S_AO = 56
VQ, VH, TR = 48, 52, 8
V_ACT = 3; V_SIG = 6; V_SHW = 56; V_SHR = 58; V_XNST = 60
WF = 16; BIAS = 176
SC1 = " sc1"
KVSC = os.environ.get("KVSC", " sc1")
if KVSC == "none": KVSC = ""

class Sched:
    def __init__(self, n): self.n = n; self.slots = {i: [] for i in range(-1, n)}; self.cost = {i: 0 for i in range(-1, n)}
    def c(self, e):
        if callable(e): return getattr(e, "cost", 4)
        return 8 if e.startswith(("v_exp", "v_rcp")) else 4
    def put(self, i, e): self.slots[i].append(e); self.cost[i] += self.c(e)

def poll_stub(Kk, reg, load_txt, cmp_ops):
    st = Kk.newlabel("mg_ps"); bk = Kk.newlabel("mg_pb")
    Kk.pstubs.append((st, bk, load_txt, cmp_ops))
    def f(Kk):
        Kk.op(f"s_cbranch_vccnz {st}"); Kk.label(bk)
    return f
def emit_pstubs(Kk):
    o = Kk.op
    for st, bk, ld, cmp_ops in Kk.pstubs:
        Kk.label(st)
        o("s_mov_b32 s49, 0x4000")
        Kk.label(st + "_l")
        o("s_sleep 12")
        o(ld)
        o("s_sub_u32 s49, s49, 1")
        o("s_waitcnt vmcnt(0)")
        o(f"s_cbranch_scc1 {bk}")
        for c in cmp_ops: o(c)
        o("s_nop 0")
        o(f"s_cbranch_vccnz {st}_l")
        o(f"s_branch {bk}")

def gen_mega(name):
    Kk = K(name)
    Kk.pstubs = []
    o = Kk.op
    kernel_header(Kk, Kk.name)
    o("s_cmp_ge_u32 s2, 256")
    o("s_cbranch_scc1 mg_exit")
    if STAMPS:
        for i in range(16): o(f"s_mov_b32 s{80+i}, 0")
    Kk.stamp(0)
    o("s_load_dwordx16 s[64:79], s[0:1], 0")
    o("s_load_dwordx2 s[54:55], s[0:1], 64")
    o("s_load_dwordx4 s[56:59], s[0:1], 88")
    o(f"v_and_b32 v{V_LANE}, 63, v0")
    o("v_lshrrev_b32 v62, 6, v0")
    o(f"v_lshlrev_b32 v{V_L16}, 4, v{V_LANE}")
    o(f"v_readfirstlane_b32 s{S_WAVE}, v62")
    o(f"s_and_b32 s{S_H}, s2, 7"); o(f"s_lshl_b32 s{S_H}, s{S_H}, 2")
    o(f"s_lshr_b32 s3, s2, 3"); o(f"s_and_b32 s3, s3, 3"); o(f"s_add_u32 s{S_H}, s{S_H}, s3")
    o(f"s_lshr_b32 s{S_P}, s2, 5")
    o(f"s_and_b32 s{S_G}, s{S_WAVE}, 1"); o(f"s_lshr_b32 s{S_ROLE}, s{S_WAVE}, 1")
    o(f"v_lshrrev_b32 v61, 3, v{V_LANE}"); o(f"v_and_b32 v62, 7, v{V_LANE}")
    o(f"s_lshl_b32 s3, s{S_WAVE}, 15"); o("s_mov_b32 s7, s3")
    o(f"v_lshrrev_b32 v63, 4, v{V_LANE}"); o("v_xor_b32 v16, v62, v63")
    o("v_lshlrev_b32 v17, 10, v61")
    o(f"v_lshl_add_u32 v{V_SHW}, v16, 4, v17"); o(f"v_xor_b32 v{V_SHW+1}, 64, v{V_SHW}")
    o(f"v_and_b32 v16, 15, v{V_LANE}"); o("v_lshrrev_b32 v17, 1, v16"); o("v_xor_b32 v17, v17, v63")
    o("v_lshlrev_b32 v16, 7, v16"); o("v_add_u32 v16, s3, v16")
    o(f"v_lshl_add_u32 v{V_SHR}, v17, 4, v16"); o(f"v_xor_b32 v{V_SHR+1}, 64, v{V_SHR}")
    o(f"v_lshrrev_b32 v16, 2, v{V_LANE}"); o(f"v_and_b32 v17, 3, v{V_LANE}")
    o("v_lshlrev_b32 v16, 10, v16"); o(f"v_lshl_add_u32 v{V_XNST}, v17, 8, v16")
    o(f"v_bfe_u32 v16, v{V_LANE}, 4, 1"); o("v_lshlrev_b32 v16, 1, v16"); o("v_xor_b32 v16, v62, v16"); o("v_xor_b32 v17, 4, v16")
    for base, stride in ((VQ, 8192), (VH, 2752)):
        o(f"v_mul_u32_u24 v18, {stride}, v61")
        for i in range(4):
            o(f"v_lshl_add_u32 v{base+i}, v{16 if i % 2 == 0 else 17}, 4, v18")
            if i: o(f"v_add_u32 v{base+i}, {8*i*stride}, v{base+i}")
    o(f"s_lshr_b32 s3, s{S_H}, 1"); o(f"s_sub_u32 s3, s3, s{S_H}"); o("s_lshl_b32 s3, s3, 6"); o("s_add_u32 s3, s3, 1984")
    o("v_bfe_u32 v18, v16, 2, 1"); o("v_mul_lo_u32 v19, v18, s3"); o("v_sub_u32 v18, s3, v19")
    for i in range(4): o(f"v_add_u32 v{VH+i}, v{19 if i % 2 == 0 else 18}, v{VH+i}")
    o(f"v_bfe_u32 v16, v{V_LANE}, 2, 2"); o("v_lshl_add_u32 v17, v63, 3, v16"); o("v_lshlrev_b32 v17, 7, v17")
    o(f"v_and_b32 v18, 3, v{V_LANE}"); o("v_lshl_add_u32 v17, v18, 3, v17"); o("v_add_u32 v17, 0x2000, v17")
    o(f"v_bfe_u32 v18, v{V_LANE}, 3, 1"); o(f"v_bfe_u32 v19, v{V_LANE}, 4, 1"); o("v_lshl_or_b32 v18, v19, 1, v18")
    for fb in range(4):
        o(f"v_xor_b32 v19, {fb}, v18"); o(f"v_lshl_add_u32 v{TR+fb}, v19, 5, v17")
    for tb in range(4):
        if tb: o(f"v_add_u32 v{12+tb}, {tb*NKS*1024}, v{V_L16}")
        else: o(f"v_mov_b32 v12, v{V_L16}")
    o(f"s_lshl_b32 s3, s{S_G}, 12"); o(f"v_add_u32 v{V_FET}, s3, v{V_L16}"); o(f"v_add_u32 v{V_FET2}, 0x2000, v{V_FET}")
    o(f"s_lshl_b32 s48, s{S_WAVE}, 12")
    o(f"v_lshlrev_b32 v2, 3, v63")
    o(f"v_lshlrev_b32 v16, 2, v{V_LANE}"); o(f"v_add_u32 v16, {CNTOFF}, v16"); o("v_mov_b32 v17, 0"); o("ds_write_b32 v16, v17")
    o("v_cmp_eq_u32 vcc, 0, v0"); o("v_mov_b32 v16, 0x7f000000"); o("s_nop 0"); o(f"v_cndmask_b32 v{V_SIG}, v16, v17, vcc")
    o("s_waitcnt lgkmcnt(0)")
    if os.environ.get('STG') == '99': Kk.stamp(1, force=True)
    Kk.srd(S_WS, 58, SZ['ws']); Kk.srd(S_C, 66, SZ['c']); Kk.srd(S_WUK, 70, SZ['wuk']); Kk.srd(S_WUV, 72, SZ['wuv'])
    Kk.srd(S_FS, 64, SZ['x'])
    Kk.srd(S_WQ, 68, SZ['wq']); Kk.srd(S_W1, 78, SZ['w1']); Kk.srd(S_B1, 54, SZ['b1']); Kk.srd(S_DBG, 56, 256)
    LNB = 192
    o(f"s_lshl_b32 s{S_T}, s2, 3"); o(f"s_lshl_b32 s{S_T+1}, s{S_WAVE}, 1"); o(f"s_add_u32 s{S_T}, s{S_T}, s{S_T+1}"); o(f"s_lshl_b32 s{S_T}, s{S_T}, 10")
    Kk.vmem(f"buffer_load_dwordx4 {v(LNB,4)}, v{V_L16}, s[{S_FS}:{S_FS+3}], s{S_T} offen", "x")
    Kk.vmem(f"buffer_load_dwordx4 {v(LNB+4,4)}, v{V_L16}, s[{S_FS}:{S_FS+3}], s{S_T} offen offset:1024", "x")
    if os.environ.get('STG') == '99': Kk.stamp(2, force=True)
    o(f"s_lshr_b32 s70, s{S_T}, 14"); o("s_lshl_b32 s70, s70, 14"); o(f"s_lshr_b32 s{S_T}, s{S_T}, 6"); o(f"s_and_b32 s{S_T}, s{S_T}, 0xf0"); o(f"s_add_u32 s70, s70, s{S_T}")
    o(f"s_lshl_b32 s{S_T}, s{S_P}, 8"); o(f"s_lshl_b32 s{S_T+1}, s{S_WAVE}, 6"); o(f"s_add_u32 s{S_T}, s{S_T}, s{S_T+1}")
    for i in range(8):
        o(f"s_add_u32 s{S_AO+i}, s{S_T}, {8*i}"); o(f"s_lshl_b32 s{S_AO+i}, s{S_AO+i}, 10")
    o(f"s_lshl_b32 s{S_KST}, s{S_H}, 19"); o(f"s_lshl_b32 s{S_T}, s{S_T}, 8"); o(f"s_add_u32 s{S_KST}, s{S_KST}, s{S_T}")
    o(f"s_add_u32 s{S_VST}, s{S_KST}, {VF_OFF}"); o(f"s_add_u32 s{S_KST}, s{S_KST}, {KF_OFF}")
    o(f"s_lshl_b32 s{S_WQB}, s{S_WAVE}, 18"); o(f"s_lshl_b32 s{S_T}, s{S_H}, 8"); o(f"s_add_u32 s{S_WQB}, s{S_WQB}, s{S_T}")
    o(f"s_mul_i32 s{S_W1B}, s{S_WAVE}, {32*2752}"); o(f"s_lshl_b32 s{S_T}, s{S_H}, 6"); o(f"s_add_u32 s{S_W1B}, s{S_W1B}, s{S_T}")
    o(f"s_lshl_b32 s{S_LDSW}, s{S_ROLE}, 14"); o(f"s_lshl_b32 s{S_T}, s{S_G}, 12"); o(f"s_add_u32 s{S_LDSW}, s{S_LDSW}, s{S_T}"); o(f"s_add_u32 s{S_LDSW}, s{S_LDSW}, 0x2000")

    NS = 28
    GR = [('K', 64, 4), ('K', 128, 4), ('V', 192, 4), ('V', 64, 4), ('H', 128, 3), ('Q', 192, 4), ('Q', 64, 4)]
    VO = int(os.environ.get('VORD', 1))
    VORD = [[(2,0),(2,1),(2,2),(2,3),(3,0),(3,1),(3,2),(3,3)], [(2,0),(2,1),(2,2),(3,0),(2,3),(3,1),(3,2),(3,3)], [(2,0),(2,1),(3,0),(3,1),(2,2),(3,2),(2,3),(3,3)]][VO]
    ST = [(0,0),(1,0),(0,1),(0,2),(1,1),(0,3),(1,2),(1,3), ] + VORD + [(G, q) for G in (4, 5, 6) for q in range(4)]
    def issue_w(n):
        G, q = ST[n]
        if G == 4: srd, sb, off, vd = S_W1, S_W1B, q * 128 * 2752, VH
        else:
            srd = [S_WUK, S_WUK, S_WUV, S_WUV, None, S_WQ, S_WQ][G]
            sb, off, vd = S_WQB, q * 128 * 8192 + ((G % 2) if G < 4 else (G - 5)) * 128, VQ
        out = [f"s_add_u32 s{S_T+4}, s{sb}, {off}"]
        for i in range(4):
            out.append(f"s_add_u32 m0, s{S_LDSW}, {((n + 1) % 4) * 32768 + i * 1024}")
            out.append(lambda Kk, i=i: Kk.vmem(f"buffer_load_dwordx4 v{vd+i}, s[{srd}:{srd+3}], s{S_T+4} offen lds", f"W{n}"))
        return out
    def areg(u, i): return a(((i // 2) * 16 + 2 * u + (i % 2)) * 4, 4)
    def c_loads(u):
        out = []
        for i in range(8):
            out.append(f"s_add_u32 m0, s7, {(u % 2) * 16384 + i * 1024}")
            out.append(lambda Kk, i=i: Kk.vmem(f"buffer_load_dwordx4 v{V_SHW + i % 2}, s[{S_C}:{S_C+3}], s{S_AO+i} offen lds", f"A{u}"))
        out += [f"v_add_u32 v{V_SHW}, 0x80, v{V_SHW}", f"v_add_u32 v{V_SHW+1}, 0x80, v{V_SHW+1}"]
        if u >= 2: out = [lambda Kk: Kk.wait_lg([f"S{u-2}"])] + out
        return out
    def shuffle(u):
        out = [lambda Kk: Kk.wait_vm([f"A{u}"])]
        out += [lambda Kk, i=i: Kk.lds(f"ds_read_b128 {areg(u, i)}, v{V_SHR + i % 2} offset:{(u % 2) * 16384 + (i//2)*2048}", f"S{u}") for i in range(8)]
        return out
    def xn_loads(q, tbs):
        out = []
        for tb in tbs:
            out.append(f"s_add_u32 s{S_T+5}, s{S_XN}, {tb*16384 + q*4096}")
            for k in range(4):
                out.append(lambda Kk, tb=tb, k=k: Kk.vmem(f"buffer_load_dwordx4 {a((tb*16+4*q+k)*4,4)}, v{V_L16}, s[{S_WS}:{S_WS+3}], s{S_T+5} offen offset:{k*1024}{SC1}", f"X{q}"))
        return out
    def fill(slot, kind):
        lab = Kk.newlabel("mg_fs")
        def f(Kk):
            o(f"s_cmp_lg_u32 s{S_ROLE}, {kind}"); o(f"s_cbranch_scc1 {lab}")
            o(f"s_add_u32 m0, s48, {slot*16384}"); o(f"s_mov_b32 s{S_T+6}, {slot*8192}")
            for i in range(4): o(f"buffer_load_dwordx4 v{V_FET}, s[{S_FS}:{S_FS+3}], s{S_T+6} offen offset:{i*1024}{SC1} lds")
            Kk.label(lab)
        f.cost = 8
        return [f]
    def ems(lst):
        prev = False
        for e in lst:
            if callable(e):
                if prev: o("s_nop 0")
                e(Kk); prev = False
            else:
                o(e); prev = "m0," in e
    half = [0, 0, 0, 0]
    def trr(n, fb, buf):
        hi = 1 if (n + 1) % 4 >= 2 else 0
        out = []
        if half[fb] != hi:
            out.append(f"v_xor_b32 v{TR+fb}, 0x10000, v{TR+fb}"); half[fb] = hi
        return out + [lambda Kk, ksl=ksl, rd=rd: Kk.lds(f"ds_read_b64_tr_b16 {v((WF + buf*16 if buf < 2 else 192) + ksl*4 + rd*2, 2)}, v{TR+fb} offset:{((n+1) % 2)*32768 + (ksl//2)*16384 + (ksl%2)*4096 + rd*512}", f"T{n}_{fb}")
                for ksl in range(4) for rd in range(2)]
    def signal(dw, val_reg):
        return lambda Kk: Kk.vmem(f"buffer_atomic_add v{val_reg}, v{V_SIG}, s[{S_DBG}:{S_DBG+3}], s{dw} offen", "sig")

    TD = 236
    o(f"v_lshlrev_b32 v232, 10, v{V_LANE}")
    o(f"v_lshlrev_b32 v233, 13, v{V_LANE}")
    o(f"v_mul_u32_u24 v234, 2752, v{V_LANE}")
    o("s_lshr_b32 s66, s2, 3"); o("s_lshl_b32 s66, s66, 16"); o(f"s_lshl_b32 s67, s{S_WAVE}, 7"); o("s_add_u32 s66, s66, s67")
    Kk.vmem(f"buffer_load_dword v{TD}, v232, s[{S_C}:{S_C+3}], s66 offen", "pf")
    o(f"s_lshl_b32 s67, s{S_P}, 19"); o(f"s_lshl_b32 s68, s{S_H}, 8"); o("s_add_u32 s67, s67, s68"); o(f"s_lshl_b32 s68, s{S_G}, 7"); o("s_add_u32 s67, s67, s68")
    o(f"s_cmp_lg_u32 s{S_ROLE}, 0"); o("s_cbranch_scc1 mg_t1")
    o(f"buffer_load_dword v{TD}, v233, s[{S_WUK}:{S_WUK+3}], s67 offen")
    o("s_branch mg_t2")
    Kk.label("mg_t1")
    o("s_getpc_b64 s[68:69]")
    Kk.label("mg_pc")
    o("s_lshr_b32 s71, s2, 3"); o("s_lshl_b32 s71, s71, 1"); o(f"s_add_u32 s71, s71, s{S_G}"); o("s_mul_i32 s71, s71, 1280")
    o(f"v_min_u32 v235, 9, v{V_LANE}"); o("v_lshlrev_b32 v235, 7, v235"); o("v_add_u32 v235, s71, v235")
    o("v_min_u32 v235, mg_exit-mg_pc, v235")
    o(f"global_load_dword v{TD}, v235, s[68:69]")
    Kk.label("mg_t2")
    Kk.vm.append("pf")
    if os.environ.get('STG') == '99': Kk.stamp(3, force=True)
    ems(issue_w(0)); ems(c_loads(0))
    if os.environ.get('STG') == '99': Kk.stamp(4, force=True)
    ems(c_loads(1)); ems(issue_w(1))
    if os.environ.get('STG') == '99': Kk.stamp(5, force=True)
    o("s_mov_b32 s72, s66"); o("s_mov_b32 s49, s67")
    Kk.wait_vm(["x"])
    if os.environ.get('STG') == '99': Kk.stamp(6, force=True)
    ln_rows(Kk, LNB)
    if os.environ.get('STG') == '99': Kk.stamp(7, force=True)
    ems(shuffle(0)); ems(shuffle(1))
    if os.environ.get('STG') == '99': Kk.stamp(8, force=True)
    Kk.vmem(f"buffer_load_dword v{TD}, v232, s[{S_C}:{S_C+3}], s72 offen offset:512", "pf")
    for i in range(4, 8):
        o(f"s_add_u32 s{S_AO+i}, s{S_AO}, {8192*i}")
    ems(c_loads(2))
    if os.environ.get('STG') == '99': Kk.stamp(9, force=True)
    o(f"s_lshl_b32 s71, s{S_WAVE}, 5"); o(f"s_add_u32 s71, s71, {XOFF}")
    o(f"v_lshlrev_b32 v200, 7, v{V_LANE}"); o("v_add_u32 v200, s71, v200")
    Kk.lds(f"ds_write_b128 v200, {v(LNB,4)}"); Kk.lds(f"ds_write_b128 v200, {v(LNB+4,4)} offset:16")
    o(f"s_lshl_b32 s71, s{S_WAVE}, 11"); o(f"s_add_u32 s71, s71, {XOFF}"); o(f"v_add_u32 v200, s71, v{V_L16}")
    o(f"v_lshrrev_b32 v201, 5, v{V_LANE}"); o("v_lshlrev_b32 v201, 10, v201"); o(f"v_bfe_u32 v202, v{V_LANE}, 3, 2"); o("v_lshl_add_u32 v201, v202, 8, v201")
    o(f"v_and_b32 v202, 7, v{V_LANE}"); o("v_lshl_add_u32 v201, v202, 4, v201")
    o("s_lshr_b32 s52, s2, 1"); o("s_lshl_b32 s52, s52, 14"); o("s_and_b32 s71, s2, 1"); o("s_lshl_b32 s71, s71, 7"); o("s_add_u32 s52, s52, s71")
    o(f"s_lshl_b32 s71, s{S_WAVE}, 12"); o("s_add_u32 s52, s52, s71")
    xnst = [lambda Kk: Kk.lds("ds_read_b128 v[204:207], v200", "XR"), lambda Kk: Kk.lds("ds_read_b128 v[208:211], v200 offset:1024", "XR"),
            ("at", 6), lambda Kk: Kk.wait_lg(["XR"]),
            lambda Kk: Kk.vmem(f"buffer_store_dwordx4 v[204:207], v201, s[{S_WS}:{S_WS+3}], s52 offen{SC1}", "xs"),
            lambda Kk: Kk.vmem(f"buffer_store_dwordx4 v[208:211], v201, s[{S_WS}:{S_WS+3}], s52 offen offset:2048{SC1}", "xs")]
    if os.environ.get('STG') == '99': Kk.stamp(10, force=True)
    o(f"s_sub_u32 s{S_T}, 15, s{S_P}"); o(f"s_cmp_eq_u32 s{S_ROLE}, 0"); o(f"s_cselect_b32 s{S_T+1}, s{S_T}, s{S_P}")
    o(f"s_lshl_b32 s{S_T+1}, s{S_T+1}, 3"); o(f"s_lshl_b32 s{S_T+2}, s{S_G}, 2"); o(f"s_add_u32 s{S_T+1}, s{S_T+1}, s{S_T+2}")
    o(f"s_lshl_b32 s{S_T}, s{S_T}, 3"); o(f"s_add_u32 s{S_T}, s{S_T}, s{S_T+2}")
    o(f"s_lshl_b32 s{S_T+2}, s{S_H}, 12"); o(f"s_add_u32 s{S_T+2}, s{S_T+2}, {ACT_OFF}")
    o(f"s_mul_i32 s{S_CTX}, s{S_T+1}, {NKS*1024}"); o(f"s_add_u32 s{S_CTX}, s{S_CTX}, s{S_T+2}")
    o(f"s_mul_i32 s{S_CTXL}, s{S_T}, {NKS*1024}"); o(f"s_add_u32 s{S_CTXL}, s{S_CTXL}, s{S_T+2}")
    o(f"s_lshl_b32 s{S_XN}, s{S_T+1}, 14")
    o(f"s_mul_i32 s{S_T+5}, s{S_T+1}, {NKS*1024}"); o(f"s_add_u32 s{S_T+5}, s{S_T+5}, {ACT_OFF + 128*1024}")
    o(f"s_lshl_b32 s{S_T+4}, s{S_H}, 10"); o(f"s_add_u32 s76, s{S_T+5}, s{S_T+4}")
    o(f"s_and_b32 s{S_T+3}, s{S_H}, 1"); o(f"s_mul_i32 s{S_T+3}, s{S_T+3}, {2*NKS*1024}"); o(f"s_add_u32 s{S_T+5}, s{S_T+5}, s{S_T+3}")
    o(f"s_lshr_b32 s{S_T+3}, s{S_H}, 1"); o(f"s_lshl_b32 s{S_T+4}, s{S_T+3}, 10"); o(f"s_add_u32 s{S_T+5}, s{S_T+5}, s{S_T+4}"); o(f"s_add_u32 s{S_T+5}, s{S_T+5}, {32*1024}")
    o(f"s_cmp_lt_u32 s{S_H}, 22"); o(f"s_cselect_b32 s77, s{S_T+5}, 0x7f000000")
    o(f"s_lshl_b32 s78, s{S_T+3}, 6"); o("s_add_u32 s78, s78, 2048")
    o(f"s_lshl_b32 s{S_T+3}, s{S_P}, 2"); o(f"s_sub_u32 s79, 64, s{S_T+3}"); o(f"s_lshl_b32 s{S_D4}, s{S_P}, 4"); o(f"s_add_u32 s{S_D4}, s{S_D4}, 32")
    o(f"s_lshl_b32 s{S_T+3}, s{S_H}, 19")
    o(f"s_cmp_eq_u32 s{S_ROLE}, 0"); o(f"s_mov_b32 s{S_T+5}, {VF_OFF - 16384}"); o(f"s_cselect_b32 s{S_T+4}, {KF_OFF}, s{S_T+5}"); o(f"s_cselect_b32 s{S_T+5}, 0, 16384")
    o(f"s_add_u32 s{S_T+4}, s{S_T+4}, s{S_T+3}"); o(f"s_add_u32 s{S_FS}, s{S_WS}, s{S_T+4}"); o(f"s_addc_u32 s{S_FS+1}, s{S_WS+1}, 0")
    o(f"s_lshl_b32 s{S_FS+2}, s79, 13"); o(f"s_add_u32 s{S_FS+2}, s{S_FS+2}, s{S_T+5}")
    o("s_mov_b32 s72, 0")
    o(f"s_lshl_b32 s47, s{S_H}, 7"); o(f"s_add_u32 s47, s47, {KVF_OFF}"); o(f"s_lshl_b32 s73, s{S_P}, 2"); o("s_add_u32 s74, s47, s73")
    o(f"s_lshl_b32 s45, s{S_P}, 7"); o(f"s_lshl_b32 s73, s{S_H}, 2"); o("s_add_u32 s45, s45, s73"); o(f"s_add_u32 s45, s45, {HF_OFF}")
    o(f"s_lshl_b32 s{S_T+2}, s{S_H}, 4"); o(f"s_lshl_b32 s{S_T+3}, s{S_G}, 3"); o(f"s_add_u32 s{S_T+2}, s{S_T+2}, s{S_T+3}"); o(f"s_add_u32 s{S_T+2}, s{S_T+2}, {FLG_OFF}")
    o(f"s_lshr_b32 s{S_T+1}, s{S_T+1}, 3"); o(f"s_lshl_b32 s{S_T+1}, s{S_T+1}, 9"); o(f"s_add_u32 s{S_WKB}, s{S_T+1}, s{S_T+2}")
    o(f"s_lshr_b32 s{S_T}, s{S_T}, 3"); o(f"s_lshl_b32 s{S_T}, s{S_T}, 9"); o(f"s_add_u32 s79, s{S_T}, s{S_T+2}"); o("s_add_u32 s79, s79, 4")
    o(f"v_cmp_eq_u32 vcc, 0, v{V_LANE}"); o("v_mov_b32 v62, 0x7f000000"); o("v_mov_b32 v63, 0"); o(f"v_cndmask_b32 v{V_XNST}, v62, v63, vcc")
    o("v_mov_b32 v61, 1"); o("s_nop 0"); o("v_mov_b32 v192, 0"); o("v_mov_b32 v193, 0"); o("v_mov_b32 v194, 0"); o("v_mov_b32 v195, 0")
    o(f"v_and_b32 v62, 7, v{V_LANE}"); o("v_lshlrev_b32 v62, 2, v62")
    if os.environ.get('STG') == '99': Kk.stamp(11, force=True)
    flagz = [lambda Kk: Kk.vmem(f"buffer_store_dwordx2 v[192:193], v{V_XNST}, s[{S_WS}:{S_WS+3}], s{S_WKB} offen{SC1}", "xs"),
             lambda Kk: Kk.vmem(f"buffer_store_dword v63, v{V_SIG}, s[{S_WS}:{S_WS+3}], s74 offen{SC1}", "xs"),
             lambda Kk: Kk.vmem(f"buffer_store_dword v63, v{V_SIG}, s[{S_WS}:{S_WS+3}], s45 offen{SC1}", "xs"),
             f"s_lshl_b32 s{S_T+6}, s2, 7", f"s_add_u32 s{S_T+6}, s{S_T+6}, {EXF_OFF}",
             lambda Kk: Kk.vmem(f"buffer_store_dwordx4 v[192:195], v{V_SIG}, s[{S_WS}:{S_WS+3}], s{S_T+6} offen{SC1}", "xs")]
    def touch(role, srd, vreg, sreg):
        lab = Kk.newlabel("mg_tc")
        def f(Kk):
            o(f"s_cmp_lg_u32 s{S_ROLE}, {role}"); o(f"s_cbranch_scc1 {lab}")
            o(f"buffer_load_dword v63, v{vreg}, s[{srd}:{srd+3}], s{sreg} offen")
            Kk.label(lab)
        f.cost = 7
        return f
    Kk.wait_vm(["W0"], lgkm=0)
    o("s_barrier")
    Kk.stamp(3)
    if os.environ.get('STG') == '99': Kk.stamp(12, force=True)
    ems(trr(0, 0, 0))

    def kv_epilogue(G):
        kind, acc, _ = GR[G]; gi = G % 2
        out = []
        if kind == 'K':
            for tb in range(4):
                out.append(f"s_add_u32 s{S_STT}, s{S_KST}, {tb*4096 + gi*2048}")
                for dsl in range(2):
                    q0 = acc + ((2*dsl)*4 + tb)*4; q1 = acc + ((2*dsl+1)*4 + tb)*4
                    out += [f"v_mul_f32 v{x+r}, {hex(KSCALE)}, v{x+r}" for x in (q0, q1) for r in range(4)]
                    out += [f"v_cvt_pk_bf16_f32 v{q0}, v{q0}, v{q0+1}", f"v_cvt_pk_bf16_f32 v{q0+1}, v{q0+2}, v{q0+3}",
                            f"v_cvt_pk_bf16_f32 v{q0+2}, v{q1}, v{q1+1}", f"v_cvt_pk_bf16_f32 v{q0+3}, v{q1+2}, v{q1+3}"]
                    out.append(lambda Kk, q0=q0, dsl=dsl: Kk.vmem(f"buffer_store_dwordx4 {v(q0,4)}, v{V_L16}, s[{S_WS}:{S_WS+3}], s{S_STT} offen offset:{dsl*1024}{KVSC}", f"st{G}"))
        else:
            for tp in range(2):
                out.append(f"s_add_u32 s{S_STT}, s{S_VST}, {tp*8192 + gi*4096}")
                for fb in range(4):
                    q0 = acc + (fb*4 + 2*tp)*4; q1 = q0 + 4
                    out += [f"v_cvt_pk_bf16_f32 v{q0}, v{q0}, v{q0+1}", f"v_cvt_pk_bf16_f32 v{q0+1}, v{q0+2}, v{q0+3}",
                            f"v_cvt_pk_bf16_f32 v{q0+2}, v{q1}, v{q1+1}", f"v_cvt_pk_bf16_f32 v{q0+3}, v{q1+2}, v{q1+3}"]
                    out.append(lambda Kk, q0=q0, fb=fb: Kk.vmem(f"buffer_store_dwordx4 {v(q0,4)}, v{V_L16}, s[{S_WS}:{S_WS+3}], s{S_STT} offen offset:{fb*1024}{KVSC}", f"st{G}"))
        if os.environ.get("NOST"): out = [e for e in out if not callable(e)] + [lambda Kk: Kk.vm.append(f"st{G}")]
        for e in out:
            if callable(e): e.store = True; e.grp = G
        return out
    def HB_(fb, tb): return 128 + ((fb*4 + tb) if fb < 2 else (8 + (fb-2)*2 + tb)) * 4
    def h_epilogue():
        out = []
        T0, T1 = 56, 176
        R4 = range(4)
        def mish(b):
            o_ = []
            o_ += [f"v_mul_f32 v{T0+r}, {hex(fbits(LOG2E))}, v{b+r}" for r in R4]
            o_ += [f"v_min_f32 v{T0+r}, {hex(fbits(20*LOG2E))}, v{T0+r}" for r in R4]
            o_ += [f"v_exp_f32 v{T0+r}, v{T0+r}" for r in R4]
            o_ += [f"v_add_f32 v{T1+r}, 2.0, v{T0+r}" for r in R4]
            o_ += [f"v_mul_f32 v{b+r}, v{b+r}, v{T0+r}" for r in R4]
            o_ += [f"v_mul_f32 v{b+r}, v{b+r}, v{T1+r}" for r in R4]
            o_ += [f"v_fma_f32 v{T1+r}, v{T0+r}, v{T1+r}, 2.0" for r in R4]
            o_ += [f"v_rcp_f32 v{T1+r}, v{T1+r}" for r in R4]
            o_ += [f"v_mul_f32 v{b+r}, v{b+r}, v{T1+r}" for r in R4]
            return o_
        for (f0, tb, sreg) in [(0, 0, 76), (0, 1, 76), (0, 2, 76), (0, 3, 76), (2, 0, 77), (2, 1, 77)]:
            q0, q1 = HB_(f0, tb), HB_(f0 + 1, tb)
            out += mish(q0) + mish(q1)
            out += [f"v_cvt_pk_bf16_f32 v{q0}, v{q0}, v{q0+1}", f"v_cvt_pk_bf16_f32 v{q0+1}, v{q0+2}, v{q0+3}",
                    f"v_cvt_pk_bf16_f32 v{q0+2}, v{q1}, v{q1+1}", f"v_cvt_pk_bf16_f32 v{q0+3}, v{q1+2}, v{q1+3}"]
            out.append(lambda Kk, q0=q0, tb=tb, sreg=sreg: Kk.vmem(f"buffer_store_dwordx4 {v(q0,4)}, v{12+tb}, s[{S_WS}:{S_WS+3}], s{sreg} offen{SC1}", "hs"))
        return out
    def q_pack(acc):
        out = []
        for tb in range(4):
            for dsl in range(2):
                q0 = acc + ((2*dsl)*4 + tb)*4; q1 = acc + ((2*dsl+1)*4 + tb)*4
                out += [f"v_cvt_pk_bf16_f32 v{q0}, v{q0}, v{q0+1}", f"v_cvt_pk_bf16_f32 v{q0+1}, v{q0+2}, v{q0+3}",
                        f"v_cvt_pk_bf16_f32 v{q0+2}, v{q1}, v{q1+1}", f"v_cvt_pk_bf16_f32 v{q0+3}, v{q1+2}, v{q1+3}"]
        return out
    def q_move(acc, half):
        return [f"v_accvgpr_write_b32 a{AQ(tb, 2*half+dsl)+r}, v{acc + ((2*dsl)*4 + tb)*4 + r}" for tb in range(4) for dsl in range(2) for r in range(4)]
    def poll(ld, cmp_ops, tag):
        def issue(Kk):
            l = Kk.newlabel("mg_pw")
            o(f"s_cmp_lg_u32 s{S_WAVE}, 0"); o(f"s_cbranch_scc1 {l}")
            o(ld); Kk.label(l)
            Kk.vm.append(None); Kk.vm.pop(); Kk.pollmark = len(Kk.vm)
        def chk(Kk):
            l = Kk.newlabel("mg_pw")
            o(f"s_cmp_lg_u32 s{S_WAVE}, 0"); o(f"s_cbranch_scc1 {l}")
            o(f"s_waitcnt vmcnt({min(63, len(Kk.vm) - Kk.pollmark)})")
            for c in cmp_ops: o(c)
            o("s_nop 0")
            poll_stub(Kk, V_ACT, ld, cmp_ops)(Kk)
            Kk.label(l)
        issue.cost = 8; chk.cost = 8
        return issue, [chk]

    queue = []
    bufc = 0
    SIG = int(os.environ.get('SIG', 21))
    B1R = [56, 58, 2]; XS_ = int(os.environ.get('XS', 1))
    DONE_ = {ST.index((3, 0)): 0, 13: 1, 16: 2, SIG - 1: 3}
    gpos = 0; last_st = -100; PACE = int(os.environ.get('PACE', 20))
    for n in range(NS):
        G, q = ST[n]
        kind, acc, nfb = GR[G]
        mf = []; bufs = []; mf_alt = None
        if kind == 'H':
            bufs = [bufc, 1 - bufc, bufc, 2]
            def hm(par):
                m_ = []
                for fb in range(4):
                    for tbl in range(4 if fb < 2 else 2):
                        tb = tbl if fb < 2 else 2 * par + tbl
                        for ksl in range(4):
                            D = v(HB_(fb, tbl), 4)
                            C = D if (q or ksl) else v(BIAS + 4*fb, 4)
                            m_.append(mfma(D, v((WF + bufs[fb]*16 if bufs[fb] < 2 else 192) + ksl*4, 4), a((tb*16 + 4*q + ksl)*4, 4), C))
                return m_
            mf = hm(0); mf_alt = hm(1)
        for fb in range(nfb if kind != 'H' else 0):
            buf = (bufc + fb) % 2; bufs.append(buf)
            for tb in range(4):
                for ksl in range(4):
                    D = v(acc + (fb*4+tb)*4, 4)
                    C = D if (q or ksl) else "0"
                    Wr = v(WF + buf*16 + ksl*4, 4); Xr = a((tb*16 + 4*q + ksl)*4, 4)
                    mf.append(mfma(D, Xr, Wr, C) if kind == 'V' else mfma(D, Wr, Xr, C))
        bufc = (bufc + nfb) % 2
        sc = Sched(len(mf))
        if n in DONE_: assert not any(getattr(e, 'grp', None) == DONE_[n] for e in queue), (n, len(queue))
        w0 = [f"T{n}_0"] + ([f"S{2*q}", f"S{2*q+1}"] if G == 0 else [])
        if G == 4: sc.put(-1, lambda Kk, q=q: Kk.wait_vm([f"X{q}"]))
        sc.put(-1, lambda Kk, w0=w0: Kk.wait_lg(w0))
        for fb in range(nfb - 1):
            for i, e in enumerate(trr(n, fb + 1, bufs[fb + 1])): sc.put(fb*16 + i, e)
            if fb < nfb - 2: sc.put(fb*16 + 15, lambda Kk, n=n, fb=fb: Kk.wait_lg([f"T{n}_{fb+1}"]))
        if kind == 'H':
            for i, e in enumerate(trr(n, 3, 2)): sc.slots[min(8 + i, 15)].insert(0, e) if i < 7 else sc.slots[15].insert(len(sc.slots[15]) - 1, e); sc.cost[min(8 + i, 15)] += 4
        lb = (nfb - 1) * 16
        need = [f"W{n+1}"] if n + 1 < NS else []
        if n == XS_ - 1: need.append("xs")
        if n == SIG - 1: need += ["st2", "st3"]
        def barw(Kk, need=need, n=n, nfb=nfb):
            nv = min([Kk.vm_after(t) for t in need] + [63 if n + 1 < NS else 24])
            Kk.op(f"s_waitcnt vmcnt({nv}) lgkmcnt({Kk.lg_n([f'T{n}_{nfb-1}'])})")
        sc.put(lb - 1, barw); sc.put(lb - 1, "s_barrier")
        if n + 1 < NS:
            for i, e in enumerate(trr(n + 1, 0, bufc)): sc.put(lb + i, e)
        else:
            sc.put(lb - 2, f"v_mov_b32 v{V_KA}, v{V_L16}")
            for i in range(8): sc.put(lb + i, kread(i))
        dm = []
        if 1 <= n and n + 3 < NS: dm += issue_w(n + 3)
        if n == 2 and not os.environ.get('NOWTC'): dm.append(touch(1, S_WUV, 233, 49))
        if n == 4 and not os.environ.get('NOWTC'): dm.append(touch(0, S_WQ, 233, 49))
        if n == 6:
            dm += [f"s_mul_i32 s49, s{S_P}, {64*2752}", f"s_lshl_b32 s{S_T+6}, s{S_H}, 6", lambda Kk: (o(f"s_cmp_eq_u32 s{S_G}, 0"), o(f"s_cselect_b32 s{S_T+6}, s{S_T+6}, s78")), f"s_add_u32 s49, s49, s{S_T+6}", touch(1, S_W1, 234, 49)]
        if n == XS_: dm = [signal(72, 61)] + dm
        if n == SIG: dm.append(lambda Kk: Kk.vmem(f"buffer_store_dword v61, v{V_SIG}, s[{S_WS}:{S_WS+3}], s74 offen{SC1}", "sig"))
        if n == int(os.environ.get('XT', 8)) - int(os.environ.get('XP', 3)):
            pl, pc = poll(f"buffer_load_dword v{V_ACT}, off, s[{S_DBG}:{S_DBG+3}], 0{SC1}", [f"v_cmp_gt_u32 vcc, 0x100, v{V_ACT}"], "px"); dm.append(pl)
        if n == int(os.environ.get('XT', 8)) - 1: dm += pc
        XT = int(os.environ.get('XT', 8))
        if n in (XT, XT + 1) and os.environ.get('DOXT'):
            dm.append(f"s_and_b32 s{S_T+6}, s{S_H}, 3"); dm.append(f"s_lshl_b32 s{S_T+6}, s{S_T+6}, 14"); dm.append(f"s_add_u32 s{S_T+6}, s{S_T+6}, s{S_XN}")
            if n == XT + 1: dm.append(f"s_add_u32 s{S_T+6}, s{S_T+6}, 8192")
            dm.append(f"v_lshlrev_b32 v{V_ACT}, 7, v{V_LANE}")
            dm.append(lambda Kk: Kk.vmem(f"buffer_load_dword v63, v{V_ACT}, s[{S_WS}:{S_WS+3}], s{S_T+6} offen{SC1}", "pf"))
        XL = [{13: [(0, (0, 1, 2))], 14: [(0, (3,)), (1, (0, 1))], 15: [(1, (2, 3)), (2, (0,))], 16: [(2, (1, 2, 3))], 17: [(3, (0, 1, 2, 3))]},
              {12: [(0, (0, 1))], 13: [(0, (2, 3))], 14: [(1, (0, 1, 2))], 15: [(1, (3,)), (2, (0, 1))], 16: [(2, (2, 3)), (3, (0,))], 17: [(3, (1, 2, 3))]},
              {11: [(0, (0, 1))], 12: [(0, (2, 3))], 13: [(1, (0, 1))], 14: [(1, (2, 3))], 15: [(2, (0, 1, 2))], 16: [(2, (3,)), (3, (0, 1))], 17: [(3, (2, 3))]}][VO]
        if os.environ.get("NOXN"):
            if n == 12: Kk.vm += ["X0", "X1", "X2", "X3"]
        else:
            for x_ in XL.get(n, []): dm += xn_loads(*x_)
        if n == 13:
            dm.append(f"s_lshl_b32 s{S_T+6}, s{S_H}, 6")
            dm += [lambda Kk, fb=fb: Kk.vmem(f"buffer_load_dwordx2 {v(BIAS+4*fb+2,2)}, v2, s[{S_B1}:{S_B1+3}], s{S_T+6 if fb < 2 else 78} offen offset:{(fb%2)*32}", "b1") for fb in range(4)]
        if n == 22:
            pl2, pc2 = poll(f"buffer_load_dword v{V_ACT}, v62, s[{S_WS}:{S_WS+3}], s47 offen{SC1}", [f"v_cmp_eq_u32 vcc, 0, v{V_ACT}"], "pk"); dm.append(pl2)
        if n == 24: dm += pc2
        if 25 <= n <= 27: dm += sum((fill(x_, 0) for x_ in [(0, 1), (2, 3, 4), (5, 6, 7)][n - 25]), [])
        if n >= NS - 3: dm += fill(2*(n - (NS - 3)) + 2, 1) + fill(2*(n - (NS - 3)) + 3, 1)
        AT = lambda p_: ("at", p_)
        if n == 0: dm = xnst + flagz + issue_w(2) + c_loads(3) + issue_w(3) + [AT(46)] + shuffle(2)
        if n == 1: dm = c_loads(4) + dm + [AT(30)] + shuffle(3) + c_loads(5)
        if n == 2: dm = dm + [AT(16)] + shuffle(4) + c_loads(6) + [AT(50)] + shuffle(5)
        if n == 3: dm = c_loads(7) + dm
        if n == 4: dm = shuffle(6) + dm + [AT(40)] + shuffle(7)
        pos = 1
        nv_ = sum(1 for e in dm if callable(e))
        lim = (lb - 3) if any(getattr(e, "cost", 4) == 8 for e in dm) else len(mf) - 4
        spc = (lim - 1) / max(nv_, 1) if n >= 5 else 0
        kv_ = 0
        for ie, e in enumerate(dm):
            if isinstance(e, tuple): pos = max(pos, e[1]); continue
            tgt_ = int(1 + kv_ * spc)
            if not callable(e): tgt_ -= 1
            pos = max(pos, tgt_)
            while sc.cost[pos] + sc.c(e) > 8 and pos < len(mf) - 1: pos += 1
            sc.put(pos, e)
            if callable(e): kv_ += 1
            if getattr(e, "cost", 4) == 8: assert pos < lb - 1, (n, pos)
            if isinstance(e, str) and "m0," in e:
                pos += 1; assert pos < len(mf), n
        if n == 5:
            queue += [f"v_and_b32 v192, 15, v{V_LANE}", f"v_lshrrev_b32 v193, 4, v{V_LANE}", "v_lshlrev_b32 v193, 2, v193"]
            for r in range(4): queue += [f"v_add_u32 v194, {r}, v193", f"v_cmp_gt_u32 s[{S_MSK+2*r}:{S_MSK+2*r+1}], v194, v192"]
        if n == 6: queue += kv_epilogue(0)
        if n == 8: queue += kv_epilogue(1)
        if n == 15: queue = [lambda Kk: Kk.wait_vm(["b1"])] + queue; queue[1:1] = [x for fb in range(4) for r in range(2) for x in
                   (f"v_lshlrev_b32 v{BIAS+4*fb+2*r}, 16, v{BIAS+4*fb+2+r}", f"v_and_b32 v{BIAS+4*fb+2*r+1}, 0xffff0000, v{BIAS+4*fb+2+r}")]
        if n == ST.index((2, 3)) + 1: queue += kv_epilogue(2)
        if n == 16: queue += kv_epilogue(3)
        if n == 20: queue2 = h_epilogue()
        if n == 24: queue2 = q_pack(192) + queue2
        if n == 25: queue2 = q_move(192, 0) + queue2
        if n == 27: queue2 = [f"v_accvgpr_write_b32 a{A_Z+r}, 0" for r in range(4)] + ["v_mov_b32 v63, 0x3f803f80"] + [f"v_accvgpr_write_b32 a{A_ONE+r}, v63" for r in range(4)] + queue2
        pos = 10 if n in (6, 8, 12, 13, 15, 16, 20, 24) else 0
        while queue and pos < len(mf):
            e = queue[0]
            if getattr(e, "store", False):
                if gpos + pos < last_st + PACE: pos += 1; continue
            if sc.cost[pos] + sc.c(e) <= 8:
                sc.put(pos, e); queue.pop(0)
                if getattr(e, "store", False): last_st = gpos + pos
            else: pos += 1
        if n >= 20:
            pos = 10 if n in (20, 24) else 0
            while queue2 and pos < len(mf):
                e = queue2[0]
                if sc.cost[pos] + sc.c(e) <= 8: sc.put(pos, e); queue2.pop(0)
                else: pos += 1
        gpos += len(mf)
        if mf_alt is None: emit_slots(Kk, mf, sc.slots)
        else:
            emit_slots(Kk, mf[:32], {g: sc.slots[g] for g in range(-1, 32)})
            la = Kk.newlabel("mg_hp"); lb_ = Kk.newlabel("mg_hp")
            o(f"s_bitcmp1_b32 s{S_H}, 0"); o(f"s_cbranch_scc1 {la}")
            sv, sl_ = list(Kk.vm), list(Kk.lg)
            tail = {g - 32: sc.slots[g] for g in range(32, 48)}
            emit_slots(Kk, mf[32:], tail)
            o(f"s_branch {lb_}")
            Kk.label(la)
            Kk.vm, Kk.lg = sv, sl_
            emit_slots(Kk, mf_alt[32:], tail)
            Kk.label(lb_)
        STG = os.environ.get('STG')
        if STG is not None:
            if 0 <= n - int(STG) < 15: Kk.stamp(1 + n - int(STG), force=True)
            if STG == '99' and n < 3: Kk.stamp(13 + n, force=True)
        elif n in (3, 7, 11, 15, 19, 23, 27): Kk.stamp({3: 4, 7: 7, 11: 8, 15: 13, 19: 1, 23: 2, 27: 14}[n])
    assert not queue
    print("mega proj leftover filler:", len(queue2))
    em(Kk, queue2)
    o("s_nop 7")
    em(Kk, q_pack(64) + q_move(64, 1))
    o(f"v_mov_b32 v{V_NEG}, 0xff800000")
    o(f"v_mov_b32 v15, v{V_SIG}"); o(f"v_mov_b32 v0, v{V_XNST}")
    o(f"s_lshl_b32 s{S_T}, s{S_G}, 14"); o(f"s_add_u32 s{S_T}, s{S_T}, {XOFF}"); o(f"v_add_u32 v{V_T0}, s{S_T}, v{V_L16}")
    o(f"s_cmp_eq_u32 s{S_G}, 0"); o(f"s_mov_b32 s{S_T+1}, 0x6000"); o(f"s_cselect_b32 s{S_T}, {XOFF + 15*1024}, s{S_T+1}"); o(f"v_add_u32 v{V_T1}, s{S_T}, v{V_L16}")
    o(f"s_cmp_lg_u32 s{S_ROLE}, 0"); o("s_cbranch_scc1 k2_nopub")
    for j in range(4):
        for ds in range(4):
            if j*4+ds < 15: o(f"ds_write_b128 v{V_T0}, {a(AQ(j, ds), 4)} offset:{(j*4+ds)*1024}")
            else: o(f"ds_write_b128 v{V_T1}, {a(AQ(j, ds), 4)}")
    Kk.label("k2_nopub")
    o("s_mov_b32 s50, s45")
    o(f"s_mov_b32 s{S_TGT}, 4"); o(f"s_mov_b32 s{S_FT}, {8*8192}"); o(f"s_mov_b32 s{S_PH}, 0"); o("s_mov_b32 s7, 0x4000"); o(f"s_mov_b32 s{S_NF}, 0")
    o("s_mov_b32 m0, s48")
    o(f"s_mov_b32 s48, s{S_WKB}")
    o(f"v_add_u32 v{V_KA}, 0x4000, v{V_L16}"); o(f"v_add_u32 v{V_VA}, 0x8000, v{V_L16}")
    o(f"v_lshlrev_b32 v{V_CNT}, 2, v{V_LANE}"); o(f"v_add_u32 v{V_CNT}, {CNTOFF}, v{V_CNT}"); o(f"v_mov_b32 v{V_ONE}, 1")
    o(f"s_cmp_eq_u32 s{S_ROLE}, 0"); o(f"s_cselect_b32 s{S_DST}, s{S_D4}, 0x7fffff00")
    if not os.environ.get("NOMPF"):
        o("s_load_dwordx2 s[28:29], s[0:1], 40"); o("s_load_dwordx2 s[32:33], s[0:1], 72")
        o(f"s_lshl_b32 s{S_T}, s2, 2"); o(f"s_add_u32 s{S_T}, s{S_T}, s{S_WAVE}")
        o(f"v_and_b32 v112, 31, v{V_LANE}"); o("v_lshlrev_b32 v112, 7, v112")
        o(f"s_lshl_b32 s38, s{S_T}, 12"); o(f"s_lshl_b32 s37, s{S_T}, 11")
        o(f"v_and_b32 v113, 15, v{V_LANE}"); o("v_lshlrev_b32 v113, 7, v113")
        o("s_waitcnt lgkmcnt(0)")
        o(f"s_mov_b32 s30, {SZ['wo']}"); o(f"s_mov_b32 s34, {SZ['w2']}")
        o("s_lshr_b32 s65, s2, 3"); o("s_lshl_b32 s65, s65, 2"); o(f"s_add_u32 s65, s65, s{S_WAVE}")
        o("s_and_b32 s66, s2, 7"); o("s_lshr_b32 s66, s66, 1")
        o("s_lshl_b32 s67, s66, 20"); o("s_lshl_b32 s68, s65, 13"); o("s_add_u32 s67, s67, s68")
        o(f"v_lshlrev_b32 v114, 7, v{V_LANE}"); o("v_add_u32 v114, s67, v114")
        o("s_mul_i32 s65, s65, 44"); o(f"v_min_u32 v115, 43, v{V_LANE}"); o("v_add_u32 v115, s65, v115"); o("v_lshlrev_b32 v115, 8, v115")
        o("s_and_b32 s66, s66, 1"); o("s_lshl_b32 s66, s66, 7"); o("v_add_u32 v115, s66, v115")
        o("s_getpc_b64 s[4:5]")
        Kk.label("mg_pc2")
        o(f"s_lshl_b32 s65, s{S_WAVE}, 13"); o("s_add_u32 s65, s65, k2_merge-mg_pc2")
        o(f"v_lshlrev_b32 v116, 7, v{V_LANE}"); o("v_add_u32 v116, s65, v116"); o("v_min_u32 v116, mg_exit-mg_pc2, v116")
        if not os.environ.get("NOWT"):
            Kk.drn_extra = ["global_load_dword v110, v116, s[4:5]", "buffer_load_dword v110, v115, s[32:35], 0 offen", "buffer_load_dword v110, v114, s[28:31], 0 offen"]
        Kk.pro_extra = ["buffer_load_dword v110, v112, s[28:31], s38 offen", "buffer_load_dword v110, v113, s[32:35], s37 offen"]
    Kk.stamp(5)
    o("s_mov_b32 s36, s79")
    Kk.mega = True
    from mega_p4 import p4, p4_pre, p4_pre0, p4_pre2
    Kk.p4_pre = p4_pre; Kk.p4_pre0 = p4_pre0; Kk.p4_pre2 = lambda Kk: p4_pre2(Kk, poll_stub)
    attention(Kk)
    Kk.stamp(10)
    p4(Kk, poll_stub)
    Kk.stamp(15)
    if os.environ.get("DBGOUT"):
        o("s_cmp_lg_u32 s2, 100"); o("s_cbranch_scc1 mg_nodbg"); o(f"s_cmp_lg_u32 s{S_WAVE}, 0"); o("s_cbranch_scc1 mg_nodbg")
        o("s_mov_b64 exec, 1")
        for k_, i in enumerate((11, 3, 4, 7, 8, 13, 1, 2, 14, 5, 9, 10, 6, 15)):
            o(f"s_sub_u32 s65, s{80+i}, s80"); o("v_mov_b32 v0, s65")
            o(f"buffer_store_dword v0, off, s[{S_DBG}:{S_DBG+3}], 0 offset:{4+4*k_}")
        Kk.label("mg_nodbg")
    else:
        Kk.stamp_flush(0, S_WAVE, S_WS)
    o("s_endpgm")
    emit_stubs(Kk)
    emit_pstubs(Kk)
    rare(Kk, 0)
    rare(Kk, 1)
    Kk.label("mg_exit")
    o("s_endpgm")
    kernel_desc(Kk, Kk.name, vgpr=512, accum=256)
    return Kk
```

```python
from att import *
from lsched import Item, schedule
CACC = 64; HACC = 128; WFH = 16
CW = 192
HB = 0x18000
def HAR(slot, tb): return a(slot * 16 + tb * 4, 4)
def CAR(buf, tb): return a(64 + buf * 16 + tb * 4, 4)
WS = f"s[{S_WS}:{S_WS+3}]"
RING = 9; DIST = int(os.environ.get("DIST", 7))
CLD = f"buffer_load_dword v62, v61, {WS}, s39 offen sc1"
CCMP = ["v_cmp_eq_u32 vcc, 0, v62"]
ELD = f"buffer_load_dword v62, v63, {WS}, s38 offen sc1"

def h_load(Kk, i):
    slot = i % 3
    out = []
    if i == 10: out += ["s_cmp_eq_u32 s40, 3", "s_cselect_b32 s51, 0x7f000000, s51"]
    for tb in range(4):
        out.append(lambda Kk, tb=tb: Kk.vmem(f"buffer_load_dwordx4 {HAR(slot, tb)}, v{52+tb}, {WS}, s51 offen sc1", f"H{i}"))
    for k in range(4):
        out.append(f"s_add_u32 m0, s47, {slot*4096 + k*1024}")
        out.append(lambda Kk, k=k: Kk.vmem(f"buffer_load_dwordx4 v{48+k}, s[12:15], s50 offen lds", f"H{i}"))
    out += ["s_add_u32 s50, s50, 32768", "s_add_u32 s51, s51, 1024"]
    return out
def h_trr(i):
    return [lambda Kk, fb=fb, rd=rd: Kk.lds(f"ds_read_b64_tr_b16 {v(WFH+(i%2)*16+fb*4+rd*2,2)}, v{56+fb} offset:{(i%3)*4096+rd*2048}", f"HT{i}") for fb in range(4) for rd in range(2)]
def c_fetch(n):
    slot = n % RING
    return [f"s_add_u32 m0, s53, {slot*16384}",
            lambda Kk: Kk.vmem(f"buffer_load_dwordx4 v224, {WS}, s55 offen sc1 lds", f"C{n}"),
            lambda Kk: Kk.vmem(f"buffer_load_dwordx4 v225, {WS}, s55 offen offset:1024 sc1 lds", f"C{n}"),
            f"s_add_u32 m0, s53, {slot*16384 + 8192}",
            "s_add_u32 s55, s55, 1024",
            lambda Kk: Kk.vmem("buffer_load_dwordx4 v226, s[24:27], s54 offen lds", f"C{n}"),
            lambda Kk: Kk.vmem("buffer_load_dwordx4 v227, s[24:27], s54 offen offset:1024 lds", f"C{n}"),
            "s_add_u32 s54, s54, 32768"]
def c_reads(n):
    slot = n % RING; buf = n % 2
    hi = slot // 4
    out = []
    for k in range(4):
        out.append((lambda Kk, k=k: Kk.lds(f"ds_read_b128 {CAR(buf, k)}, v{[232, 233, 246][hi]} offset:{(slot % 4)*16384 + k*1024}", f"CR{n}")))
        for rd in range(2):
            out.append((lambda Kk, k=k, rd=rd: Kk.lds(f"ds_read_b64_tr_b16 {v(CW+buf*16+k*4+rd*2,2)}, v{[228, 236, 242][hi]+k} offset:{(slot % 4)*16384 + 8192 + rd*4096}", f"CR{n}")))
    return out
def ems(Kk, lst):
    prev = False
    for e in lst:
        if callable(e):
            if prev: Kk.op("s_nop 0")
            e(Kk); prev = False
        else:
            Kk.op(e); prev = "m0," in e

HL = f"buffer_load_dword v16, v61, {WS}, s38 offen sc1"
def p4_pre0(Kk):
    o = Kk.op
    o("s_load_dwordx2 s[28:29], s[0:1], 0")
    o("s_load_dwordx2 s[30:31], s[0:1], 40")
    o("s_load_dwordx4 s[32:35], s[0:1], 72")
    o("s_and_b32 s5, s2, 7"); o("s_lshr_b32 s5, s5, 1")
    o("s_and_b32 s6, s2, 1"); o("s_lshl_b32 s6, s6, 3"); o("s_lshr_b32 s4, s2, 5"); o("s_add_u32 s6, s6, s4")
    o("s_lshr_b32 s4, s2, 3"); o("s_and_b32 s4, s4, 3")
    o("s_lshl_b32 s3, s6, 7"); o("s_lshr_b32 s52, s5, 1"); o("s_lshl_b32 s52, s52, 6"); o("s_add_u32 s3, s3, s52")
    o("s_lshl_b32 s52, s4, 8"); o("s_and_b32 s53, s5, 1"); o("s_lshl_b32 s53, s53, 7"); o("s_add_u32 s52, s52, s53")
    o("s_sub_u32 s38, 15, s6"); o("s_min_u32 s38, s38, s6"); o("s_lshl_b32 s38, s38, 7"); o(f"s_add_u32 s38, s38, {HF_OFF}")
    o("v_and_b32 v61, 31, v1"); o("v_lshlrev_b32 v61, 2, v61")
    o(HL)
def p4_pre(Kk):
    o = Kk.op
    o("s_lshl_b32 s39, s6, 9"); o("s_lshl_b32 s53, s5, 7"); o("s_add_u32 s39, s39, s53"); o(f"s_add_u32 s39, s39, {FLG_OFF}")
    o("v_lshrrev_b32 v20, 3, v1"); o("v_and_b32 v21, 7, v1"); o("v_bfe_u32 v22, v1, 4, 2"); o("v_lshlrev_b32 v22, 1, v22")
    o("v_xor_b32 v21, v21, v22"); o("v_lshlrev_b32 v20, 10, v20"); o("v_lshl_add_u32 v48, v21, 4, v20")
    for i in range(1, 4): o(f"v_add_u32 v{48+i}, {8192*i}, v48")
    o("v_lshrrev_b32 v20, 4, v1"); o("v_bfe_u32 v21, v1, 2, 2"); o("v_lshl_add_u32 v25, v20, 2, v21")
    o("v_bfe_u32 v23, v25, 1, 2")
    o("v_lshlrev_b32 v22, 7, v25"); o("v_and_b32 v24, 3, v1"); o("v_lshl_add_u32 v22, v24, 3, v22")
    o("s_mul_i32 s47, s40, 0x3000"); o(f"s_add_u32 s47, s47, {HB}")
    o("v_add_u32 v22, s47, v22")
    for fb in range(4):
        o(f"v_xor_b32 v26, {fb}, v23"); o(f"v_lshl_add_u32 v{56+fb}, v26, 5, v22")
    for tb in range(4):
        if tb == 0: o("v_mov_b32 v52, v7")
        else: o(f"v_add_u32 v{52+tb}, {tb*NKS*1024}, v7")
    o("v_and_b32 v21, 15, v1"); o("v_lshlrev_b32 v21, 10, v21"); o("v_lshl_add_u32 v60, v20, 3, v21")
    o("s_lshr_b32 s53, s3, 4"); o(f"s_mul_i32 s53, s53, {NKS*1024}"); o(f"s_add_u32 s53, s53, {ACT_OFF + 128*1024}")
    o(f"s_mul_i32 s50, s40, {11*32768}"); o("s_add_u32 s50, s50, s52")
    o(f"s_mul_i32 s51, s40, {11*1024}"); o("s_add_u32 s51, s51, s53")
    o("s_lshl_b32 s62, s40, 4"); o("s_add_u32 s62, s62, s3"); o("s_lshl_b32 s62, s62, 10"); o("s_add_u32 s62, s62, s52")
    o("s_lshl_b32 s55, s6, 3"); o("s_lshl_b32 s53, s40, 1"); o("s_add_u32 s55, s55, s53"); o(f"s_mul_i32 s55, s55, {NKS*1024}")
    o("s_lshl_b32 s53, s5, 15"); o("s_add_u32 s55, s55, s53"); o(f"s_add_u32 s55, s55, {ACT_OFF}")
    o("s_lshl_b32 s54, s5, 20"); o("s_lshl_b32 s53, s40, 13"); o("s_add_u32 s54, s54, s53"); o("s_lshl_b32 s53, s4, 8"); o("s_add_u32 s54, s54, s53")
    o("s_lshl_b32 s53, s40, 11")
    o("s_andn2_b32 s56, s2, 6"); o("s_lshl_b32 s57, s40, 1"); o("s_or_b32 s56, s56, s57")
    o("s_lshl_b32 s57, s56, 7"); o("s_lshl_b32 s58, s5, 2"); o("s_add_u32 s57, s57, s58"); o(f"s_add_u32 s57, s57, {EXF_OFF}")
    o("s_lshl_b32 s56, s56, 16"); o("s_lshl_b32 s58, s5, 14"); o("s_add_u32 s56, s56, s58"); o(f"s_add_u32 s56, s56, {EX_OFF}")
    o("s_lshl_b32 s58, s2, 16"); o("s_lshl_b32 s59, s40, 10"); o("s_add_u32 s58, s58, s59"); o(f"s_add_u32 s58, s58, {EX_OFF}")
    o("s_lshl_b32 s59, s2, 7"); o(f"s_add_u32 s59, s59, {EXF_OFF}")
    o(f"v_subrev_u32 v27, 0x300, v{V_CNT}"); o("v_mov_b32 v28, 0"); o("ds_write_b32 v27, v28"); o("ds_write_b32 v27, v28 offset:256"); o("ds_write_b32 v27, v28 offset:512")
    Kk.srd(12, 32, SZ['w2']); Kk.srd(16, 28, SZ['x']); Kk.srd(20, 34, SZ['out']); Kk.srd(24, 30, SZ['wo'])
def p4_pre2(Kk, poll_stub):
    hc = ["v_cmp_eq_u32 vcc, 0, v16"]
    Kk.op("s_waitcnt vmcnt(1)")
    Kk.op(hc[0]); Kk.op("s_nop 0")
    poll_stub(Kk, 16, HL, hc)(Kk)
    Kk.vm = []
    for st in range(2): ems(Kk, h_load(Kk, st))

def place(n, groups):
    slots = {g: [] for g in range(-1, n)}
    return slots

def p4(Kk, poll_stub):
    o = Kk.op
    Kk.vm += ["cs"] * 8
    Kk.lg = []
    o(f"v_mov_b32 v224, v7"); o(f"v_add_u32 v225, {NKS*1024 - 1024}, v7")
    o("v_lshrrev_b32 v20, 4, v1"); o("v_and_b32 v21, 15, v1"); o("v_lshlrev_b32 v22, 1, v20"); o("v_xor_b32 v21, v21, v22")
    o("v_lshlrev_b32 v22, 10, v20"); o("v_lshl_add_u32 v226, v21, 4, v22")
    o("v_xor_b32 v21, 8, v21"); o("v_lshl_add_u32 v227, v21, 4, v22"); o("v_add_u32 v227, 0xc00, v227")
    o("v_lshlrev_b32 v22, 8, v25"); o("v_lshl_add_u32 v22, v24, 3, v22"); o("v_and_b32 v23, 7, v25")
    o("s_and_b32 s63, s40, 1"); o("s_lshl_b32 s63, s63, 2"); o("v_xor_b32 v23, s63, v23")
    for fb in range(4):
        o(f"v_xor_b32 v26, {fb}, v23"); o(f"v_lshl_add_u32 v{228+fb}, v26, 5, v22"); o(f"v_add_u32 v{236+fb}, 0x10000, v{228+fb}"); o(f"v_add_u32 v{242+fb}, 0x20000, v{228+fb}")
    o("s_lshr_b32 s63, s40, 1"); o("s_lshl_b32 s63, s63, 12"); o("v_add_u32 v232, s63, v7"); o("v_add_u32 v233, 0x10000, v232"); o("v_add_u32 v246, 0x20000, v232")
    o("v_and_b32 v63, 3, v1"); o("v_lshlrev_b32 v63, 2, v63")
    o(f"v_subrev_u32 v234, 0x300, v{V_CNT}")
    o("v_lshlrev_b32 v240, 7, v1"); o(f"v_add_u32 v241, {NKS*1024}, v240")
    o("s_waitcnt lgkmcnt(0)"); o(f"ds_add_u32 v{V_CNT}, v{V_ONE}"); Kk.lg.append(None)
    Kk.wait_vm(["H0"])
    ems(Kk, h_trr(0))
    def chk():
        b = stub_branch(Kk, 'spin')
        return [lambda Kk: Kk.lds(f"ds_read_b32 v{V_FLG}, v{V_CNT}", "F"), lambda Kk: Kk.wait_lg(["F"]), f"v_cmp_gt_u32 vcc, s{S_TGT}, v{V_FLG}", b, f"s_add_u32 s{S_TGT}, s{S_TGT}, 4"]
    def h_step(i, extra_first=(), extra=(), nxt=True, first=False):
        mf = []
        for fb in range(4):
            for tb in range(4):
                D = v(HACC + (fb*4+tb)*4, 4)
                mf.append(mfma(D, v(WFH + (i % 2)*16 + fb*4, 4), HAR(i % 3, tb), "0" if first else D))
        sl = {g: [] for g in range(-1, 16)}
        def w(Kk):
            nv = Kk.vm_after(f"H{i+1}") if nxt else Kk.vm_after(f"H{i}")
            Kk.op(f"s_waitcnt vmcnt({min(nv,63)}) lgkmcnt({Kk.lg_n([f'HT{i}'])})")
        sl[-1].append(w)
        sl[-1] += list(extra_first)
        if nxt:
            for k, e in enumerate(h_trr(i + 1)): sl[k].append(e)
        pos = 0
        for e in extra:
            sl[min(pos, 15)].append(e); pos += 1
        for g in sl:
            lst = sl[g]; new = []
            for e in lst:
                if new and isinstance(new[-1], str) and "m0," in new[-1] and callable(e): new.append("s_nop 0")
                new.append(e)
            sl[g] = new
        emit_slots(Kk, mf, sl)
    NH1 = int(os.environ.get("NH1", 5))
    pub = lambda Kk: Kk.vmem(f"buffer_store_dword v{V_ONE}, v0, {WS}, s48 offen sc1", "pub")
    tch = []
    if not os.environ.get("NOAT"):
        tch = ["s_lshl_b32 s63, s4, 13", "s_add_u32 s63, s63, s55",
               lambda Kk: Kk.vmem(f"buffer_load_dword v235, v240, {WS}, s63 offen sc1", "tc"),
               lambda Kk: Kk.vmem(f"buffer_load_dword v235, v241, {WS}, s63 offen sc1", "tc")]
    for i in range(NH1):
        ex = []
        if i + 2 < NH1: ex += h_load(Kk, i + 2)
        ef = []
        if i == 1: ef = [lambda Kk: Kk.wait_vm(["cs"]), pub]
        if i == NH1 - 3: ex += [lambda Kk: Kk.vmem(CLD, "cf")]
        if i == NH1 - 2:
            ef += [lambda Kk: Kk.wait_vm(["cf"])] + CCMP + ["s_nop 0", poll_stub(Kk, 62, CLD, CCMP)] + chk() + tch
            ex = c_fetch(0) + c_fetch(1)
        if i == NH1 - 1: ex = c_fetch(2) + c_fetch(3)
        h_step(i, ef, ex, nxt=(i + 1 < NH1), first=(i == 0))
    Kk.stamp(6)
    ems(Kk, c_fetch(4)); ems(Kk, c_fetch(5))
    Kk.wait_vm(["C2"], lgkm=0); o(f"ds_add_u32 v{V_CNT}, v{V_ONE}"); Kk.lg.append(None)
    ems(Kk, chk())
    ems(Kk, c_reads(0))
    for n_ in range(6, DIST): ems(Kk, c_fetch(n_))
    Kk.stamp(4);
    for n in range(32):
        mf = []
        for fb in range(4):
            for tb in range(4):
                D = v(CACC + (fb*4+tb)*4, 4)
                mf.append(mfma(D, v(CW + (n % 2)*16 + fb*4, 4), CAR(n % 2, tb), D if n else "0"))
        it = []
        def add(*a_, **k): it.append(Item(*a_, **k))
        def w(Kk, n=n):
            nv = Kk.vm_after(f"C{n+3}") if n + 3 < 32 else 63
            Kk.op(f"s_waitcnt vmcnt({min(nv,63)}) lgkmcnt(0)")
        add("w", w, -1, -1, cost=4, first=True)
        add("br", "s_nop 0", -1, -1, cost=0, after=[("w", 0)])
        it[-1].txt = lambda Kk: None
        if n < 30:
            add("arr", lambda Kk, n=n: Kk.lds(f"ds_add_u32 v234, v{V_ONE} offset:{(n%3)*256}"), -1, 0, after=[("w", 0)], cost=4)
        if n < 31:
            prev = "br"
            for k, e in enumerate(c_reads(n + 1)):
                add(f"r{k}", e, 0, 12, after=[(prev, 0)], cost=4); prev = f"r{k}"
        if 1 <= n < 31:
            tg = 4 * ((n - 1) // 3 + 1); off = ((n - 1) % 3) * 256
            add("fr", lambda Kk, off=off: Kk.lds(f"ds_read_b32 v{V_FLG}, v234 offset:{off}", "F"), 0, 1, cost=4)
            add("fw", lambda Kk: Kk.wait_lg(["F"]), 8, 13, after=[("fr", 6)], cost=4)
            add("cmp", f"v_cmp_gt_u32 vcc, {tg}, v{V_FLG}", 8, 14, after=[("fw", 0)])
            add("fb", stub_branch(Kk, (off, tg)), 9, 15, after=[("cmp", 1)], cost=4)
        ft = c_fetch(n + DIST) if n + DIST < 32 else (h_load(Kk, NH1 + (n - 28) // 2) if n in (28, 30) else [])
        prev = "br"
        for k, e in enumerate(ft):
            d = 1 if (k and isinstance(ft[k-1], str) and "m0," in ft[k-1]) else 0
            lo_, hi_ = 1, 15
            if len(ft) == 8 and not os.environ.get("NOSP"):
                lo_, hi_ = {0: (0, 0), 1: (1, 1), 2: (5, 5), 3: (6, 8), 4: (6, 8), 5: (9, 9), 6: (13, 13), 7: (13, 15)}[k]
            add(f"f{k}", e, lo_, hi_, after=[(prev, d)], cost=4); prev = f"f{k}"
        sl = schedule(16, it)
        FX = os.environ.get("CX", "")
        def keep(x):
            if 'a' in FX and x.txt in ("s_add_u32 s55, s55, 1024", "s_add_u32 s54, s54, 32768"): return False
            if 'd' in FX and x.name.startswith("f") and x.name != "fr" and n + DIST < 32 and callable(x.txt): Kk.vm.append(f"C{n+DIST}"); return False
            if 's' in FX and x.name in ("br",): return False
            if 'r' in FX and x.name.startswith("r"): return False
            return True
        emit_slots(Kk, mf, {g: [x.txt for x in sl[g] if keep(x)] for g in sl})
    Kk.stamp(12)
    Kk.wait_vm([f"H{NH1}"])
    ems(Kk, h_trr(NH1))
    o("s_nop 4")
    o("s_cmp_eq_u32 s40, s5"); o("s_cbranch_scc1 p4_own")
    for q in range(4):
        o(f"s_add_u32 s63, s56, {q*4096}")
        for k in range(4): o(f"buffer_store_dwordx4 {v(CACC+(q*4+k)*4,4)}, v7, {WS}, s63 offen offset:{k*1024} sc1")
    o("s_branch p4_exd")
    Kk.label("p4_own")
    for i in range(64): o(f"v_add_f32 v{HACC+i}, v{HACC+i}, v{CACC+i}")
    o("s_nop 1")
    Kk.label("p4_exd")
    mark = len(Kk.vm)
    for i in range(NH1, 11):
        ex = []; ef = []
        if i + 2 < 11: ex += h_load(Kk, i + 2)
        if i == NH1 + 1:
            ef = [lambda Kk: Kk.vmem(f"buffer_store_dword v{V_ONE}, v0, {WS}, s57 offen sc1", "pub2"), "s_mov_b32 s38, s59"]
        if i == 8: ex += [lambda Kk: Kk.vmem(ELD, "ef")]
        if i == 9: ex += [lambda Kk, fb=fb: Kk.vmem(f"buffer_load_dwordx2 {v(48+2*fb,2)}, v60, s[16:19], s62 offen offset:{fb*32}", "xr") for fb in range(4)]
        if i == 10:
            ef = [lambda Kk: Kk.wait_vm(["ef"])] + CCMP + ["s_nop 0", poll_stub(Kk, 62, ELD, CCMP)]
            def fl(Kk):
                for src in range(4):
                    o(f"s_add_u32 s63, s58, {src*16384}"); o(f"s_cmp_eq_u32 s5, {src}"); o("s_cselect_b32 s63, 0x7f000000, s63")
                    for fb in range(4):
                        if fb: o("s_add_u32 s63, s63, 4096")
                        o(f"buffer_load_dwordx4 {v(192+src*16+fb*4,4)}, v7, {WS}, s63 offen sc1")
            ef.append(fl)
        h_step(i, ef, ex, nxt=(i + 1 < 11))
    Kk.stamp(11)
    o("s_barrier")
    o("s_lshl_b32 s47, s40, 14"); o("v_add_u32 v3, s47, v7"); o("s_nop 4")
    for blk in range(16): o(f"ds_write_b128 v3, {v(HACC+blk*4,4)} offset:{blk*1024}")
    o("s_waitcnt lgkmcnt(0)")
    o("s_barrier")
    o("s_lshl_b32 s63, s40, 10"); o("v_add_u32 v3, s63, v7")
    for src in range(4):
        for fb in range(4): o(f"ds_read_b128 {v(128+src*16+fb*4,4)}, v3 offset:{src*16384 + fb*4096}")
    o("s_waitcnt vmcnt(16)")
    for fb in range(4):
        for r in range(2):
            o(f"v_lshlrev_b32 v{64+fb*4+2*r}, 16, v{48+2*fb+r}")
            o(f"v_and_b32 v{64+fb*4+2*r+1}, 0xffff0000, v{48+2*fb+r}")
    for src in range(4):
        o(f"s_waitcnt lgkmcnt({12-4*src})")
        for i in range(16): o(f"v_add_f32 v{64+i}, v{64+i}, v{128+src*16+i}")
    for src in range(4):
        o(f"s_waitcnt vmcnt({12-4*src})")
        for i in range(16): o(f"v_add_f32 v{64+i}, v{64+i}, v{192+src*16+i}")
    for fb in range(4):
        o(f"v_cvt_pk_bf16_f32 v{48+2*fb}, v{64+fb*4}, v{64+fb*4+1}")
        o(f"v_cvt_pk_bf16_f32 v{49+2*fb}, v{64+fb*4+2}, v{64+fb*4+3}")
        o(f"buffer_store_dwordx2 {v(48+2*fb,2)}, v60, s[20:23], s62 offen offset:{fb*32}")
```

```python
from gen_common import *
from lsched import Item, schedule
import struct
def fbits(x): return struct.unpack("<I", struct.pack("<f", x))[0]
MARGIN = 32.0
V_LANE = 1; V_L16 = 7
V_KA = 2; V_VA = 3; V_FET = 4; V_FET2 = 5; V_T0 = 6
V_NEG = 8; V_CNT = 9; V_ONE = 10; V_FLG = 11; V_OR = 12
V_T1 = 14
V_S = 16; V_E = 48; V_P = 56; V_NM = 72; V_TMP = 88; V_E2 = 120; V_O = 128
A_K = 16; A_V = 80; A_L = 144; A_ONE = 160; A_Z = 164
def AQ(j, ds): return j * 64 + ds * 4
def AQP(j, ds): return j * 64 + 48 + ds * 4
S_WS = 8; S_WQ = 12; S_W1 = 16; S_B1 = 20; S_FS = 24
S_WAVE = 40; S_H = 41; S_P = 42; S_G = 43; S_ROLE = 44
S_TGT = 45; S_D4 = 46; S_FT = 47
S_STK = 51; S_STV = 52; S_END = 53; S_RET = 54; S_MSK = 56
S_CTX = 64; S_T = 65
S_DST = 72; S_NF = 73; S_PH = 74; S_CTXL = 75
XOFF = 0x20000; CNTOFF = 0x27f00
def T4(tau): return 4 * (tau + 2)

def S(j, mb): return V_S + (j * 2 + mb) * 4
def O(db, j): return V_O + (j * 8 + db) * 4
def E(j): return V_E if j % 2 == 0 else V_E2
def blk_mode(ttype, j, mb):
    if ttype == 'F': return 'n'
    d = 16 * (j - mb) + (0 if ttype == 'A' else -32)
    return 'n' if d > 0 else ('d' if d == 0 else 'a')
def qk(j, cinit=True):
    out = []
    for mb in range(2):
        for ds in range(4):
            D = v(S(j, mb), 4)
            C = D if ds else (v(V_NM + 4 * j, 4) if cinit else "0")
            out.append(mfma(D, a(A_K + (mb * 4 + ds) * 4, 4), a(AQ(j, ds), 4), C))
    return out
def pv(j, c0=False):
    out = []
    for db in range(8):
        D = v(O(db, j), 4)
        out.append(mfma(D, a(A_V + db * 4, 4), v(V_P + 4 * j, 4), "0" if c0 else D))
    L = a(A_L + 4 * j, 4)
    out.append(mfma(L, a(A_ONE, 4), v(V_P + 4 * j, 4), "0" if c0 else L))
    return out
def zero_mf(js):
    out = []
    for j in js:
        out += [mfma(v(O(db, j), 4), a(A_Z, 4), a(A_Z, 4), "0") for db in range(8)] + [mfma(a(A_L + 4 * j, 4), a(A_Z, 4), a(A_Z, 4), "0")]
    return out
def mask_op(ttype, j, i):
    md = blk_mode(ttype, j, i // 4); r = i % 4; x = S(j, i // 4) + r
    if md == 'd': return f"v_cndmask_b32 v{x}, v{x}, v{V_NEG}, s[{S_MSK+2*r}:{S_MSK+2*r+1}]"
    if md == 'a': return f"v_mov_b32 v{x}, v{V_NEG}"
    return None
def ex_op(j, i, e=None): return f"v_exp_f32 v{(E(j) if e is None else e)+i}, v{S(j, i//4) + i%4}"
def cv_op(j, i, e=None):
    e = E(j) if e is None else e
    return f"v_cvt_pk_bf16_f32 v{V_P+4*j+i}, v{e+2*i}, v{e+2*i+1}"
def or_ops(j):
    P = V_P + 4 * j; R = V_OR + j // 2
    if j % 2 == 0: return [f"v_or3_b32 v{R}, v{P}, v{P+1}, v{P+2}", f"v_or_b32 v{R}, v{R}, v{P+3}"]
    return [f"v_or3_b32 v{R}, v{R}, v{P}, v{P+1}", f"v_or3_b32 v{R}, v{R}, v{P+2}, v{P+3}"]
def kread(i, reg=V_KA): return f"ds_read_b128 {a(A_K+4*i,4)}, v{reg} offset:{i*1024}"
def vread(i, reg=V_VA): return f"ds_read_b128 {a(A_V+4*i,4)}, v{reg} offset:{8192+i*1024}"
def dma(i, vreg=V_FET): return f"buffer_load_dwordx4 v{vreg}, s[{S_FS}:{S_FS+3}], s{S_FT} offen offset:{i*1024} sc1 lds"

def stub_branch(Kk, kind):
    st = Kk.newlabel("k2_st"); bk = Kk.newlabel("k2_bk")
    Kk.stubs.append((st, bk, kind))
    def f(Kk, st=st, bk=bk):
        Kk.op(f"s_cbranch_vccnz {st}"); Kk.label(bk)
    return f
def emit_stubs(Kk):
    o = Kk.op
    for st, bk, kind in Kk.stubs:
        Kk.label(st)
        if isinstance(kind, tuple):
            o("s_mov_b32 s49, 0x100000")
            Kk.label(st + "_l")
            o(f"ds_read_b32 v{V_FLG}, v234 offset:{kind[0]}")
            o("s_sub_u32 s49, s49, 1")
            o(f"s_cbranch_scc1 {bk}")
            o("s_waitcnt lgkmcnt(0)")
            o(f"v_cmp_gt_u32 vcc, {kind[1]}, v{V_FLG}")
            o(f"s_cbranch_vccnz {st}_l")
        elif kind == 'spin' or kind == 'spin2':
            o("s_mov_b32 s49, 0x100000")
            Kk.label(st + "_l")
            o(f"ds_read_b32 v{V_FLG}, v{V_CNT if kind == 'spin' else 234}")
            o("s_sub_u32 s49, s49, 1")
            o(f"s_cbranch_scc1 {bk}")
            o("s_waitcnt lgkmcnt(0)")
            o(f"v_cmp_gt_u32 vcc, s{S_TGT if kind == 'spin' else S_D4}, v{V_FLG}")
            o(f"s_cbranch_vccnz {st}_l")
        else:
            o(f"s_call_b64 s[{S_RET}:{S_RET+1}], k2_rare{kind}")
        o(f"s_branch {bk}")

def arrive_g(Kk):
    o = Kk.op
    l1 = Kk.newlabel("k2_ag")
    o("s_waitcnt vmcnt(8) lgkmcnt(0)")
    o(f"s_cmp_lt_u32 s{S_FT}, s{S_FS+2}"); o(f"s_cbranch_scc1 {l1}")
    o("s_waitcnt vmcnt(0)")
    Kk.label(l1)
def duty_generic(Kk):
    o = Kk.op
    skip = Kk.newlabel("k2_dsk")
    o(f"s_cmp_ge_u32 s{S_FT}, s{S_FS+2}"); o(f"s_cbranch_scc1 {skip}")
    for i in range(4): o(dma(i))
    o("s_add_u32 m0, m0, 0x4000"); o("s_and_b32 m0, m0, 0x1ffff"); o(f"s_add_u32 s{S_FT}, s{S_FT}, 0x2000")
    o(f"s_cmp_lt_u32 s{S_TGT}, s{S_D4}"); o(f"s_cbranch_scc1 {skip}")
    for i in range(4): o(dma(i))
    o("s_add_u32 m0, m0, 0x4000"); o("s_and_b32 m0, m0, 0x1ffff"); o(f"s_add_u32 s{S_FT}, s{S_FT}, 0x2000")
    Kk.label(skip)
def arrive(): return ["s_waitcnt vmcnt(8) lgkmcnt(0)", f"ds_add_u32 v{V_CNT}, v{V_ONE}"]
def sync_check(Kk):
    b = stub_branch(Kk, 'spin')
    return [f"ds_read_b32 v{V_FLG}, v{V_CNT}", "s_waitcnt lgkmcnt(0)", f"v_cmp_gt_u32 vcc, s{S_TGT}, v{V_FLG}", b]
def step_update():
    return [f"s_add_i32 s{S_T+1}, s{S_TGT}, 8", f"s_cmp_ge_i32 s{S_T+1}, s{S_DST}", f"s_cselect_b32 s{S_STK}, 0x8000, s7",
            f"s_cmp_gt_i32 s{S_T+1}, s{S_DST}", f"s_cselect_b32 s{S_STV}, 0x8000, s7"]
def adv(reg, st): return [f"v_add_u32 v{reg}, {st}, v{reg}", f"v_and_b32 v{reg}, 0x1ffff, v{reg}"]
def em(Kk, lst):
    for e in lst:
        e(Kk) if callable(e) else Kk.op(e)

def period(Kk, nxt, dmode, cur='F', has_qk=True, loop=None):
    mf = []
    for st in range(4):
        if has_qk: mf += qk(st)
        if has_qk or st < 3: mf += pv((st + 1) % 4)
    n = len(mf)
    it = []
    def add(*a_, **k): it.append(Item(*a_, **k))
    W = 17 if has_qk else 9
    pv2 = 25 if has_qk else 9
    def softmax(j, tt, lo0, lo1, hi, prevcv):
        for i in range(8):
            lo = lo0 if i < 4 else lo1
            dep = []
            mk = mask_op(tt, j, i)
            if mk: add(f"mk{j}_{i}", mk, lo, hi); dep.append((f"mk{j}_{i}", 0))
            if prevcv: dep.append((f"cv{prevcv}_{i//2}", 0))
            if i: dep.append((f"ex{j}_{i-1}", 0))
            add(f"ex{j}_{i}", ex_op(j, i), lo, hi, after=dep)
        for i in range(4): add(f"cv{j}_{i}", cv_op(j, i), lo0, hi, after=[(f"ex{j}_{2*i+1}", 1), (f"ex{j}_{2*i}", 1)])
        o_ = or_ops(j)
        d0 = [(f"cv{j}_{i}", 0) for i in range(3 if j % 2 == 0 else 2)]
        if j == 1: d0.append(("or0_1", 0))
        add(f"or{j}_0", o_[0], lo0, hi, after=d0)
        add(f"or{j}_1", o_[1], lo0, hi, after=[(f"or{j}_0", 0), (f"cv{j}_3", 0), (f"cv{j}_2", 0)])
    def check(p, last, hi, extra=()):
        add(f"and{p}", f"v_and_b32 v{V_OR+p}, 0x40004000, v{V_OR+p}", -1, hi, after=[(last, 0)])
        add(f"cmp{p}", f"v_cmp_ne_u32 vcc, 0, v{V_OR+p}", -1, hi, after=[(f"and{p}", 0)] + list(extra))
        add(f"br{p}", stub_branch(Kk, p), -1, hi, after=[(f"cmp{p}", 1)], cost=4)
    softmax(3, cur, 0 if has_qk else -1, 0 if has_qk else -1, pv2 - 1, None)
    check(1, "or3_1", pv2 - 1)
    ar = arrive()
    if dmode == 'g': ar[0] = arrive_g
    if has_qk:
        add("wk0", "s_waitcnt lgkmcnt(4)", -1, -1, first=True)
        add("wk1", ar[0], 3, 3, cost=4)
    else:
        add("wk1", ar[0], 0, 0, cost=4)
    add("arr", ar[1], 0, 8, after=[("wk1", 0)])
    if dmode == 'g':
        add("duty", lambda Kk: duty_generic(Kk), 4, 30, after=[("wk1", 0)], cost=8)
    else:
        SP = int(os.environ.get("ASP", 0))
        st_ = (SP if dmode == 'd' else 2 * SP)
        for i in range(4): add(f"da{i}", dma(i), 4 + i * st_, 30 + i * st_, after=[("wk1", 0)] + ([(f"da{i-1}", min(st_, 1) * max(st_ - 2, 0))] if i else []))
        add("m0a", "s_add_u32 m0, m0, 0x4000", 4, 66, after=[("da3", 0)])
        if dmode == 'd':
            for i in range(4): add(f"db{i}", dma(i, V_FET2), 4 + (4 + i) * st_, 40 + (4 + i) * st_ if st_ else 40, after=[("m0a", 1)] + ([(f"db{i-1}", min(st_, 1) * max(st_ - 2, 0))] if i else []))
            add("m0b", "s_add_u32 m0, m0, 0x4000", 4, 66, after=[("db3", 0)])
            add("m0c", "s_and_b32 m0, m0, 0x1ffff", 4, 66, after=[("m0b", 0)])
            add("ft", f"s_add_u32 s{S_FT}, s{S_FT}, 0x4000", 4, 66, after=[("db3", 0)])
        else:
            add("m0c", "s_and_b32 m0, m0, 0x1ffff", 4, 66, after=[("m0a", 0)])
            add("ft", f"s_add_u32 s{S_FT}, s{S_FT}, 0x2000", 4, 66, after=[("da3", 0)])
    sc = sync_check(Kk)
    if has_qk:
        softmax(0, nxt, 11, 15, 57, None)
        softmax(1, nxt, 28, 32, 57, "3")
        check(0, "or1_1", 58, extra=[("sbr", 0)])
        softmax(2, nxt, 45, 49, 67, "0")
        add("sfr", sc[0], 33, 37)
        add("sfw", sc[1], 36, 40, after=[("sfr", 3)])
        add("sfc", sc[2], 36, 40, after=[("sfw", 0), ("br1", 0)])
        add("sbr", sc[3], 36, 41, after=[("sfc", 1)], cost=4)
        vr = V_KA if dmode == 'd' else V_VA
        for i in range(8):
            add(f"vr{i}", vread(i, vr), 42 + i, 50 + i, after=[("sbr", 0)] + ([(f"vr{i-1}", 0)] if i else []))
            add(f"kr{i}", kread(i), 51 + i, 58 + i, after=[("vr7", 0)] + ([(f"kr{i-1}", 0)] if i else []))
        add("wv0", "WAITL vr3", 58, 58); add("wv1", "WAITL vr7", 62, 62)
        if dmode == 'd':
            ad = adv(V_KA, "0x8000")
            add("pa0", ad[0], 58, 67, after=[("kr7", 0)]); add("pa1", ad[1], 58, 67, after=[("pa0", 0)])
        else:
            su = step_update()
            add("su0", su[0], 44, 64)
            add("su2", lambda Kk: em(Kk, su[1:3]), 44, 64, after=[("su0", 0)], cost=8)
            add("su4", lambda Kk: em(Kk, su[3:5]), 44, 64, after=[("su2", 0)], cost=8)
            ad = adv(V_KA, f"s{S_STK}") ; add("pa0", ad[0], 58, 67, after=[("kr7", 0), ("su4", 0)]); add("pa1", ad[1], 58, 67, after=[("pa0", 0)])
            ad = adv(V_VA, f"s{S_STV}") ; add("pb0", ad[0], 50, 67, after=[("vr7", 0), ("su4", 0)]); add("pb1", ad[1], 50, 67, after=[("pb0", 0)])
        tdeps = [("sfc", 0)] + ([("su0", 0)] if dmode != 'd' else []) + ([("duty", 0)] if dmode == 'g' else [])
        add("tgt", f"s_add_u32 s{S_TGT}, s{S_TGT}, 4", 42, 67, after=tdeps + [("sbr", 0)] + ([("su4", 0)] if dmode != 'd' else []))
        if loop:
            add("lc", f"s_cmp_lt_u32 s{S_TGT}, s{loop[0]}", 66, 67, after=[("tgt", 0), ("m0c", 0), ("ft", 0)])
            add("lb", f"s_cbranch_scc1 {loop[1]}", 67, 67, after=[("lc", 0), ("pa1", 0), ("or2_1", 0)] + ([("pb1", 0)] if dmode != 'd' else []))
    else:
        add("sfr", sc[0], 16, 20); add("sfw", sc[1], 20, 24, after=[("sfr", 3)]); add("sfc", sc[2], 20, 24, after=[("sfw", 0), ("br1", 0)])
        add("sbr", sc[3], 20, 25, after=[("sfc", 1)], cost=4)
        add("tgt", f"s_add_u32 s{S_TGT}, s{S_TGT}, 4", 20, 26, after=[("sbr", 0), ("duty", 0)])
        for i_, x_ in enumerate(getattr(Kk, "drn_extra", [])): add(f"dx{i_}", x_, 10, 26, after=[("duty", 0)])
    slots = schedule(n, it, verbose=True)
    seq = []
    for g in range(-1, n): seq += slots[g]
    lds = []
    for x in seq:
        if isinstance(x.txt, str) and x.txt.startswith("WAITL"):
            tgt = x.txt.split()[1]
            k = len(lds) - 1 - lds.index(tgt)
            x.txt = f"s_waitcnt lgkmcnt({min(k, 15)})"
        elif isinstance(x.txt, str) and x.txt.startswith("ds_"): lds.append(x.name)
    X = os.environ.get("XP", "")
    def keep(e):
        if not X or dmode == 'g' or callable(e): return True
        if 'c' in X and e.startswith(("v_and_b32 v1", "v_cmp_ne", "v_or")): return False
        if 'm' in X and e.startswith("buffer_load"): return False
        if 'd' in X and e.startswith("ds_read_b128"): return False
        return True
    emit_slots(Kk, mf, {g: [x.txt for x in slots[g] if keep(x.txt)] for g in slots})

def rowmax(Kk, j, dst, tmp):
    o = Kk.op
    s0, s1 = S(j, 0), S(j, 1)
    o(f"v_max3_f32 v{dst}, v{s0}, v{s0+1}, v{s0+2}")
    o(f"v_max3_f32 v{tmp}, v{s0+3}, v{s1}, v{s1+1}")
    o(f"v_max3_f32 v{dst}, v{dst}, v{s1+2}, v{s1+3}")
    o(f"v_max_f32 v{dst}, v{dst}, v{tmp}")
    o(f"v_mov_b32 v{tmp}, v{dst}")
    o("s_nop 1")
    o(f"v_permlane16_swap_b32 v{dst}, v{tmp}")
    o(f"v_max_f32 v{dst}, v{dst}, v{tmp}")
    o(f"v_mov_b32 v{tmp}, v{dst}")
    o("s_nop 1")
    o(f"v_permlane32_swap_b32 v{dst}, v{tmp}")
    o(f"v_max_f32 v{dst}, v{dst}, v{tmp}")
def softmax_plain(Kk, j, e=None):
    for i in range(8): Kk.op(ex_op(j, i, e))
    Kk.op("s_nop 0")
    for i in range(4): Kk.op(cv_op(j, i, e))
def rare(Kk, pair):
    o = Kk.op
    Kk.label(f"k2_rare{pair}")
    o("s_nop 7"); o("s_nop 7")
    T, U, F = V_TMP, V_TMP + 1, V_TMP + 2
    for j in (2 * pair, 2 * pair + 1):
        rowmax(Kk, j, T, U)
        o(f"v_add_f32 v{T}, {hex(fbits(MARGIN))}, v{T}")
        o(f"v_max_f32 v{T}, 0, v{T}")
        o(f"v_sub_f32 v{U}, 0, v{T}")
        o(f"v_exp_f32 v{F}, v{U}")
        for r in range(4): o(f"v_sub_f32 v{V_NM+4*j+r}, v{V_NM+4*j+r}, v{T}")
        for i in range(8): o(f"v_sub_f32 v{S(j, i//4)+i%4}, v{S(j, i//4)+i%4}, v{T}")
        for db in range(8):
            for r in range(4): o(f"v_mul_f32 v{O(db,j)+r}, v{O(db,j)+r}, v{F}")
        for r in range(4):
            o(f"v_accvgpr_read_b32 v{U}, a{A_L+4*j+r}")
            o(f"v_mul_f32 v{U}, v{U}, v{F}")
            o(f"v_accvgpr_write_b32 a{A_L+4*j+r}, v{U}")
        softmax_plain(Kk, j, V_TMP + 8)
    o("s_nop 1")
    o(f"s_setpc_b64 s[{S_RET}:{S_RET+1}]")

def prologue(Kk, ttype, first=False):
    o = Kk.op
    mf = []
    for j in range(4): mf += qk(j, cinit=False)
    sl = {g: [] for g in range(-1, 32)}
    sl[-1] += [arrive_g, arrive()[1]]
    mega = getattr(Kk, "mega", False)
    if first and mega:
        sl[-1][0] = "s_waitcnt vmcnt(0) lgkmcnt(0)"
        sl[21].append(f"buffer_store_dword v{V_ONE}, v15, s[{S_WS}:{S_WS+3}], s50 offen sc1")
        for i_, x_ in enumerate(getattr(Kk, "pro_extra", [])): sl[22 + i_].append(x_)
    if not first: sl[0].append(lambda Kk: duty_generic(Kk))
    sc = sync_check(Kk)
    sl[14].append(sc[0]); sl[18] += sc[1:3]; sl[19] += sc[3:]
    for i in range(8): sl[20 + i // 2].append(vread(i))
    for i in range(8): sl[24 + i].append(kread(i))
    sl[31] += step_update() + adv(V_KA, f"s{S_STK}") + adv(V_VA, f"s{S_STV}") + [f"s_add_u32 s{S_TGT}, s{S_TGT}, 4"]
    emit_slots(Kk, mf, sl)
    T, U = V_TMP, V_TMP + 1
    B = K("tmp"); ob = B.op
    for j in range(4):
        for i in range(8):
            mk = mask_op(ttype, j, i)
            if mk: ob(mk)
        rowmax(B, j, T, U)
        ob(f"v_max_f32 v{T}, 0xf149f2ca, v{T}")
        ob(f"v_add_f32 v{T}, {hex(fbits(MARGIN))}, v{T}")
        for r in range(4): ob(f"v_sub_f32 v{V_NM+4*j+r}, 0, v{T}")
        for i in range(8): ob(f"v_sub_f32 v{S(j, i//4)+i%4}, v{S(j, i//4)+i%4}, v{T}")
        if j < 3: softmax_plain(B, j)
        if j == 1:
            ob("s_waitcnt lgkmcnt(8)")
            B.lines.append("PV0")
    zm = zero_mf((1, 2, 3)); p0 = pv(0, c0=True); live = zm
    cnt = 0
    for ln in B.lines:
        if ln == "PV0": live = p0 + zm; zm = live; continue
        tx = ln.strip()
        if tx == "s_nop 1" and len(zm) >= 2: o(zm.pop(0)); o(zm.pop(0)); cnt = 0; continue
        if tx == "s_nop 0" and zm: o(zm.pop(0)); cnt = 0; continue
        o(tx); cnt += 1
        if cnt >= 5 and zm: o(zm.pop(0)); cnt = 0
    for x in zm: o(x)
    o(f"v_mov_b32 v{V_OR+1}, 0")
    if first:
        sk = Kk.newlabel("k2_nq")
        o(f"s_cmp_eq_u32 s{S_ROLE}, 0"); o(f"s_cbranch_scc1 {sk}")
        for j in range(4):
            for ds in range(4):
                if j * 4 + ds < 15: o(f"ds_read_b128 {a(AQP(j, ds), 4)}, v{V_T0} offset:{(j*4+ds)*1024}")
                else: o(f"ds_read_b128 {a(AQP(j, ds), 4)}, v{V_T1}")
        o("s_waitcnt lgkmcnt(0)")
        Kk.label(sk)

def idle(Kk, tail=False):
    if tail: em(Kk, ["s_waitcnt lgkmcnt(0)", arrive()[1]])
    else:
        em(Kk, [arrive_g, arrive()[1]])
        duty_generic(Kk)
    em(Kk, sync_check(Kk))
    Kk.op(f"s_add_u32 s{S_TGT}, s{S_TGT}, 4")

def fin(Kk):
    o = Kk.op
    em(Kk, [arrive_g, arrive()[1]])
    duty_generic(Kk)
    for j in range(4):
        R = V_TMP
        o(f"v_accvgpr_read_b32 v{R}, a{A_L+4*j}")
        o(f"s_add_u32 s{S_T+2}, s{S_CTX}, {j*NKS*1024}")
        o(f"v_rcp_f32 v{R}, v{R}")
        o("s_nop 0")
        for dp in range(4):
            Pk = V_TMP + 4 + (dp % 2) * 4 + (j % 2) * 8
            for hh in range(2):
                b = O(2 * dp + hh, j)
                for r in range(4): o(f"v_mul_f32 v{b+r}, v{b+r}, v{R}")
                o(f"v_cvt_pk_bf16_f32 v{Pk+2*hh}, v{b}, v{b+1}")
                o(f"v_cvt_pk_bf16_f32 v{Pk+2*hh+1}, v{b+2}, v{b+3}")
            o(f"buffer_store_dwordx4 {v(Pk,4)}, v{V_L16}, s[{S_WS}:{S_WS+3}], s{S_T+2} offen offset:{dp*1024} sc1")

def merge(Kk):
    o = Kk.op
    Kk.p4_pre0(Kk)
    o(f"s_mul_i32 s{S_T}, s{S_WAVE}, 0x5000"); o(f"s_xor_b32 s{S_T+1}, s{S_WAVE}, 2"); o(f"s_mul_i32 s{S_T+1}, s{S_T+1}, 0x5000")
    o(f"v_add_u32 v{V_KA}, s{S_T}, v{V_L16}"); o(f"v_add_u32 v{V_VA}, s{S_T+1}, v{V_L16}")
    o(f"s_cmp_eq_u32 s{S_ROLE}, 0"); o(f"s_cselect_b32 s{S_T}, 0x7f000000, s48"); o(f"s_cselect_b32 s48, s48, s36")
    o(f"v_mov_b32 v{V_FLG}, 1")
    ML = V_TMP
    for j in range(4):
        o(f"v_mov_b32 v{ML+j}, v{V_NM+4*j}")
    for j in range(4):
        o(f"v_accvgpr_read_b32 v{ML+4+j}, a{A_L+4*j}")
    o(f"buffer_store_dwordx2 v[{V_ONE}:{V_ONE+1}], v0, s[{S_WS}:{S_WS+3}], s{S_T} offen sc1")
    o("s_waitcnt lgkmcnt(0)")
    o(f"ds_write_b128 v{V_KA}, {v(ML,4)} offset:16384")
    o(f"ds_write_b128 v{V_KA}, {v(ML+4,4)} offset:17408")
    o(f"s_cmp_eq_u32 s{S_ROLE}, 0")
    o("s_cbranch_scc0 k2_mg_h")
    def send(lo):
        pre = K("tmp"); pre.stubs = Kk.stubs; pre.pstubs = Kk.pstubs; pre._lab = Kk._lab + 1000 * (1 + lo)
        Kk.p4_pre(pre)
        pl = list(pre.lines)
        per = (len(pl) + 15) // 16
        for j in range(4):
            for d in range(4):
                o(f"ds_write_b128 v{V_KA}, {v(O(lo+d, j),4)} offset:{(j*4+d)*1024}")
                for x in pl[:per]: Kk.lines.append(x)
                pl = pl[per:]
        Kk.p4_pre2(Kk)
    def combine(keep):
        o("s_waitcnt lgkmcnt(0)")
        o("s_barrier")
        PM = V_TMP + 8
        o(f"ds_read_b128 {v(PM,4)}, v{V_VA} offset:16384")
        o(f"ds_read_b128 {v(PM+4,4)}, v{V_VA} offset:17408")
        other = 4 - keep
        for j in range(4):
            for d in range(4): o(f"ds_read_b128 {v(O(other+d, j),4)}, v{V_VA} offset:{(j*4+d)*1024}")
        o("s_waitcnt lgkmcnt(14)")
        FA, FB = V_TMP + 16, V_TMP + 20
        for j in range(4):
            t = V_TMP + 24
            o(f"v_min_f32 v{t}, v{ML+j}, v{PM+j}")
            o(f"v_sub_f32 v{FA+j}, v{t}, v{ML+j}")
            o(f"v_sub_f32 v{FB+j}, v{t}, v{PM+j}")
            o(f"v_exp_f32 v{FA+j}, v{FA+j}")
            o(f"v_exp_f32 v{FB+j}, v{FB+j}")
            o("s_nop 0")
            o(f"v_mul_f32 v{t}, v{ML+4+j}, v{FA+j}")
            o(f"v_fmac_f32 v{t}, v{PM+4+j}, v{FB+j}")
            o(f"v_rcp_f32 v{t}, v{t}")
            o("s_nop 0")
            o(f"v_mul_f32 v{FA+j}, v{FA+j}, v{t}")
            o(f"v_mul_f32 v{FB+j}, v{FB+j}, v{t}")
        for j in range(4):
            o(f"s_waitcnt lgkmcnt({12-4*j})")
            o(f"s_add_u32 s{S_T+2}, s{S_CTX}, {j*NKS*1024 + (keep//2)*1024}")
            for dp in range(2):
                Pk = V_TMP + 28 + (dp % 2) * 4
                for hh in range(2):
                    b = O(keep + 2*dp + hh, j); c = O(other + 2*dp + hh, j)
                    for r in range(4):
                        o(f"v_mul_f32 v{b+r}, v{b+r}, v{FA+j}")
                        o(f"v_fmac_f32 v{b+r}, v{c+r}, v{FB+j}")
                    o(f"v_cvt_pk_bf16_f32 v{Pk+2*hh}, v{b}, v{b+1}")
                    o(f"v_cvt_pk_bf16_f32 v{Pk+2*hh+1}, v{b+2}, v{b+3}")
                o(f"buffer_store_dwordx4 {v(Pk,4)}, v{V_L16}, s[{S_WS}:{S_WS+3}], s{S_T+2} offen offset:{dp*1024} sc1")
                o("s_nop 0")
    send(4); combine(0)
    o("s_branch k2_done")
    Kk.label("k2_mg_h")
    send(0); combine(4)

def attention(Kk):
    o = Kk.op
    o(f"s_lshl_b32 s{S_T}, s{S_P}, 2"); o(f"s_add_u32 s{S_T}, s{S_T}, s{S_WAVE}"); o(f"s_cmp_eq_u32 s{S_T}, 2")
    o("s_cbranch_scc1 k2_proA")
    prologue(Kk, 'F', first=True)
    if not getattr(Kk, 'mega', False): Kk.stamp(6)
    o(f"s_lshl_b32 s{S_T+1}, s{S_G}, 2"); o(f"s_add_u32 s{S_NF}, s{S_T+1}, {T4(32)}")
    o(f"s_lshl_b32 s{S_T}, s{S_P}, 1"); o(f"s_add_u32 s{S_T}, s{S_T}, s{S_G}"); o(f"s_cmp_eq_u32 s{S_T}, 14"); o(f"s_cselect_b32 s{S_NF}, {T4(31)}, s{S_NF}")
    o(f"s_lshl_b32 s{S_T}, s{S_G}, 3"); o(f"s_add_u32 s{S_T}, s{S_T}, s{S_D4}"); o(f"s_sub_u32 s{S_T}, s{S_T}, 28")
    o(f"s_cmp_eq_u32 s{S_ROLE}, 0"); o(f"s_cselect_b32 s{S_NF}, s{S_NF}, s{S_T}")
    o(f"s_min_u32 s{S_END}, s{S_NF}, s{S_D4}")
    o(f"s_cmp_ge_u32 s{S_TGT}, s{S_END}"); o("s_cbranch_scc1 k2_sdone")
    o(".p2align 3")
    Kk.label("k2_sloop")
    period(Kk, 'F', 's', loop=(S_END, "k2_sloop"))
    Kk.label("k2_sdone")
    if not getattr(Kk, 'mega', False): Kk.stamp(11)
    Kk.label("k2_dentry")
    o(f"s_cmp_ge_u32 s{S_TGT}, s{S_NF}"); o("s_cbranch_scc1 k2_ddone")
    o(".p2align 3")
    Kk.label("k2_dloop")
    period(Kk, 'F', 'd', loop=(S_NF, "k2_dloop"))
    o(f"v_mov_b32 v{V_VA}, v{V_KA}")
    Kk.label("k2_ddone")
    if not getattr(Kk, 'mega', False): Kk.stamp(12)
    o(f"s_cmp_eq_u32 s{S_PH}, 1"); o("s_cbranch_scc1 k2_perB")
    period(Kk, 'A', 'g')
    o(f"s_cmp_eq_u32 s{S_NF}, {T4(31)}"); o("s_cbranch_scc1 k2_perB")
    o(f"s_cmp_eq_u32 s{S_ROLE}, 1"); o("s_cbranch_scc1 k2_perB")
    period(Kk, None, 'g', cur='A', has_qk=False)
    o("s_branch k2_tail")
    Kk.label("k2_proA")
    prologue(Kk, 'A', first=True)
    Kk.label("k2_perB")
    period(Kk, 'B', 'g')
    Kk.label("k2_drnB")
    period(Kk, None, 'g', cur='B', has_qk=False)
    o(f"s_cmp_eq_u32 s{S_ROLE}, 0"); o("s_cbranch_scc1 k2_tail")
    o(f"s_cmp_eq_u32 s{S_PH}, 1"); o("s_cbranch_scc1 k2_tail")
    Kk.stamp(7)
    fin(Kk)
    for j in range(4):
        for ds in range(4):
            for r in range(4): o(f"v_accvgpr_mov_b32 a{AQ(j, ds)+r}, a{AQP(j, ds)+r}")
    for j in range(4):
        for r in range(4): o(f"v_mov_b32 v{V_NM+4*j+r}, 0x7149f2ca")
    em(Kk, sync_check(Kk))
    o(f"s_add_u32 s{S_TGT}, s{S_TGT}, 4")
    Kk.stamp(8)
    o(f"s_mov_b32 s{S_PH}, 1"); o(f"s_mov_b32 s{S_CTX}, s{S_CTXL}")
    Kk.label("k2_hidle")
    o(f"s_add_u32 s{S_T}, s{S_TGT}, 4"); o(f"s_cmp_ge_u32 s{S_T}, s{S_D4}"); o("s_cbranch_scc1 k2_hset")
    idle(Kk)
    o("s_branch k2_hidle")
    Kk.label("k2_hset")
    o(f"s_lshl_b32 s{S_T}, s{S_P}, 1"); o(f"s_add_u32 s{S_T}, s{S_T}, s{S_G}"); o(f"s_cmp_eq_u32 s{S_T}, 14"); o("s_cbranch_scc0 k2_hgo")
    for x in zero_mf((0, 1, 2, 3)): o(x)
    o("s_waitcnt vmcnt(0)")
    o("s_branch k2_tail")
    Kk.label("k2_hgo")
    o(f"s_lshl_b32 s{S_T}, s{S_D4}, 12"); o(f"s_add_u32 s{S_T}, s{S_T}, 0x1c000"); o(f"s_and_b32 s{S_T}, s{S_T}, 0x1ffff")
    o(f"v_add_u32 v{V_KA}, s{S_T}, v{V_L16}")
    for i in range(8): o(kread(i))
    em(Kk, adv(V_KA, "0x8000")); o(f"v_mov_b32 v{V_VA}, v{V_KA}")
    o(f"s_mov_b32 s{S_DST}, -1000")
    o(f"s_lshl_b32 s{S_T+1}, s{S_G}, 2"); o(f"s_add_u32 s{S_NF}, s{S_T+1}, {T4(32)}")
    o(f"s_cmp_eq_u32 s{S_P}, 7"); o("s_cbranch_scc1 k2_proB")
    prologue(Kk, 'F')
    o("s_branch k2_dentry")
    Kk.label("k2_proB")
    prologue(Kk, 'B')
    o("s_branch k2_drnB")
    Kk.label("k2_tail")
    o(f"s_cmp_gt_u32 s{S_TGT}, {T4(34)}"); o("s_cbranch_scc1 k2_merge")
    idle(Kk, tail=True)
    o("s_branch k2_tail")
    Kk.label("k2_merge")
    Kk.stamp(9)
    merge(Kk)
    Kk.label("k2_done")
```

```python
from gen_common import *

def ln_rows(Kk, vb):
    o = Kk.op
    X = [vb + 8, vb + 16]
    T = [vb + 24, vb + 25]
    U = [vb + 26, vb + 27]
    M = [vb + 28, vb + 29]
    for r in range(2):
        for i in range(4):
            o(f"v_lshlrev_b32 v{X[r]+2*i}, 16, v{vb+4*r+i}")
            o(f"v_and_b32 v{X[r]+2*i+1}, 0xffff0000, v{vb+4*r+i}")
    def reduce64(src):
        for ctl in ("quad_perm:[1,0,3,2]", "quad_perm:[2,3,0,1]", "row_half_mirror", "row_mirror"):
            o("s_nop 1")
            for r in range(2):
                o(f"v_add_f32_dpp v{src[r]}, v{src[r]}, v{src[r]} {ctl} row_mask:0xf bank_mask:0xf")
        for sw in ("v_permlane16_swap_b32", "v_permlane32_swap_b32"):
            for r in range(2): o(f"v_mov_b32 v{U[r]}, v{src[r]}")
            o("s_nop 1")
            for r in range(2): o(f"{sw} v{src[r]}, v{U[r]}")
            for r in range(2): o(f"v_add_f32 v{src[r]}, v{src[r]}, v{U[r]}")
    for r in range(2):
        o(f"v_add_f32 v{T[r]}, v{X[r]}, v{X[r]+1}")
    for i in range(2, 8):
        for r in range(2):
            o(f"v_add_f32 v{T[r]}, v{T[r]}, v{X[r]+i}")
    reduce64(T)
    for r in range(2):
        o(f"v_mul_f32 v{M[r]}, 0x3b000000, v{T[r]}")
    for i in range(8):
        for r in range(2):
            o(f"v_sub_f32 v{U[r]}, v{X[r]+i}, v{M[r]}")
            if i == 0: o(f"v_mul_f32 v{T[r]}, v{U[r]}, v{U[r]}")
            else: o(f"v_fmac_f32 v{T[r]}, v{U[r]}, v{U[r]}")
    reduce64(T)
    for r in range(2):
        o(f"v_mul_f32 v{T[r]}, 0x3b000000, v{T[r]}")
        o(f"v_cvt_pk_bf16_f32 v{T[r]}, v{T[r]}, v{M[r]}")
    for r in range(2):
        o(f"v_and_b32 v{M[r]}, 0xffff0000, v{T[r]}")
        o(f"v_lshlrev_b32 v{T[r]}, 16, v{T[r]}")
        o(f"v_add_f32 v{T[r]}, 0x3727c5ac, v{T[r]}")
        o(f"v_cvt_pk_bf16_f32 v{T[r]}, v{T[r]}, v{T[r]}")
        o(f"v_and_b32 v{T[r]}, 0xffff0000, v{T[r]}")
        o(f"v_sqrt_f32 v{T[r]}, v{T[r]}")
    o("s_nop 0")
    for r in range(2):
        o(f"v_cvt_pk_bf16_f32 v{T[r]}, v{T[r]}, v{T[r]}")
        o(f"v_and_b32 v{T[r]}, 0xffff0000, v{T[r]}")
        o(f"v_rcp_f32 v{T[r]}, v{T[r]}")
    for r in range(2):
        for i in range(8):
            o(f"v_sub_f32 v{X[r]+i}, v{X[r]+i}, v{M[r]}")
        for i in range(4):
            o(f"v_cvt_pk_bf16_f32 v{vb+4*r+i}, v{X[r]+2*i}, v{X[r]+2*i+1}")
        for i in range(4):
            o(f"v_lshlrev_b32 v{X[r]+2*i}, 16, v{vb+4*r+i}")
            o(f"v_and_b32 v{X[r]+2*i+1}, 0xffff0000, v{vb+4*r+i}")
        for i in range(8):
            o(f"v_mul_f32 v{X[r]+i}, v{X[r]+i}, v{T[r]}")
        for i in range(4):
            o(f"v_cvt_pk_bf16_f32 v{vb+4*r+i}, v{X[r]+2*i}, v{X[r]+2*i+1}")

V_LANE = 1; V_ACTOFF = 2; V_DMA = 3
V_TR = 8
V_ST = 7
V_SHW = 54; V_SHR = 56; V_XNST = 58
V_WF = 16
V_ACC = 64
V_PK = 192

def proj_setup_addrs(Kk, rowstride, vdma=V_DMA):
    o = Kk.op
    o(f"v_lshrrev_b32 v48, 3, v{V_LANE}")
    o(f"v_and_b32 v49, 7, v{V_LANE}")
    o(f"v_bfe_u32 v50, v{V_LANE}, 4, 1")
    o(f"v_lshlrev_b32 v50, 1, v50")
    o(f"v_xor_b32 v49, v49, v50")
    o(f"v_xor_b32 v51, 4, v49")
    o(f"s_mov_b32 s76, {rowstride}")
    o(f"v_mul_lo_u32 v48, v48, s76")
    for i in range(4):
        o(f"v_lshl_add_u32 v{vdma+i}, v{49 if i % 2 == 0 else 51}, 4, v48")
        if i: o(f"v_add_u32 v{vdma+i}, {8*i*rowstride}, v{vdma+i}")

def proj_setup_tr(Kk):
    o = Kk.op
    o(f"v_lshrrev_b32 v48, 4, v{V_LANE}")
    o(f"v_bfe_u32 v49, v{V_LANE}, 2, 2")
    o(f"v_lshl_add_u32 v50, v48, 3, v49")
    o(f"v_lshlrev_b32 v50, 7, v50")
    o(f"v_and_b32 v51, 1, v{V_LANE}")
    o(f"v_lshl_add_u32 v50, v51, 3, v50")
    o(f"v_bfe_u32 v51, v{V_LANE}, 1, 1")
    o(f"v_lshl_add_u32 v50, v51, 4, v50")
    o(f"v_bfe_u32 v51, v{V_LANE}, 3, 1")
    o(f"v_bfe_u32 v52, v{V_LANE}, 4, 1")
    o(f"v_lshl_or_b32 v51, v52, 1, v51")
    for fb in range(4):
        o(f"v_xor_b32 v52, {fb}, v51")
        o(f"v_lshl_add_u32 v{V_TR+fb}, v52, 5, v50")
        o(f"v_add_u32 v{V_TR+4+fb}, 0x10000, v{V_TR+fb}")

def tr_reads(stage, fb):
    slot = stage % 8
    base = V_TR + (4 if slot >= 4 else 0) + fb
    out = []
    for ksl in range(4):
        for rd in range(2):
            off = (slot % 4) * 16384 + ksl * 4096 + rd * 512
            out.append(f"ds_read_b64_tr_b16 {v(V_WF + (fb % 2) * 16 + ksl * 4 + rd * 2, 2)}, v{base} offset:{off}")
    return out

def dma_stage(stage, srd, s_soff, s_ldsw, vdma=V_DMA):
    out = []
    for i in range(4):
        out.append(f"s_add_u32 m0, s{s_ldsw}, {(stage % 8) * 16384 + i * 1024}")
        out.append(lambda Kk, i=i: Kk.vmem(f"buffer_load_dwordx4 v{vdma+i}, s[{srd}:{srd+3}], s{s_soff} offen lds", f"W{stage}"))
    return out

def gen_k1():
    Kk = K("k1_kernel")
    o = Kk.op
    kernel_header(Kk, Kk.name)
    o("s_cmp_ge_u32 s2, 256")
    o("s_cbranch_scc1 k1_exit")
    if STAMPS:
        for i in range(16): o(f"s_mov_b32 s{80+i}, 0")
    Kk.stamp(0)
    o("s_load_dwordx4 s[28:31], s[0:1], 0")
    o("s_load_dwordx4 s[32:35], s[0:1], 24")
    o("s_load_dwordx2 s[36:37], s[0:1], 96")
    o(f"v_and_b32 v{V_LANE}, 63, v0")
    o("v_lshrrev_b32 v48, 6, v0")
    o(f"v_lshlrev_b32 v{V_ST}, 4, v{V_LANE}")
    o("v_readfirstlane_b32 s40, v48")
    o("s_and_b32 s41, s2, 7"); o("s_lshl_b32 s41, s41, 2")
    o("s_lshr_b32 s42, s2, 3"); o("s_and_b32 s42, s42, 3"); o("s_add_u32 s41, s41, s42")
    o("s_lshr_b32 s42, s2, 5")
    o("s_lshl_b32 s43, s42, 8"); o("s_lshl_b32 s44, s40, 6"); o("s_add_u32 s43, s43, s44")
    o(f"v_lshrrev_b32 v48, 3, v{V_LANE}"); o(f"v_and_b32 v49, 7, v{V_LANE}")
    o("v_lshlrev_b32 v50, 10, v48"); o(f"v_lshl_add_u32 v{V_ACTOFF}, v49, 4, v50")
    o("s_lshl_b32 s44, s40, 13"); o("s_add_u32 s44, s44, 0x20000")
    o(f"v_lshrrev_b32 v50, 4, v{V_LANE}"); o("v_xor_b32 v49, v49, v50")
    o("v_lshlrev_b32 v48, 7, v48"); o("v_add_u32 v48, s44, v48")
    o(f"v_lshl_add_u32 v{V_SHW}, v49, 4, v48"); o(f"v_xor_b32 v{V_SHW+1}, 64, v{V_SHW}")
    o(f"v_and_b32 v48, 15, v{V_LANE}"); o("v_lshrrev_b32 v49, 1, v48"); o("v_xor_b32 v49, v49, v50")
    o("v_lshlrev_b32 v48, 7, v48"); o("v_add_u32 v48, s44, v48")
    o(f"v_lshl_add_u32 v{V_SHR}, v49, 4, v48"); o(f"v_xor_b32 v{V_SHR+1}, 64, v{V_SHR}")
    o(f"v_lshrrev_b32 v48, 2, v{V_LANE}"); o(f"v_and_b32 v49, 3, v{V_LANE}")
    o("v_lshlrev_b32 v48, 10, v48"); o(f"v_lshl_add_u32 v{V_XNST}, v49, 8, v48")
    proj_setup_addrs(Kk, 8192)
    proj_setup_tr(Kk)
    o("s_waitcnt lgkmcnt(0)")
    Kk.srd(8, 30, SZ['c']); Kk.srd(12, 32, SZ['wuk']); Kk.srd(16, 34, SZ['wuv']); Kk.srd(20, 36, SZ['ws']); Kk.srd(24, 28, SZ['x'])
    o("s_lshl_b32 s45, s2, 3"); o("s_lshl_b32 s46, s40, 1"); o("s_add_u32 s45, s45, s46"); o("s_lshl_b32 s45, s45, 10")
    LNB = 224
    Kk.vmem(f"buffer_load_dwordx4 {v(LNB,4)}, v{V_ST}, s[24:27], s45 offen", "x")
    Kk.vmem(f"buffer_load_dwordx4 {v(LNB+4,4)}, v{V_ST}, s[24:27], s45 offen offset:1024", "x")
    o("s_lshl_b32 s47, s40, 12")
    o("s_lshl_b32 s48, s40, 18"); o("s_lshl_b32 s49, s41, 8"); o("s_add_u32 s48, s48, s49")
    for i in range(8):
        o(f"s_add_u32 s{68+i}, s43, {8*i}"); o(f"s_lshl_b32 s{68+i}, s{68+i}, 10")
    o("s_lshr_b32 s50, s45, 14"); o("s_lshl_b32 s50, s50, 14")
    o("s_lshr_b32 s51, s45, 6"); o("s_and_b32 s51, s51, 0xf0"); o("s_add_u32 s50, s50, s51")
    o("s_lshl_b32 s54, s41, 19"); o("s_lshl_b32 s55, s43, 8"); o("s_add_u32 s54, s54, s55")
    o(f"s_add_u32 s55, s54, {VF_OFF}"); o(f"s_add_u32 s54, s54, {KF_OFF}")

    def stage_w(n):
        G, q = n // 4, n % 4
        return (12 if G < 2 else 16), q * 128 * 8192 + (G % 2) * 128
    def issue_w(n, sreg):
        srd, off = stage_w(n)
        return [f"s_add_u32 s{sreg}, s48, {off}"] + dma_stage(n, srd, sreg, 47)
    def areg(u, i):
        return a(((i // 2) * 16 + 2 * u + (i % 2)) * 4, 4)
    def act_loads(q):
        out = []
        for u in (2 * q, 2 * q + 1):
            for i in range(8):
                out.append(lambda Kk, u=u, i=i: Kk.vmem(
                    f"buffer_load_dwordx4 {areg(u, i)}, v{V_ACTOFF}, s[8:11], s{68+i} offen offset:{u*128}", f"A{u}"))
        return out
    def shuffle(u):
        out = [lambda Kk, u=u: Kk.wait_vm([f"A{u}"])]
        for i in range(8):
            out.append(f"ds_write_b128 v{V_SHW + i % 2}, {areg(u, i)} offset:{i*1024}")
        for i in range(8):
            out.append(f"ds_read_b128 {areg(u, i)}, v{V_SHR + i % 2} offset:{(i//2)*2048}")
        return out
    def em(lst):
        prev_m0 = False
        for e in lst:
            if callable(e):
                if prev_m0: o("s_nop 0")
                e(Kk); prev_m0 = False
            else:
                o(e); prev_m0 = e.startswith("s_add_u32 m0")
    em(issue_w(0, 56)); em(act_loads(0)); em(issue_w(1, 56)); em(act_loads(1))
    em(act_loads(2)); em(issue_w(2, 56)); em(act_loads(3)); em(issue_w(3, 56))
    code_prefetch(Kk, "k1_exit", 48, 58, 18000)
    Kk.stamp(1)
    Kk.wait_vm(["x"])
    Kk.stamp(2)
    ln_rows(Kk, LNB)
    Kk.stamp(3)
    Kk.vmem(f"buffer_store_dwordx4 {v(LNB,4)}, v{V_XNST}, s[20:23], s50 offen", "xs")
    Kk.vmem(f"buffer_store_dwordx4 {v(LNB+4,4)}, v{V_XNST}, s[20:23], s50 offen offset:16", "xs")
    em(shuffle(0)); em(shuffle(1))
    Kk.wait_vm(["W0"])
    o("s_barrier")
    Kk.stamp(4)
    for e in tr_reads(0, 0): o(e)

    def epilogue(G):
        acc = V_ACC + (G % 2) * 64
        gi = G % 2
        out = []
        n = 0
        if G < 2:
            for tb in range(4):
                out.append(f"s_add_u32 s57, s54, {tb*4096 + gi*2048}")
                for dsl in range(2):
                    P = V_PK + (n % 8) * 4; n += 1
                    for hh in range(2):
                        b = acc + ((2*dsl+hh)*4 + tb) * 4
                        out += [f"v_mul_f32 v{b+r}, 0x3e0293ee, v{b+r}" for r in range(4)]
                        out.append(f"v_cvt_pk_bf16_f32 v{P+2*hh}, v{b}, v{b+1}")
                        out.append(f"v_cvt_pk_bf16_f32 v{P+2*hh+1}, v{b+2}, v{b+3}")
                    out.append(lambda Kk, P=P, dsl=dsl: Kk.vmem(f"buffer_store_dwordx4 {v(P,4)}, v{V_ST}, s[20:23], s57 offen offset:{dsl*1024}", "st"))
        else:
            for tp in range(2):
                out.append(f"s_add_u32 s57, s55, {tp*8192 + gi*4096}")
                for fb in range(4):
                    P = V_PK + (n % 8) * 4; n += 1
                    for hh in range(2):
                        b = acc + (fb*4 + 2*tp+hh) * 4
                        out.append(f"v_cvt_pk_bf16_f32 v{P+2*hh}, v{b}, v{b+1}")
                        out.append(f"v_cvt_pk_bf16_f32 v{P+2*hh+1}, v{b+2}, v{b+3}")
                    out.append(lambda Kk, P=P, fb=fb: Kk.vmem(f"buffer_store_dwordx4 {v(P,4)}, v{V_ST}, s[20:23], s57 offen offset:{fb*1024}", "st"))
        return out

    NST = 16
    pending_epi = []
    for n in range(NST):
        G, q = n // 4, n % 4
        acc = V_ACC + (G % 2) * 64
        mf = []
        for fb in range(4):
            for tb in range(4):
                for ksl in range(4):
                    D = v(acc + (fb*4+tb)*4, 4)
                    W = v(V_WF + (fb % 2)*16 + ksl*4, 4)
                    X = a((tb*16 + 4*q + ksl)*4, 4)
                    C = "0" if (q == 0 and ksl == 0) else D
                    mf.append(mfma(D, W, X, C) if G < 2 else mfma(D, X, W, C))
        slots = {}
        def put(i, e): slots.setdefault(i, []).append(e)
        put(-1, "s_waitcnt lgkmcnt(0)")
        if G == 0 and q < 3:
            for u, p0 in ((2*q+2, 24), (2*q+3, 40)):
                sh = shuffle(u)
                for i, e in enumerate(sh): put(p0 + i // 2 if p0 + i // 2 < p0 + 7 else p0 + 6, e)
        for fb in range(3):
            for i, e in enumerate(tr_reads(n, fb + 1)): put(fb*16 + i, e)
            if fb < 2: put(fb*16 + 15, "s_waitcnt lgkmcnt(0)")
        if n + 1 < NST:
            put(47, lambda Kk, n=n: Kk.wait_vm([f"W{n+1}"], lgkm=0))
            put(47, "s_barrier")
            for i, e in enumerate(tr_reads(n + 1, 0)): put(48 + i, e)
        else:
            put(47, "s_waitcnt lgkmcnt(0)")
        dm = []
        if n == 0: dm = issue_w(4, 56) + issue_w(5, 56)
        elif n == 1: dm = issue_w(6, 56) + issue_w(7, 56) + issue_w(8, 56)
        elif n + 7 < NST: dm = issue_w(n + 7, 56)
        pos = 8
        for e in dm:
            put(pos, e); pos += 1
            if pos % 16 == 0: pos += 8
        if q == 0 and G > 0: pending_epi = epilogue(G - 1)
        if pending_epi:
            take = pending_epi[:50]; pending_epi = pending_epi[50:]
            p0 = 10 if q == 0 else 0
            for i, e in enumerate(take): put(p0 + i, e)
        emit_slots(Kk, mf, slots)
        if n < 4: Kk.stamp(5 + n)
        elif q == 3: Kk.stamp(8 + G)
    assert not pending_epi
    o("s_nop 7")
    for e in epilogue(3):
        e(Kk) if callable(e) else o(e)
    Kk.stamp(12)
    if STAMPS: o("s_waitcnt vmcnt(0)")
    Kk.stamp(13)
    Kk.stamp_flush(0, 40, 36)
    Kk.label("k1_exit")
    o("s_endpgm")
    kernel_desc(Kk, Kk.name, vgpr=512, accum=256)
    return Kk
```

```python
from att import *
from gen_k1 import ln_rows
LOG2E = 1.4426950408889634
KSCALE = 0x3e0293ee
S_XN = 3; S_WQB = 4; S_W1B = 5; S_LDSW = 6
S_C = 28; S_WUK = 32; S_WUV = 36; S_DBG = 96
S_KST = 50; S_VST = 51; S_STT = 52; S_WKB = 53; S_AO = 56
VQ, VH, TR = 48, 52, 8
V_ACT = 3; V_SIG = 6; V_SHW = 56; V_SHR = 58; V_XNST = 60
WF = 16; BIAS = 176
SC1 = " sc1"
KVSC = os.environ.get("KVSC", " sc1")
if KVSC == "none": KVSC = ""

class Sched:
    def __init__(self, n): self.n = n; self.slots = {i: [] for i in range(-1, n)}; self.cost = {i: 0 for i in range(-1, n)}
    def c(self, e):
        if callable(e): return getattr(e, "cost", 4)
        return 8 if e.startswith(("v_exp", "v_rcp", "v_sqrt", "s_nop 1")) else 4
    def put(self, i, e): self.slots[i].append(e); self.cost[i] += self.c(e)

def poll_stub(Kk, reg, load_txt, cmp_ops):
    st = Kk.newlabel("mg_ps"); bk = Kk.newlabel("mg_pb")
    Kk.pstubs.append((st, bk, load_txt, cmp_ops))
    def f(Kk):
        Kk.op(f"s_cbranch_vccnz {st}"); Kk.label(bk)
    return f
def emit_pstubs(Kk):
    o = Kk.op
    for st, bk, ld, cmp_ops in Kk.pstubs:
        Kk.label(st)
        o("s_mov_b32 s49, 0x4000")
        Kk.label(st + "_l")
        o("s_sleep 12")
        o(ld)
        o("s_sub_u32 s49, s49, 1")
        o("s_waitcnt vmcnt(0)")
        o(f"s_cbranch_scc1 {bk}")
        for c in cmp_ops: o(c)
        o("s_nop 0")
        o(f"s_cbranch_vccnz {st}_l")
        o(f"s_branch {bk}")

def gen_mega(name):
    Kk = K(name)
    Kk.pstubs = []
    o = Kk.op
    kernel_header(Kk, Kk.name)
    o("s_cmp_ge_u32 s2, 256")
    o("s_cbranch_scc1 mg_exit")
    if STAMPS:
        for i in range(16): o(f"s_mov_b32 s{80+i}, 0")
    Kk.stamp(0)
    o("s_load_dwordx16 s[64:79], s[0:1], 0")
    o("s_load_dwordx2 s[54:55], s[0:1], 64")
    o("s_load_dwordx4 s[56:59], s[0:1], 88")
    o(f"v_and_b32 v{V_LANE}, 63, v0")
    o("v_lshrrev_b32 v62, 6, v0")
    o(f"v_lshlrev_b32 v{V_L16}, 4, v{V_LANE}")
    o(f"v_readfirstlane_b32 s{S_WAVE}, v62")
    o(f"s_and_b32 s{S_H}, s2, 7"); o(f"s_lshl_b32 s{S_H}, s{S_H}, 2")
    o(f"s_lshr_b32 s3, s2, 3"); o(f"s_and_b32 s3, s3, 3"); o(f"s_add_u32 s{S_H}, s{S_H}, s3")
    o(f"s_lshr_b32 s{S_P}, s2, 5")
    o(f"s_and_b32 s{S_G}, s{S_WAVE}, 1"); o(f"s_lshr_b32 s{S_ROLE}, s{S_WAVE}, 1")
    o(f"v_lshrrev_b32 v61, 3, v{V_LANE}"); o(f"v_and_b32 v62, 7, v{V_LANE}")
    o(f"s_lshl_b32 s3, s{S_WAVE}, 15"); o("s_mov_b32 s7, s3")
    o(f"v_lshrrev_b32 v63, 4, v{V_LANE}"); o("v_xor_b32 v16, v62, v63")
    o("v_lshlrev_b32 v17, 10, v61")
    o(f"v_lshl_add_u32 v{V_SHW}, v16, 4, v17"); o(f"v_xor_b32 v{V_SHW+1}, 64, v{V_SHW}")
    o(f"v_and_b32 v16, 15, v{V_LANE}"); o("v_lshrrev_b32 v17, 1, v16"); o("v_xor_b32 v17, v17, v63")
    o("v_lshlrev_b32 v16, 7, v16"); o("v_add_u32 v16, s3, v16")
    o(f"v_lshl_add_u32 v{V_SHR}, v17, 4, v16"); o(f"v_xor_b32 v{V_SHR+1}, 64, v{V_SHR}")
    o(f"v_lshrrev_b32 v16, 2, v{V_LANE}"); o(f"v_and_b32 v17, 3, v{V_LANE}")
    o("v_lshlrev_b32 v16, 10, v16"); o(f"v_lshl_add_u32 v{V_XNST}, v17, 8, v16")
    o(f"v_bfe_u32 v16, v{V_LANE}, 4, 1"); o("v_lshlrev_b32 v16, 1, v16"); o("v_xor_b32 v16, v62, v16"); o("v_xor_b32 v17, 4, v16")
    for base, stride in ((VQ, 8192), (VH, 2752)):
        o(f"v_mul_u32_u24 v18, {stride}, v61")
        for i in range(4):
            o(f"v_lshl_add_u32 v{base+i}, v{16 if i % 2 == 0 else 17}, 4, v18")
            if i: o(f"v_add_u32 v{base+i}, {8*i*stride}, v{base+i}")
    o(f"s_lshr_b32 s3, s{S_H}, 1"); o(f"s_sub_u32 s3, s3, s{S_H}"); o("s_lshl_b32 s3, s3, 6"); o("s_add_u32 s3, s3, 1984")
    o("v_bfe_u32 v18, v16, 2, 1"); o("v_mul_lo_u32 v19, v18, s3"); o("v_sub_u32 v18, s3, v19")
    for i in range(4): o(f"v_add_u32 v{VH+i}, v{19 if i % 2 == 0 else 18}, v{VH+i}")
    o(f"v_bfe_u32 v16, v{V_LANE}, 2, 2"); o("v_lshl_add_u32 v17, v63, 3, v16"); o("v_lshlrev_b32 v17, 7, v17")
    o(f"v_and_b32 v18, 3, v{V_LANE}"); o("v_lshl_add_u32 v17, v18, 3, v17"); o("s_nop 0")
    o(f"v_bfe_u32 v18, v{V_LANE}, 3, 1"); o(f"v_bfe_u32 v19, v{V_LANE}, 4, 1"); o("v_lshl_or_b32 v18, v19, 1, v18")
    for fb in range(4):
        o(f"v_xor_b32 v19, {fb}, v18"); o(f"v_lshl_add_u32 v{TR+fb}, v19, 5, v17")
    for tb in range(4):
        if tb: o(f"v_add_u32 v{12+tb}, {tb*NKS*1024}, v{V_L16}")
        else: o(f"v_mov_b32 v12, v{V_L16}")
    o(f"s_lshl_b32 s3, s{S_G}, 12"); o(f"v_add_u32 v{V_FET}, s3, v{V_L16}"); o(f"v_add_u32 v{V_FET2}, 0x2000, v{V_FET}")
    o(f"s_lshl_b32 s48, s{S_WAVE}, 12")
    o(f"v_lshlrev_b32 v2, 3, v63")
    o(f"v_lshlrev_b32 v16, 2, v{V_LANE}"); o(f"v_add_u32 v16, {CNTOFF}, v16"); o("v_mov_b32 v17, 0"); o("ds_write_b32 v16, v17")
    o("v_cmp_eq_u32 vcc, 0, v0"); o("v_mov_b32 v16, 0x7f000000"); o("s_nop 0"); o(f"v_cndmask_b32 v{V_SIG}, v16, v17, vcc")
    o("s_waitcnt lgkmcnt(0)")
    if os.environ.get('STG') == '99': Kk.stamp(1, force=True)
    Kk.srd(S_WS, 58, SZ['ws']); Kk.srd(S_C, 66, SZ['c']); Kk.srd(S_WUK, 70, SZ['wuk']); Kk.srd(S_WUV, 72, SZ['wuv'])
    Kk.srd(S_FS, 64, SZ['x'])
    Kk.srd(S_WQ, 68, SZ['wq']); Kk.srd(S_W1, 78, SZ['w1']); Kk.srd(S_B1, 54, SZ['b1']); Kk.srd(S_DBG, 56, 256)
    LNB = 192
    o(f"s_lshl_b32 s{S_T}, s2, 3"); o(f"s_lshl_b32 s{S_T+1}, s{S_WAVE}, 1"); o(f"s_add_u32 s{S_T}, s{S_T}, s{S_T+1}"); o(f"s_lshl_b32 s{S_T}, s{S_T}, 10")
    Kk.vmem(f"buffer_load_dwordx4 {v(LNB,4)}, v{V_L16}, s[{S_FS}:{S_FS+3}], s{S_T} offen", "x")
    Kk.vmem(f"buffer_load_dwordx4 {v(LNB+4,4)}, v{V_L16}, s[{S_FS}:{S_FS+3}], s{S_T} offen offset:1024", "x")
    if os.environ.get('STG') == '99': Kk.stamp(2, force=True)
    o(f"s_lshr_b32 s70, s{S_T}, 14"); o("s_lshl_b32 s70, s70, 14"); o(f"s_lshr_b32 s{S_T}, s{S_T}, 6"); o(f"s_and_b32 s{S_T}, s{S_T}, 0xf0"); o(f"s_add_u32 s70, s70, s{S_T}")
    o(f"s_lshl_b32 s{S_T}, s{S_P}, 8"); o(f"s_lshl_b32 s{S_T+1}, s{S_WAVE}, 6"); o(f"s_add_u32 s{S_T}, s{S_T}, s{S_T+1}")
    for i in range(8):
        o(f"s_add_u32 s{S_AO+i}, s{S_T}, {8*i}"); o(f"s_lshl_b32 s{S_AO+i}, s{S_AO+i}, 10")
    o(f"s_lshl_b32 s{S_KST}, s{S_H}, 19"); o(f"s_lshl_b32 s{S_T}, s{S_T}, 8"); o(f"s_add_u32 s{S_KST}, s{S_KST}, s{S_T}")
    o(f"s_add_u32 s{S_VST}, s{S_KST}, {VF_OFF}"); o(f"s_add_u32 s{S_KST}, s{S_KST}, {KF_OFF}")
    o(f"s_lshl_b32 s{S_WQB}, s{S_WAVE}, 18"); o(f"s_lshl_b32 s{S_T}, s{S_H}, 8"); o(f"s_add_u32 s{S_WQB}, s{S_WQB}, s{S_T}")
    o(f"s_mul_i32 s{S_W1B}, s{S_WAVE}, {32*2752}"); o(f"s_lshl_b32 s{S_T}, s{S_H}, 6"); o(f"s_add_u32 s{S_W1B}, s{S_W1B}, s{S_T}")
    o(f"s_lshl_b32 s{S_LDSW}, s{S_ROLE}, 14"); o(f"s_lshl_b32 s{S_T}, s{S_G}, 12"); o(f"s_add_u32 s{S_LDSW}, s{S_LDSW}, s{S_T}")

    NS = 28
    GR = [('K', 64, 4), ('K', 128, 4), ('V', 192, 4), ('V', 64, 4), ('H', 128, 3), ('Q', 192, 4), ('Q', 64, 4)]
    VO = int(os.environ.get('VORD', 1))
    VORD = [[(2,0),(2,1),(2,2),(2,3),(3,0),(3,1),(3,2),(3,3)], [(2,0),(2,1),(2,2),(3,0),(2,3),(3,1),(3,2),(3,3)], [(2,0),(2,1),(3,0),(3,1),(2,2),(3,2),(2,3),(3,3)]][VO]
    ST = [(0,0),(1,0),(0,1),(1,1),(0,2),(1,2),(0,3),(1,3), ] + VORD + [(G, q) for G in (4, 5, 6) for q in range(4)]
    R8 = not os.environ.get("NOR8")
    def wslot(n): return (n + 1) % 4 if (n < 12 or not R8) else [4, 5, 6, 7, 1, 2, 3, 0][(n - 12) % 8]
    def issue_w(n):
        G, q = ST[n]
        if G == 4: srd, sb, off, vd = S_W1, S_W1B, q * 128 * 2752, VH
        else:
            srd = [S_WUK, S_WUK, S_WUV, S_WUV, None, S_WQ, S_WQ][G]
            sb, off, vd = S_WQB, q * 128 * 8192 + ((G % 2) if G < 4 else (G - 5)) * 128, VQ
        out = [f"s_add_u32 s{S_T+4}, s{sb}, {off}"]
        for i in range(4):
            out.append(f"s_add_u32 m0, s{S_LDSW}, {(wslot(n) % 4) * 32768 + (0x2000 if wslot(n) < 4 else 0) + i * 1024}")
            out.append(lambda Kk, i=i: Kk.vmem(f"buffer_load_dwordx4 v{vd+i}, s[{srd}:{srd+3}], s{S_T+4} offen lds", f"W{n}"))
        return out
    def areg(u, i): return a(((i // 2) * 16 + 2 * u + (i % 2)) * 4, 4)
    def c_loads(u):
        out = []
        for i in range(8):
            out.append(f"s_add_u32 m0, s7, {(u % 2) * 16384 + i * 1024}")
            out.append(lambda Kk, i=i: Kk.vmem(f"buffer_load_dwordx4 v{V_SHW + i % 2}, s[{S_C}:{S_C+3}], s{S_AO+i} offen lds", f"A{u}"))
        out += [f"v_add_u32 v{V_SHW}, 0x80, v{V_SHW}", f"v_add_u32 v{V_SHW+1}, 0x80, v{V_SHW+1}"]
        if u >= 2: out = [lambda Kk: Kk.wait_lg([f"S{u-2}"])] + out
        return out
    def shuffle(u):
        out = [lambda Kk: Kk.wait_vm([f"A{u}"])]
        out += [lambda Kk, i=i: Kk.lds(f"ds_read_b128 {areg(u, i)}, v{V_SHR + i % 2} offset:{(u % 2) * 16384 + (i//2)*2048}", f"S{u}") for i in range(8)]
        return out
    def xn_loads(q, tbs):
        out = []
        for tb in tbs:
            out.append(f"s_add_u32 s{S_T+5}, s{S_XN}, {tb*16384 + q*4096}")
            for k in range(4):
                out.append(lambda Kk, tb=tb, k=k: Kk.vmem(f"buffer_load_dwordx4 {a((tb*16+4*q+k)*4,4)}, v{V_L16}, s[{S_WS}:{S_WS+3}], s{S_T+5} offen offset:{k*1024}{SC1}", f"X{q}"))
        return out
    def fill(slot, kind):
        lab = Kk.newlabel("mg_fs")
        def f(Kk):
            o(f"s_cmp_lg_u32 s{S_ROLE}, {kind}"); o(f"s_cbranch_scc1 {lab}")
            o(f"s_add_u32 m0, s48, {slot*16384}"); o(f"s_mov_b32 s{S_T+6}, {slot*8192}")
            for i in range(4): o(f"buffer_load_dwordx4 v{V_FET}, s[{S_FS}:{S_FS+3}], s{S_T+6} offen offset:{i*1024}{SC1} lds")
            Kk.label(lab)
        f.cost = 8
        return [f]
    def ems(lst):
        prev = False
        for e in lst:
            if callable(e):
                if prev: o("s_nop 0")
                e(Kk); prev = False
            else:
                o(e); prev = "m0," in e
    half = [0, 0, 0, 0]
    def trr(n, fb, buf):
        hi = 1 if wslot(n) % 4 >= 2 else 0
        out = []
        if half[fb] != hi:
            out.append(f"v_xor_b32 v{TR+fb}, 0x10000, v{TR+fb}"); half[fb] = hi
        return out + [lambda Kk, ksl=ksl, rd=rd: Kk.lds(f"ds_read_b64_tr_b16 {v((WF + buf*16 if buf < 2 else 192) + ksl*4 + rd*2, 2)}, v{TR+fb} offset:{(wslot(n) % 2)*32768 + (0x2000 if wslot(n) < 4 else 0) + (ksl//2)*16384 + (ksl%2)*4096 + rd*512}", f"T{n}_{fb}")
                for ksl in range(4) for rd in range(2)]
    def signal(dw, val_reg):
        return lambda Kk: Kk.vmem(f"buffer_atomic_add v{val_reg}, v{V_SIG}, s[{S_DBG}:{S_DBG+3}], s{dw} offen", "sig")

    TD = 236
    o(f"v_lshlrev_b32 v232, 10, v{V_LANE}")
    o(f"v_lshlrev_b32 v233, 13, v{V_LANE}")
    o(f"v_mul_u32_u24 v234, 2752, v{V_LANE}")
    TV = int(os.environ.get("TV", 0))
    def mall0():
        o("s_lshl_b32 s68, s2, 2"); o(f"s_add_u32 s68, s68, s{S_WAVE}"); o("s_lshl_b32 s69, s68, 12"); o("s_lshl_b32 s68, s68, 11")
        o(f"v_and_b32 v238, 31, v{V_LANE}"); o("v_lshlrev_b32 v238, 7, v238"); o("v_and_b32 v239, 0x7ff, v238")
        Kk.vmem(f"buffer_load_dword v{TD}, v239, s[{S_C}:{S_C+3}], s68 offen", "pf")
        Kk.vmem(f"buffer_load_dword v{TD}, v238, s[{S_WUK}:{S_WUK+3}], s69 offen", "pf")
    if TV == 1: mall0()
    o("s_lshr_b32 s66, s2, 3"); o("s_lshl_b32 s66, s66, 16"); o(f"s_lshl_b32 s67, s{S_WAVE}, 7"); o("s_add_u32 s66, s66, s67")
    o(f"s_lshl_b32 s67, s{S_P}, 19"); o(f"s_lshl_b32 s68, s{S_H}, 8"); o("s_add_u32 s67, s67, s68"); o(f"s_lshl_b32 s68, s{S_G}, 7"); o("s_add_u32 s67, s67, s68")
    o(f"s_cmp_lg_u32 s{S_ROLE}, 0"); o("s_cbranch_scc1 mg_t1")
    o(f"buffer_load_dword v{TD}, v232, s[{S_C}:{S_C+3}], s66 offen")
    o("s_branch mg_t2")
    Kk.label("mg_t1")
    o(f"s_cmp_lg_u32 s{S_G}, 0"); o("s_cbranch_scc1 mg_t3")
    o(f"v_and_b32 v235, 15, v{V_LANE}"); o("v_lshlrev_b32 v235, 13, v235"); o(f"v_bfe_u32 v237, v{V_LANE}, 4, 1"); o("v_lshl_add_u32 v235, v237, 7, v235")
    o(f"s_lshl_b32 s68, s{S_P}, 17"); o(f"s_lshl_b32 s69, s{S_H}, 8"); o("s_add_u32 s68, s68, s69")
    o(f"buffer_load_dword v{TD}, v235, s[{S_WUK}:{S_WUK+3}], s68 offen")
    o("s_branch mg_t2")
    Kk.label("mg_t3")
    if os.environ.get("TLBW"):
        o(f"v_lshlrev_b32 v235, 20, v{V_LANE}")
        for srd_ in (S_WQ, S_W1, S_WUV): o(f"buffer_load_dword v{TD}, v235, s[{srd_}:{srd_+3}], 0 offen")
    o("s_getpc_b64 s[68:69]")
    Kk.label("mg_pc")
    o("s_lshr_b32 s71, s2, 3"); o("s_mul_i32 s71, s71, 2560")
    o(f"v_min_u32 v235, 19, v{V_LANE}"); o("v_lshlrev_b32 v235, 7, v235"); o("v_add_u32 v235, s71, v235")
    o("v_min_u32 v235, mg_exit-mg_pc, v235")
    o(f"global_load_dword v{TD}, v235, s[68:69]")
    Kk.label("mg_t2")
    Kk.vm.append("pf")
    o("s_mov_b32 s54, s66"); o("s_mov_b32 s49, s67")
    if TV == 2: mall0()
    PRE = int(os.environ.get("PRE", 8))
    first = issue_w(0) + c_loads(0)
    cut = [i for i, e in enumerate(first) if callable(e)][PRE - 1] + 1 if PRE else 0
    ems(first[:cut])
    o(f"s_lshl_b32 s71, s{S_WAVE}, 5"); o(f"s_add_u32 s71, s71, {XOFF}")
    o(f"v_lshlrev_b32 v224, 7, v{V_LANE}"); o("v_add_u32 v224, s71, v224")
    o(f"s_lshl_b32 s71, s{S_WAVE}, 11"); o(f"s_add_u32 s71, s71, {XOFF}"); o(f"v_add_u32 v225, s71, v{V_L16}")
    o(f"v_lshrrev_b32 v226, 5, v{V_LANE}"); o("v_lshlrev_b32 v226, 10, v226"); o(f"v_bfe_u32 v227, v{V_LANE}, 3, 2"); o("v_lshl_add_u32 v226, v227, 8, v226")
    o(f"v_and_b32 v227, 7, v{V_LANE}"); o("v_lshl_add_u32 v226, v227, 4, v226")
    o("s_lshr_b32 s52, s2, 1"); o("s_lshl_b32 s52, s52, 14"); o("s_and_b32 s71, s2, 1"); o("s_lshl_b32 s71, s71, 7"); o("s_add_u32 s52, s52, s71")
    o(f"s_lshl_b32 s71, s{S_WAVE}, 12"); o("s_add_u32 s52, s52, s71")
    o(f"s_sub_u32 s{S_T}, 15, s{S_P}"); o(f"s_cmp_eq_u32 s{S_ROLE}, 0"); o(f"s_cselect_b32 s{S_T+1}, s{S_T}, s{S_P}")
    o(f"s_lshl_b32 s{S_T+1}, s{S_T+1}, 3"); o(f"s_lshl_b32 s{S_T+2}, s{S_G}, 2"); o(f"s_add_u32 s{S_T+1}, s{S_T+1}, s{S_T+2}")
    o(f"s_lshl_b32 s{S_T}, s{S_T}, 3"); o(f"s_add_u32 s{S_T}, s{S_T}, s{S_T+2}")
    o(f"s_lshl_b32 s{S_T+2}, s{S_H}, 12"); o(f"s_add_u32 s{S_T+2}, s{S_T+2}, {ACT_OFF}")
    o(f"s_mul_i32 s{S_CTX}, s{S_T+1}, {NKS*1024}"); o(f"s_add_u32 s{S_CTX}, s{S_CTX}, s{S_T+2}")
    o(f"s_mul_i32 s{S_CTXL}, s{S_T}, {NKS*1024}"); o(f"s_add_u32 s{S_CTXL}, s{S_CTXL}, s{S_T+2}")
    o(f"s_lshl_b32 s{S_XN}, s{S_T+1}, 14")
    o(f"s_mul_i32 s{S_T+5}, s{S_T+1}, {NKS*1024}"); o(f"s_add_u32 s{S_T+5}, s{S_T+5}, {ACT_OFF + 128*1024}")
    o(f"s_lshl_b32 s{S_T+4}, s{S_H}, 10"); o(f"s_add_u32 s76, s{S_T+5}, s{S_T+4}")
    o(f"s_and_b32 s{S_T+3}, s{S_H}, 1"); o(f"s_mul_i32 s{S_T+3}, s{S_T+3}, {2*NKS*1024}"); o(f"s_add_u32 s{S_T+5}, s{S_T+5}, s{S_T+3}")
    o(f"s_lshr_b32 s{S_T+3}, s{S_H}, 1"); o(f"s_lshl_b32 s{S_T+4}, s{S_T+3}, 10"); o(f"s_add_u32 s{S_T+5}, s{S_T+5}, s{S_T+4}"); o(f"s_add_u32 s{S_T+5}, s{S_T+5}, {32*1024}")
    o(f"s_cmp_lt_u32 s{S_H}, 22"); o(f"s_cselect_b32 s77, s{S_T+5}, 0x7f000000")
    o(f"s_lshl_b32 s78, s{S_T+3}, 6"); o("s_add_u32 s78, s78, 2048")
    o(f"s_lshl_b32 s{S_T+3}, s{S_P}, 2"); o(f"s_sub_u32 s79, 64, s{S_T+3}"); o(f"s_lshl_b32 s{S_D4}, s{S_P}, 4"); o(f"s_add_u32 s{S_D4}, s{S_D4}, 32")
    o(f"s_lshl_b32 s{S_T+3}, s{S_H}, 19")
    o(f"s_cmp_eq_u32 s{S_ROLE}, 0"); o(f"s_mov_b32 s{S_T+5}, {VF_OFF - 16384}"); o(f"s_cselect_b32 s{S_T+4}, {KF_OFF}, s{S_T+5}"); o(f"s_cselect_b32 s{S_T+5}, 0, 16384")
    o(f"s_add_u32 s{S_T+4}, s{S_T+4}, s{S_T+3}"); o(f"s_add_u32 s{S_FS}, s{S_WS}, s{S_T+4}"); o(f"s_addc_u32 s{S_FS+1}, s{S_WS+1}, 0")
    o(f"s_lshl_b32 s{S_FS+2}, s79, 13"); o(f"s_add_u32 s{S_FS+2}, s{S_FS+2}, s{S_T+5}")
    o("s_and_b32 s72, s2, 1"); o("s_lshl_b32 s72, s72, 7")
    o(f"s_lshl_b32 s47, s{S_H}, 7"); o(f"s_add_u32 s47, s47, {KVF_OFF}"); o(f"s_lshl_b32 s73, s{S_P}, 2"); o("s_add_u32 s74, s47, s73")
    o(f"s_lshl_b32 s45, s{S_P}, 7"); o(f"s_lshl_b32 s73, s{S_H}, 2"); o("s_add_u32 s45, s45, s73"); o(f"s_add_u32 s45, s45, {HF_OFF}")
    o(f"s_lshl_b32 s{S_T+2}, s{S_H}, 4"); o(f"s_lshl_b32 s{S_T+3}, s{S_G}, 3"); o(f"s_add_u32 s{S_T+2}, s{S_T+2}, s{S_T+3}"); o(f"s_add_u32 s{S_T+2}, s{S_T+2}, {FLG_OFF}")
    o(f"s_lshr_b32 s{S_T+1}, s{S_T+1}, 3"); o(f"s_lshl_b32 s{S_T+1}, s{S_T+1}, 9"); o(f"s_add_u32 s{S_WKB}, s{S_T+1}, s{S_T+2}")
    o(f"s_lshr_b32 s{S_T}, s{S_T}, 3"); o(f"s_lshl_b32 s{S_T}, s{S_T}, 9"); o(f"s_add_u32 s79, s{S_T}, s{S_T+2}"); o("s_add_u32 s79, s79, 4")
    o(f"v_cmp_eq_u32 vcc, 0, v{V_LANE}"); o("v_mov_b32 v62, 0x7f000000"); o("v_mov_b32 v63, 0"); o(f"v_cndmask_b32 v{V_XNST}, v62, v63, vcc")
    o("v_mov_b32 v61, 1"); o("s_nop 0"); o("v_mov_b32 v228, 0"); o("v_mov_b32 v229, 0"); o("v_mov_b32 v230, 0"); o("v_mov_b32 v231, 0")
    o(f"v_and_b32 v62, 7, v{V_LANE}"); o("v_lshlrev_b32 v62, 2, v62")
    if os.environ.get('STG') == '99': Kk.stamp(3, force=True)
    ems(first[cut:])
    if os.environ.get('STG') == '99': Kk.stamp(4, force=True)
    ems(c_loads(1))
    def r2(Kk):
        o(f"s_cmp_lg_u32 s{S_ROLE}, 0"); o("s_cbranch_scc1 mg_t4")
        o(f"buffer_load_dword v{TD}, v233, s[{S_WUK}:{S_WUK+3}], s49 offen")
        o("s_branch mg_t5")
        Kk.label("mg_t4")
        o(f"buffer_load_dword v{TD}, v232, s[{S_C}:{S_C+3}], s54 offen")
        Kk.label("mg_t5")
        Kk.vm.append("pf")
    r2.cost = 7
    r3 = lambda Kk: Kk.vmem(f"buffer_load_dword v{TD}, v232, s[{S_C}:{S_C+3}], s54 offen offset:512", "pf")
    R2E = int(os.environ.get("R2E", 0))
    if R2E: r2(Kk)
    ems(issue_w(1))
    if os.environ.get('STG') == '99': Kk.stamp(5, force=True)
    ems(shuffle(0)); ems(shuffle(1))
    if os.environ.get('STG') == '99': Kk.stamp(6, force=True)
    if os.environ.get('STG') == '99': Kk.stamp(7, force=True)
    LB = K("ln"); ln_rows(LB, LNB)
    queueL = [lambda Kk: Kk.wait_vm(["x"])] + [x_.strip() for x_ in LB.lines] + [lambda Kk: Kk.lds(f"ds_write_b128 v224, {v(LNB,4)}", "XW"), lambda Kk: Kk.lds(f"ds_write_b128 v224, {v(LNB+4,4)} offset:16", "XW")]
    xnst = [lambda Kk: Kk.lds(f"ds_read_b128 {v(LNB,4)}, v225", "XR"), lambda Kk: Kk.lds(f"ds_read_b128 {v(LNB+4,4)}, v225 offset:1024", "XR"),
            ("at", 8), lambda Kk: Kk.wait_lg(["XR"]),
            lambda Kk: Kk.vmem(f"buffer_store_dwordx4 {v(LNB,4)}, v226, s[{S_WS}:{S_WS+3}], s52 offen{SC1}", "xs"),
            lambda Kk: Kk.vmem(f"buffer_store_dwordx4 {v(LNB+4,4)}, v226, s[{S_WS}:{S_WS+3}], s52 offen offset:2048{SC1}", "xs")]
    flagz = [lambda Kk: Kk.vmem(f"buffer_store_dwordx2 v[228:229], v{V_XNST}, s[{S_WS}:{S_WS+3}], s{S_WKB} offen{SC1}", "xs"),
             lambda Kk: Kk.vmem(f"buffer_store_dword v228, v{V_SIG}, s[{S_WS}:{S_WS+3}], s74 offen{SC1}", "xs"),
             lambda Kk: Kk.vmem(f"buffer_store_dword v228, v{V_SIG}, s[{S_WS}:{S_WS+3}], s45 offen{SC1}", "xs"),
             f"s_lshl_b32 s{S_T+6}, s2, 7", f"s_add_u32 s{S_T+6}, s{S_T+6}, {EXF_OFF}",
             lambda Kk: Kk.vmem(f"buffer_store_dwordx4 v[228:231], v{V_SIG}, s[{S_WS}:{S_WS+3}], s{S_T+6} offen{SC1}", "xs")]
    def touch(role, srd, vreg, sreg):
        lab = Kk.newlabel("mg_tc")
        def f(Kk):
            o(f"s_cmp_lg_u32 s{S_ROLE}, {role}"); o(f"s_cbranch_scc1 {lab}")
            o(f"buffer_load_dword v63, v{vreg}, s[{srd}:{srd+3}], s{sreg} offen")
            Kk.label(lab)
        f.cost = 7
        return f
    Kk.wait_vm(["W0"])
    o("s_barrier")
    Kk.stamp(3)
    if os.environ.get('STG') == '99': Kk.stamp(12, force=True)
    ems(trr(0, 0, 0))

    def kv_epilogue(G):
        kind, acc, _ = GR[G]; gi = G % 2
        out = []
        if kind == 'K':
            for tb in range(4):
                out.append(f"s_add_u32 s{S_STT}, s{S_KST}, {tb*4096 + gi*2048}")
                for dsl in range(2):
                    q0 = acc + ((2*dsl)*4 + tb)*4; q1 = acc + ((2*dsl+1)*4 + tb)*4
                    out += [f"v_mul_f32 v{x+r}, {hex(KSCALE)}, v{x+r}" for x in (q0, q1) for r in range(4)]
                    out += [f"v_cvt_pk_bf16_f32 v{q0}, v{q0}, v{q0+1}", f"v_cvt_pk_bf16_f32 v{q0+1}, v{q0+2}, v{q0+3}",
                            f"v_cvt_pk_bf16_f32 v{q0+2}, v{q1}, v{q1+1}", f"v_cvt_pk_bf16_f32 v{q0+3}, v{q1+2}, v{q1+3}"]
                    out.append(lambda Kk, q0=q0, dsl=dsl: Kk.vmem(f"buffer_store_dwordx4 {v(q0,4)}, v{V_L16}, s[{S_WS}:{S_WS+3}], s{S_STT} offen offset:{dsl*1024}{KVSC}", f"st{G}"))
        else:
            for tp in range(2):
                out.append(f"s_add_u32 s{S_STT}, s{S_VST}, {tp*8192 + gi*4096}")
                for fb in range(4):
                    q0 = acc + (fb*4 + 2*tp)*4; q1 = q0 + 4
                    out += [f"v_cvt_pk_bf16_f32 v{q0}, v{q0}, v{q0+1}", f"v_cvt_pk_bf16_f32 v{q0+1}, v{q0+2}, v{q0+3}",
                            f"v_cvt_pk_bf16_f32 v{q0+2}, v{q1}, v{q1+1}", f"v_cvt_pk_bf16_f32 v{q0+3}, v{q1+2}, v{q1+3}"]
                    out.append(lambda Kk, q0=q0, fb=fb: Kk.vmem(f"buffer_store_dwordx4 {v(q0,4)}, v{V_L16}, s[{S_WS}:{S_WS+3}], s{S_STT} offen offset:{fb*1024}{KVSC}", f"st{G}"))
        if os.environ.get("NOST"): out = [e for e in out if not callable(e)] + [lambda Kk: Kk.vm.append(f"st{G}")]
        for e in out:
            if callable(e): e.store = True; e.grp = G
        return out
    def HB_(fb, tb): return 128 + ((fb*4 + tb) if fb < 2 else (8 + (fb-2)*2 + tb)) * 4
    def h_epilogue():
        out = []
        T0, T1 = 56, 176
        R4 = range(4)
        def mish(b):
            o_ = []
            o_ += [f"v_mul_f32 v{T0+r}, {hex(fbits(LOG2E))}, v{b+r}" for r in R4]
            o_ += [f"v_min_f32 v{T0+r}, {hex(fbits(20*LOG2E))}, v{T0+r}" for r in R4]
            o_ += [f"v_exp_f32 v{T0+r}, v{T0+r}" for r in R4]
            o_ += [f"v_add_f32 v{T1+r}, 2.0, v{T0+r}" for r in R4]
            o_ += [f"v_mul_f32 v{b+r}, v{b+r}, v{T0+r}" for r in R4]
            o_ += [f"v_mul_f32 v{b+r}, v{b+r}, v{T1+r}" for r in R4]
            o_ += [f"v_fma_f32 v{T1+r}, v{T0+r}, v{T1+r}, 2.0" for r in R4]
            o_ += [f"v_rcp_f32 v{T1+r}, v{T1+r}" for r in R4]
            o_ += [f"v_mul_f32 v{b+r}, v{b+r}, v{T1+r}" for r in R4]
            return o_
        for (f0, tb, sreg) in [(0, 0, 76), (0, 1, 76), (0, 2, 76), (0, 3, 76), (2, 0, 77), (2, 1, 77)]:
            q0, q1 = HB_(f0, tb), HB_(f0 + 1, tb)
            out += mish(q0) + mish(q1)
            out += [f"v_cvt_pk_bf16_f32 v{q0}, v{q0}, v{q0+1}", f"v_cvt_pk_bf16_f32 v{q0+1}, v{q0+2}, v{q0+3}",
                    f"v_cvt_pk_bf16_f32 v{q0+2}, v{q1}, v{q1+1}", f"v_cvt_pk_bf16_f32 v{q0+3}, v{q1+2}, v{q1+3}"]
            out.append(lambda Kk, q0=q0, tb=tb, sreg=sreg: Kk.vmem(f"buffer_store_dwordx4 {v(q0,4)}, v{12+tb}, s[{S_WS}:{S_WS+3}], s{sreg} offen{SC1}", "hs"))
        return out
    def q_pack(acc):
        out = []
        for tb in range(4):
            for dsl in range(2):
                q0 = acc + ((2*dsl)*4 + tb)*4; q1 = acc + ((2*dsl+1)*4 + tb)*4
                out += [f"v_cvt_pk_bf16_f32 v{q0}, v{q0}, v{q0+1}", f"v_cvt_pk_bf16_f32 v{q0+1}, v{q0+2}, v{q0+3}",
                        f"v_cvt_pk_bf16_f32 v{q0+2}, v{q1}, v{q1+1}", f"v_cvt_pk_bf16_f32 v{q0+3}, v{q1+2}, v{q1+3}"]
        return out
    def q_move(acc, half):
        return [f"v_accvgpr_write_b32 a{AQ(tb, 2*half+dsl)+r}, v{acc + ((2*dsl)*4 + tb)*4 + r}" for tb in range(4) for dsl in range(2) for r in range(4)]
    def poll(ld, cmp_ops, tag):
        def issue(Kk):
            l = Kk.newlabel("mg_pw")
            o(f"s_cmp_lg_u32 s{S_WAVE}, 0"); o(f"s_cbranch_scc1 {l}")
            o(ld); Kk.label(l)
            Kk.vm.append(None); Kk.vm.pop(); Kk.pollmark = len(Kk.vm)
        def chk(Kk):
            l = Kk.newlabel("mg_pw")
            o(f"s_cmp_lg_u32 s{S_WAVE}, 0"); o(f"s_cbranch_scc1 {l}")
            o(f"s_waitcnt vmcnt({min(63, len(Kk.vm) - Kk.pollmark)})")
            for c in cmp_ops: o(c)
            o("s_nop 0")
            poll_stub(Kk, V_ACT, ld, cmp_ops)(Kk)
            Kk.label(l)
        issue.cost = 8; chk.cost = 8
        return issue, [chk]

    queue = []
    bufc = 0
    SIG = int(os.environ.get('SIG', 21))
    B1R = [56, 58, 2]; LNS = int(os.environ.get('LNS', 3)); XS_ = LNS + int(os.environ.get('XSD', 3))
    DONE_ = {ST.index((3, 0)): 0, 13: 1, 16: 2, SIG - 1: 3}
    gpos = 0; last_st = -100; PACE = int(os.environ.get('PACE', 20))
    for n in range(NS):
        G, q = ST[n]
        kind, acc, nfb = GR[G]
        mf = []; bufs = []; mf_alt = None
        if kind == 'H':
            bufs = [bufc, 1 - bufc, bufc, 2]
            def hm(par):
                m_ = []
                for fb in range(4):
                    for tbl in range(4 if fb < 2 else 2):
                        tb = tbl if fb < 2 else 2 * par + tbl
                        for ksl in range(4):
                            D = v(HB_(fb, tbl), 4)
                            C = D if (q or ksl) else v(BIAS + 4*fb, 4)
                            m_.append(mfma(D, v((WF + bufs[fb]*16 if bufs[fb] < 2 else 192) + ksl*4, 4), a((tb*16 + 4*q + ksl)*4, 4), C))
                return m_
            mf = hm(0); mf_alt = hm(1)
        for fb in range(nfb if kind != 'H' else 0):
            buf = (bufc + fb) % 2; bufs.append(buf)
            for tb in range(4):
                for ksl in range(4):
                    D = v(acc + (fb*4+tb)*4, 4)
                    C = D if (q or ksl) else "0"
                    Wr = v(WF + buf*16 + ksl*4, 4); Xr = a((tb*16 + 4*q + ksl)*4, 4)
                    mf.append(mfma(D, Xr, Wr, C) if kind == 'V' else mfma(D, Wr, Xr, C))
        bufc = (bufc + nfb) % 2
        sc = Sched(len(mf))
        if n in DONE_: assert not any(getattr(e, 'grp', None) == DONE_[n] for e in queue), (n, len(queue))
        w0 = [f"T{n}_0"] + ([f"S{2*q}", f"S{2*q+1}"] if G == 0 else [])
        if G == 4: sc.put(-1, lambda Kk, q=q: Kk.wait_vm([f"X{q}"]))
        sc.put(-1, lambda Kk, w0=w0: Kk.wait_lg(w0))
        for fb in range(nfb - 1):
            for i, e in enumerate(trr(n, fb + 1, bufs[fb + 1])): sc.put(fb*16 + i, e)
            if fb < nfb - 2: sc.put(fb*16 + 15, lambda Kk, n=n, fb=fb: Kk.wait_lg([f"T{n}_{fb+1}"]))
        if kind == 'H':
            for i, e in enumerate(trr(n, 3, 2)): sc.slots[min(8 + i, 15)].insert(0, e) if i < 7 else sc.slots[15].insert(len(sc.slots[15]) - 1, e); sc.cost[min(8 + i, 15)] += 4
        lb = (nfb - 1) * 16
        need = [f"W{n+1}"] if n + 1 < NS else []
        if n == XS_ - 1: need.append("xs")
        if n == SIG - 1: need += ["st2", "st3"]
        def barw(Kk, need=need, n=n, nfb=nfb):
            nv = min([Kk.vm_after(t) for t in need] + [63 if n + 1 < NS else 24])
            Kk.op(f"s_waitcnt vmcnt({nv}) lgkmcnt({Kk.lg_n([f'T{n}_{nfb-1}'] + (['XW'] if n == LNS else []))})")
        sc.put(lb - 1, barw); sc.put(lb - 1, "s_barrier")
        if n + 1 < NS:
            for i, e in enumerate(trr(n + 1, 0, bufc)): sc.put(lb + i, e)
        else:
            sc.put(lb - 2, f"v_mov_b32 v{V_KA}, v{V_L16}")
            for i in range(8): sc.put(lb + i, kread(i))
        dm = []
        wdm = []
        if n == 6: stream += issue_w(9)
        if R8:
            for m_ in {7: [10, 12], 8: [11, 13], 9: [14, 15], 10: [16, 17]}.get(n, [n + 7] if 11 <= n <= 20 else []): dm += issue_w(m_)
        elif 7 <= n and n + 3 < NS: dm += issue_w(n + 3)
        if n and n == int(os.environ.get('TUV', 5)): dm.append(touch(1, S_WUV, 233, 49))
        def mall(srd, shift, mask, reg):
            return [f"s_lshl_b32 s55, s2, 2", f"s_add_u32 s55, s55, s{S_WAVE}", f"s_lshl_b32 s55, s55, {shift}",
                    f"v_and_b32 v{reg}, {mask}, v{V_LANE}", f"v_lshlrev_b32 v{reg}, 7, v{reg}",
                    lambda Kk: Kk.vmem(f"buffer_load_dword v63, v{reg}, s[{srd}:{srd+3}], s55 offen", "pf")]
        if n == int(os.environ.get('MUV', 1)): dm += mall(S_WUV, 12, 31, 237)
        if n == int(os.environ.get('MQ', 5)): dm += mall(S_WQ, 12, 31, 237) + mall(S_W1, 11, 15, 237)
        if n == int(os.environ.get('TQ', 8)): dm += [f"v_lshlrev_b32 v57, 13, v{V_LANE}", touch(0, S_WQ, 57, 49)]
        if n == int(os.environ.get('TQ', 8)) + 1:
            dm += [f"v_mul_u32_u24 v57, 2752, v{V_LANE}", f"s_mul_i32 s49, s{S_P}, {64*2752}", f"s_lshl_b32 s{S_T+6}, s{S_H}, 6", lambda Kk: (o(f"s_cmp_eq_u32 s{S_G}, 0"), o(f"s_cselect_b32 s{S_T+6}, s{S_T+6}, s78")), f"s_add_u32 s49, s49, s{S_T+6}", touch(1, S_W1, 57, 49)]
        if n == XS_: dm = [signal(72, 61)] + dm
        if n == SIG: dm.append(lambda Kk: Kk.vmem(f"buffer_store_dword v61, v{V_SIG}, s[{S_WS}:{S_WS+3}], s74 offen{SC1}", "sig"))
        if n == int(os.environ.get('XT', 12)) - int(os.environ.get('XP', 3)):
            pl, pc = poll(f"buffer_load_dword v{V_ACT}, v56, s[{S_DBG}:{S_DBG+3}], 0 offen{SC1}", [f"v_cmp_gt_u32 vcc, 0x80, v{V_ACT}"], "px"); dm += [f"v_and_b32 v56, 1, v{V_LANE}", "v_lshlrev_b32 v56, 7, v56", pl]
        if n == int(os.environ.get('XT', 12)) - 1: dm += pc
        XT = int(os.environ.get('XT', 12))
        if n in (XT, XT + 1) and os.environ.get('DOXT'):
            dm.append(f"s_and_b32 s{S_T+6}, s{S_H}, 3"); dm.append(f"s_lshl_b32 s{S_T+6}, s{S_T+6}, 14"); dm.append(f"s_add_u32 s{S_T+6}, s{S_T+6}, s{S_XN}")
            if n == XT + 1: dm.append(f"s_add_u32 s{S_T+6}, s{S_T+6}, 8192")
            dm.append(f"v_lshlrev_b32 v{V_ACT}, 7, v{V_LANE}")
            dm.append(lambda Kk: Kk.vmem(f"buffer_load_dword v63, v{V_ACT}, s[{S_WS}:{S_WS+3}], s{S_T+6} offen{SC1}", "pf"))
        XL = [{13: [(0, (0, 1, 2))], 14: [(0, (3,)), (1, (0, 1))], 15: [(1, (2, 3)), (2, (0,))], 16: [(2, (1, 2, 3))], 17: [(3, (0, 1, 2, 3))]},
              {12: [(0, (0, 1))], 13: [(0, (2, 3))], 14: [(1, (0, 1, 2))], 15: [(1, (3,)), (2, (0, 1))], 16: [(2, (2, 3)), (3, (0,))], 17: [(3, (1, 2, 3))]},
              {11: [(0, (0, 1))], 12: [(0, (2, 3))], 13: [(1, (0, 1))], 14: [(1, (2, 3))], 15: [(2, (0, 1, 2))], 16: [(2, (3,)), (3, (0, 1))], 17: [(3, (2, 3))]}][VO]
        if os.environ.get("NOXN"):
            if n == 12: Kk.vm += ["X0", "X1", "X2", "X3"]
        else:
            for x_ in XL.get(n, []): dm += xn_loads(*x_)
        if n == 13:
            dm.append(f"s_lshl_b32 s{S_T+6}, s{S_H}, 6")
            dm += [lambda Kk, fb=fb: Kk.vmem(f"buffer_load_dwordx2 {v(BIAS+4*fb+2,2)}, v2, s[{S_B1}:{S_B1+3}], s{S_T+6 if fb < 2 else 78} offen offset:{(fb%2)*32}", "b1") for fb in range(4)]
        if n == 22:
            pl2, pc2 = poll(f"buffer_load_dword v{V_ACT}, v62, s[{S_WS}:{S_WS+3}], s47 offen{SC1}", [f"v_cmp_eq_u32 vcc, 0, v{V_ACT}"], "pk"); dm.append(pl2)
        if n == 24: dm += pc2
        if 25 <= n <= 27: dm += sum((fill(x_, 0) for x_ in [(0, 1), (2, 3, 4), (5, 6, 7)][n - 25]), [])
        if n >= NS - 3: dm += fill(2*(n - (NS - 3)) + 2, 1) + fill(2*(n - (NS - 3)) + 3, 1)
        AT = lambda p_: ("at", p_)
        if n == 0:
            G_ = lambda g_: ("g", g_)
            stream = ([] if R2E else [r2]) + c_loads(2) + [r3] + ([touch(1, S_WUV, 233, 49)] if int(os.environ.get('TUV', 5)) == 0 else []) + issue_w(2) + c_loads(3) + shuffle(2) + issue_w(3) + [G_(112)] + shuffle(3) + c_loads(4) + issue_w(4) + \
                     c_loads(5) + shuffle(4) + issue_w(5) + [G_(236)] + shuffle(5) + c_loads(6) + issue_w(6) + c_loads(7) + shuffle(6) + issue_w(7) + [G_(360)] + shuffle(7) + issue_w(8)
            for e in stream:
                if callable(e) and not hasattr(e, "isv"): e.isv = None
            lastv = -4
        if n == LNS + 1: dm = xnst + flagz + dm
        if n <= 6:
            pos = 0
            SPC = int(os.environ.get("SPC", 3))
            while stream:
                e = stream[0]
                if isinstance(e, tuple):
                    if e[1] >= gpos + len(mf): break
                    pos = max(pos, e[1] - gpos); stream.pop(0); continue
                nx = stream[1] if len(stream) > 1 else None
                ism0 = isinstance(e, str) and "m0," in e
                if ism0: pos = max(pos, lastv + SPC - 1 - gpos)
                while pos < len(mf) and sc.cost[pos] + sc.c(e) > 8: pos += 1
                if pos >= len(mf) - (1 if ism0 else 0): break
                sc.put(pos, e); stream.pop(0)
                if ism0:
                    pos += 1; sc.put(pos, stream.pop(0)); lastv = gpos + pos
            if n == 6: assert not stream
        pos = 1
        nv_ = sum(1 for e in dm if callable(e))
        lim = (lb - 3) if any(getattr(e, "cost", 4) == 8 for e in dm) else len(mf) - 4
        spc = (lim - 1) / max(nv_, 1)
        kv_ = 0
        for ie, e in enumerate(dm):
            if isinstance(e, tuple): pos = max(pos, e[1]); continue
            tgt_ = int(1 + kv_ * spc)
            if not callable(e): tgt_ -= 1
            pos = max(pos, tgt_)
            while sc.cost[pos] + sc.c(e) > 8 and pos < len(mf) - 1: pos += 1
            sc.put(pos, e)
            if callable(e): kv_ += 1
            if getattr(e, "cost", 4) == 8: assert pos < lb - 1, (n, pos)
            if isinstance(e, str) and "m0," in e:
                pos += 1; assert pos < len(mf), n
        if n == 6:
            queue += [f"v_and_b32 v240, 15, v{V_LANE}", f"v_lshrrev_b32 v241, 4, v{V_LANE}", "v_lshlrev_b32 v241, 2, v241"]
            for r in range(4): queue += [f"v_add_u32 v242, {r}, v241", f"v_cmp_gt_u32 s[{S_MSK+2*r}:{S_MSK+2*r+1}], v242, v240"]
        if n == 7: queue += kv_epilogue(0)
        if n == 8: queue += kv_epilogue(1)
        if n == 15: queue = [lambda Kk: Kk.wait_vm(["b1"])] + queue; queue[1:1] = [x for fb in range(4) for r in range(2) for x in
                   (f"v_lshlrev_b32 v{BIAS+4*fb+2*r}, 16, v{BIAS+4*fb+2+r}", f"v_and_b32 v{BIAS+4*fb+2*r+1}, 0xffff0000, v{BIAS+4*fb+2+r}")]
        if n == ST.index((2, 3)) + 1: queue += kv_epilogue(2)
        if n == 16: queue += kv_epilogue(3)
        if n == 20: queue2 = h_epilogue()
        if n == 24: queue2 = q_pack(192) + queue2
        if n == 25: queue2 = q_move(192, 0) + queue2
        if n == 27: queue2 = [f"v_accvgpr_write_b32 a{A_Z+r}, 0" for r in range(4)] + ["v_mov_b32 v63, 0x3f803f80"] + [f"v_accvgpr_write_b32 a{A_ONE+r}, v63" for r in range(4)] + queue2
        pos = 10 if n in (7, 8, 12, 13, 15, 16, 20, 24) else 0
        while queue and pos < len(mf):
            e = queue[0]
            if getattr(e, "store", False):
                if gpos + pos < last_st + PACE: pos += 1; continue
            if sc.cost[pos] + sc.c(e) <= 8:
                sc.put(pos, e); queue.pop(0)
                if getattr(e, "store", False): last_st = gpos + pos
            else: pos += 1
        if n <= LNS:
            pos = 0
            while queueL and pos < (len(mf) if n < LNS else lb - 2):
                e = queueL[0]
                if isinstance(e, str) and e.startswith("s_nop"):
                    if pos + int(e[-1]) + 1 < len(mf) - 3: pos += int(e[-1]) + 1; queueL.pop(0); continue
                if sc.cost[pos] + sc.c(e) <= (12 if n < int(os.environ.get('LNC', 2)) else 8): sc.put(pos, e); queueL.pop(0)
                else: pos += 1
            if n == LNS: assert not queueL, len(queueL)
        if n >= 20:
            pos = 10 if n in (20, 24) else 0
            while queue2 and pos < len(mf):
                e = queue2[0]
                if sc.cost[pos] + sc.c(e) <= 8: sc.put(pos, e); queue2.pop(0)
                else: pos += 1
        gpos += len(mf)
        if mf_alt is None: emit_slots(Kk, mf, sc.slots)
        else:
            emit_slots(Kk, mf[:32], {g: sc.slots[g] for g in range(-1, 32)})
            la = Kk.newlabel("mg_hp"); lb_ = Kk.newlabel("mg_hp")
            o(f"s_bitcmp1_b32 s{S_H}, 0"); o(f"s_cbranch_scc1 {la}")
            sv, sl_ = list(Kk.vm), list(Kk.lg)
            tail = {g - 32: sc.slots[g] for g in range(32, 48)}
            emit_slots(Kk, mf[32:], tail)
            o(f"s_branch {lb_}")
            Kk.label(la)
            Kk.vm, Kk.lg = sv, sl_
            emit_slots(Kk, mf_alt[32:], tail)
            Kk.label(lb_)
        STG = os.environ.get('STG')
        if STG is not None:
            if 0 <= n - int(STG) < 15: Kk.stamp(1 + n - int(STG), force=True)
            if STG == '99' and n < 3: Kk.stamp(13 + n, force=True)
        elif n in (3, 7, 11, 15, 19, 23, 27): Kk.stamp({3: 4, 7: 7, 11: 8, 15: 13, 19: 1, 23: 2, 27: 14}[n])
    assert not queue
    print("mega proj leftover filler:", len(queue2))
    em(Kk, queue2)
    o("s_nop 7")
    em(Kk, q_pack(64) + q_move(64, 1))
    o(f"v_mov_b32 v{V_NEG}, 0xff800000")
    o(f"v_mov_b32 v15, v{V_SIG}"); o(f"v_mov_b32 v0, v{V_XNST}")
    o(f"s_lshl_b32 s{S_T}, s{S_G}, 14"); o(f"s_add_u32 s{S_T}, s{S_T}, {XOFF}"); o(f"v_add_u32 v{V_T0}, s{S_T}, v{V_L16}")
    o(f"s_cmp_eq_u32 s{S_G}, 0"); o(f"s_mov_b32 s{S_T+1}, 0x6000"); o(f"s_cselect_b32 s{S_T}, {XOFF + 15*1024}, s{S_T+1}"); o(f"v_add_u32 v{V_T1}, s{S_T}, v{V_L16}")
    o(f"s_cmp_lg_u32 s{S_ROLE}, 0"); o("s_cbranch_scc1 k2_nopub")
    for j in range(4):
        for ds in range(4):
            if j*4+ds < 15: o(f"ds_write_b128 v{V_T0}, {a(AQ(j, ds), 4)} offset:{(j*4+ds)*1024}")
            else: o(f"ds_write_b128 v{V_T1}, {a(AQ(j, ds), 4)}")
    Kk.label("k2_nopub")
    o("s_mov_b32 s50, s45")
    o(f"s_mov_b32 s{S_TGT}, 4"); o(f"s_mov_b32 s{S_FT}, {8*8192}"); o(f"s_mov_b32 s{S_PH}, 0"); o("s_mov_b32 s7, 0x4000"); o(f"s_mov_b32 s{S_NF}, 0")
    o("s_mov_b32 m0, s48")
    o(f"s_mov_b32 s48, s{S_WKB}")
    o(f"v_add_u32 v{V_KA}, 0x4000, v{V_L16}"); o(f"v_add_u32 v{V_VA}, 0x8000, v{V_L16}")
    o(f"v_lshlrev_b32 v{V_CNT}, 2, v{V_LANE}"); o(f"v_add_u32 v{V_CNT}, {CNTOFF}, v{V_CNT}"); o(f"v_mov_b32 v{V_ONE}, 1")
    o(f"s_cmp_eq_u32 s{S_ROLE}, 0"); o(f"s_cselect_b32 s{S_DST}, s{S_D4}, 0x7fffff00")
    if not os.environ.get("NOMPF"):
        o("s_load_dwordx2 s[28:29], s[0:1], 40"); o("s_load_dwordx2 s[32:33], s[0:1], 72")
        o(f"s_lshl_b32 s{S_T}, s2, 2"); o(f"s_add_u32 s{S_T}, s{S_T}, s{S_WAVE}")
        o(f"v_and_b32 v112, 31, v{V_LANE}"); o("v_lshlrev_b32 v112, 7, v112")
        o(f"s_lshl_b32 s38, s{S_T}, 12"); o(f"s_lshl_b32 s37, s{S_T}, 11")
        o(f"v_and_b32 v113, 15, v{V_LANE}"); o("v_lshlrev_b32 v113, 7, v113")
        o("s_waitcnt lgkmcnt(0)")
        o(f"s_mov_b32 s30, {SZ['wo']}"); o(f"s_mov_b32 s34, {SZ['w2']}")
        o("s_lshr_b32 s65, s2, 3"); o("s_lshl_b32 s65, s65, 2"); o(f"s_add_u32 s65, s65, s{S_WAVE}")
        o("s_and_b32 s66, s2, 7"); o("s_lshr_b32 s66, s66, 1")
        o("s_lshl_b32 s67, s66, 20"); o("s_lshl_b32 s68, s65, 13"); o("s_add_u32 s67, s67, s68")
        o(f"v_lshlrev_b32 v114, 7, v{V_LANE}"); o("v_add_u32 v114, s67, v114")
        o("s_mul_i32 s65, s65, 44"); o(f"v_min_u32 v115, 43, v{V_LANE}"); o("v_add_u32 v115, s65, v115"); o("v_lshlrev_b32 v115, 8, v115")
        o("s_and_b32 s66, s66, 1"); o("s_lshl_b32 s66, s66, 7"); o("v_add_u32 v115, s66, v115")
        o("s_getpc_b64 s[4:5]")
        Kk.label("mg_pc2")
        o(f"s_lshl_b32 s65, s{S_WAVE}, 13"); o("s_add_u32 s65, s65, k2_merge-mg_pc2")
        o(f"v_lshlrev_b32 v116, 7, v{V_LANE}"); o("v_add_u32 v116, s65, v116"); o("v_min_u32 v116, mg_exit-mg_pc2, v116")
        if not os.environ.get("NOWT"):
            Kk.drn_extra = ["global_load_dword v110, v116, s[4:5]", "buffer_load_dword v110, v115, s[32:35], 0 offen", "buffer_load_dword v110, v114, s[28:31], 0 offen"]
        Kk.pro_extra = ["buffer_load_dword v110, v112, s[28:31], s38 offen", "buffer_load_dword v110, v113, s[32:35], s37 offen"]
    Kk.stamp(5)
    o("s_mov_b32 s36, s79")
    Kk.mega = True
    from mega_p4 import p4, p4_pre, p4_pre0, p4_pre2
    Kk.p4_pre = p4_pre; Kk.p4_pre0 = p4_pre0; Kk.p4_pre2 = lambda Kk: p4_pre2(Kk, poll_stub)
    attention(Kk)
    Kk.stamp(10)
    p4(Kk, poll_stub)
    Kk.stamp(15)
    if os.environ.get("DBGOUT"):
        o("s_cmp_lg_u32 s2, 100"); o("s_cbranch_scc1 mg_nodbg"); o(f"s_cmp_lg_u32 s{S_WAVE}, 0"); o("s_cbranch_scc1 mg_nodbg")
        o("s_mov_b64 exec, 1")
        for k_, i in enumerate((11, 3, 4, 7, 8, 13, 1, 2, 14, 5, 9, 10, 6, 15)):
            o(f"s_sub_u32 s65, s{80+i}, s80"); o("v_mov_b32 v0, s65")
            o(f"buffer_store_dword v0, off, s[{S_DBG}:{S_DBG+3}], 0 offset:{4+4*k_}")
        Kk.label("mg_nodbg")
    else:
        Kk.stamp_flush(0, S_WAVE, S_WS)
    o("s_endpgm")
    emit_stubs(Kk)
    emit_pstubs(Kk)
    rare(Kk, 0)
    rare(Kk, 1)
    Kk.label("mg_exit")
    o("s_endpgm")
    kernel_desc(Kk, Kk.name, vgpr=512, accum=256)
    return Kk
```

```python
from att import *
from gen_k1 import ln_rows
LOG2E = 1.4426950408889634
KSCALE = 0x3e0293ee
S_XN = 3; S_WQB = 4; S_W1B = 5; S_LDSW = 6
S_C = 28; S_WUK = 32; S_WUV = 36; S_DBG = 96
S_KST = 50; S_VST = 51; S_STT = 52; S_WKB = 53; S_AO = 56
VQ, VH, TR = 48, 52, 8
V_ACT = 3; V_SIG = 6; V_SHW = 56; V_SHR = 58; V_XNST = 60
WF = 16; BIAS = 176
SC1 = " sc1"
KVSC = os.environ.get("KVSC", " sc1")
if KVSC == "none": KVSC = ""

class Sched:
    def __init__(self, n): self.n = n; self.slots = {i: [] for i in range(-1, n)}; self.cost = {i: 0 for i in range(-1, n)}
    def c(self, e):
        if callable(e): return getattr(e, "cost", 4)
        return 8 if e.startswith(("v_exp", "v_rcp", "v_sqrt", "s_nop 1")) else 4
    def put(self, i, e): self.slots[i].append(e); self.cost[i] += self.c(e)

def poll_stub(Kk, reg, load_txt, cmp_ops, scc=False):
    st = Kk.newlabel("mg_ps"); bk = Kk.newlabel("mg_pb")
    Kk.pstubs.append((st, bk, load_txt, cmp_ops, scc))
    def f(Kk):
        Kk.op(f"s_cbranch_{'scc1' if scc else 'vccnz'} {st}"); Kk.label(bk)
    return f
def emit_pstubs(Kk):
    o = Kk.op
    for st, bk, ld, cmp_ops, scc in Kk.pstubs:
        Kk.label(st)
        o("s_mov_b32 s49, 0x8000")
        o(f"s_branch {st}_m")
        Kk.label(st + "_l")
        o("s_sleep 6")
        Kk.label(st + "_m")
        o(ld)
        o("s_sub_u32 s49, s49, 1")
        o("s_waitcnt vmcnt(0)")
        o(f"s_cbranch_scc1 {bk}")
        for c in cmp_ops: o(c)
        o("s_nop 0")
        o(f"s_cbranch_{'scc1' if scc else 'vccnz'} {st}_l")
        o(f"s_branch {bk}")

def gen_mega(name):
    Kk = K(name)
    Kk.pstubs = []
    o = Kk.op
    kernel_header(Kk, Kk.name)
    o("s_cmp_ge_u32 s2, 256")
    o("s_cbranch_scc1 mg_exit")
    if STAMPS:
        for i in range(16): o(f"s_mov_b32 s{80+i}, 0")
    Kk.stamp(0)
    o("s_load_dwordx16 s[64:79], s[0:1], 0")
    o("s_load_dwordx2 s[54:55], s[0:1], 64")
    o("s_load_dwordx4 s[56:59], s[0:1], 88")
    o(f"v_and_b32 v{V_LANE}, 63, v0")
    o("v_lshrrev_b32 v62, 6, v0")
    o(f"v_lshlrev_b32 v{V_L16}, 4, v{V_LANE}")
    o(f"v_readfirstlane_b32 s{S_WAVE}, v62")
    o(f"s_and_b32 s{S_H}, s2, 7"); o(f"s_lshl_b32 s{S_H}, s{S_H}, 2")
    o(f"s_lshr_b32 s3, s2, 3"); o(f"s_and_b32 s3, s3, 3"); o(f"s_add_u32 s{S_H}, s{S_H}, s3")
    o(f"s_lshr_b32 s{S_P}, s2, 5")
    o(f"s_and_b32 s{S_G}, s{S_WAVE}, 1"); o(f"s_lshr_b32 s{S_ROLE}, s{S_WAVE}, 1")
    o(f"v_lshrrev_b32 v61, 3, v{V_LANE}"); o(f"v_and_b32 v62, 7, v{V_LANE}")
    o(f"s_lshl_b32 s3, s{S_WAVE}, 15"); o("s_mov_b32 s7, s3")
    o(f"v_lshrrev_b32 v63, 4, v{V_LANE}"); o("v_xor_b32 v16, v62, v63")
    o("v_lshlrev_b32 v17, 10, v61")
    o(f"v_lshl_add_u32 v{V_SHW}, v16, 4, v17"); o(f"v_xor_b32 v{V_SHW+1}, 64, v{V_SHW}")
    o(f"v_and_b32 v16, 15, v{V_LANE}"); o("v_lshrrev_b32 v17, 1, v16"); o("v_xor_b32 v17, v17, v63")
    o("v_lshlrev_b32 v16, 7, v16"); o("v_add_u32 v16, s3, v16")
    o(f"v_lshl_add_u32 v{V_SHR}, v17, 4, v16"); o(f"v_xor_b32 v{V_SHR+1}, 64, v{V_SHR}")
    o(f"v_lshrrev_b32 v16, 2, v{V_LANE}"); o(f"v_and_b32 v17, 3, v{V_LANE}")
    o("v_lshlrev_b32 v16, 10, v16"); o(f"v_lshl_add_u32 v{V_XNST}, v17, 8, v16")
    o(f"v_bfe_u32 v16, v{V_LANE}, 4, 1"); o("v_lshlrev_b32 v16, 1, v16"); o("v_xor_b32 v16, v62, v16"); o("v_xor_b32 v17, 4, v16")
    for base, stride in ((VQ, 8192), (VH, 2752)):
        o(f"v_mul_u32_u24 v18, {stride}, v61")
        for i in range(4):
            o(f"v_lshl_add_u32 v{base+i}, v{16 if i % 2 == 0 else 17}, 4, v18")
            if i: o(f"v_add_u32 v{base+i}, {8*i*stride}, v{base+i}")
    o(f"s_lshr_b32 s3, s{S_H}, 1"); o(f"s_sub_u32 s3, s3, s{S_H}"); o("s_lshl_b32 s3, s3, 6"); o("s_add_u32 s3, s3, 1984")
    o("v_bfe_u32 v18, v16, 2, 1"); o("v_mul_lo_u32 v19, v18, s3"); o("v_sub_u32 v18, s3, v19")
    for i in range(4): o(f"v_add_u32 v{VH+i}, v{19 if i % 2 == 0 else 18}, v{VH+i}")
    o(f"v_bfe_u32 v16, v{V_LANE}, 2, 2"); o("v_lshl_add_u32 v17, v63, 3, v16"); o("v_lshlrev_b32 v17, 7, v17")
    o(f"v_and_b32 v18, 3, v{V_LANE}"); o("v_lshl_add_u32 v17, v18, 3, v17"); o("s_nop 0")
    o(f"v_bfe_u32 v18, v{V_LANE}, 3, 1"); o(f"v_bfe_u32 v19, v{V_LANE}, 4, 1"); o("v_lshl_or_b32 v18, v19, 1, v18")
    for fb in range(4):
        o(f"v_xor_b32 v19, {fb}, v18"); o(f"v_lshl_add_u32 v{TR+fb}, v19, 5, v17")
    for tb in range(4):
        if tb: o(f"v_add_u32 v{12+tb}, {tb*NKS*1024}, v{V_L16}")
        else: o(f"v_mov_b32 v12, v{V_L16}")
    o(f"s_lshl_b32 s3, s{S_G}, 12"); o(f"v_add_u32 v{V_FET}, s3, v{V_L16}"); o(f"v_add_u32 v{V_FET2}, 0x2000, v{V_FET}")
    o(f"s_lshl_b32 s48, s{S_WAVE}, 12")
    o(f"v_lshlrev_b32 v2, 3, v63")
    o(f"v_lshlrev_b32 v16, 2, v{V_LANE}"); o(f"v_add_u32 v16, {CNTOFF}, v16"); o("v_mov_b32 v17, 0"); o("ds_write_b32 v16, v17")
    o("v_cmp_eq_u32 vcc, 0, v0"); o("v_mov_b32 v16, 0x7f000000"); o("s_nop 0"); o(f"v_cndmask_b32 v{V_SIG}, v16, v17, vcc")
    o("s_waitcnt lgkmcnt(0)")
    if os.environ.get('STG') == '99': Kk.stamp(1, force=True)
    Kk.srd(S_WS, 58, SZ['ws']); Kk.srd(S_C, 66, SZ['c']); Kk.srd(S_WUK, 70, SZ['wuk']); Kk.srd(S_WUV, 72, SZ['wuv'])
    Kk.srd(S_FS, 64, SZ['x'])
    Kk.srd(S_WQ, 68, SZ['wq']); Kk.srd(S_W1, 78, SZ['w1']); Kk.srd(S_B1, 54, SZ['b1']); Kk.srd(S_DBG, 56, 256)
    LNB = 192
    o(f"s_lshl_b32 s{S_T}, s2, 3"); o(f"s_lshl_b32 s{S_T+1}, s{S_WAVE}, 1"); o(f"s_add_u32 s{S_T}, s{S_T}, s{S_T+1}"); o(f"s_lshl_b32 s{S_T}, s{S_T}, 10")
    Kk.vmem(f"buffer_load_dwordx4 {v(LNB,4)}, v{V_L16}, s[{S_FS}:{S_FS+3}], s{S_T} offen", "x")
    Kk.vmem(f"buffer_load_dwordx4 {v(LNB+4,4)}, v{V_L16}, s[{S_FS}:{S_FS+3}], s{S_T} offen offset:1024", "x")
    if os.environ.get('STG') == '99': Kk.stamp(2, force=True)
    o(f"s_lshr_b32 s70, s{S_T}, 14"); o("s_lshl_b32 s70, s70, 14"); o(f"s_lshr_b32 s{S_T}, s{S_T}, 6"); o(f"s_and_b32 s{S_T}, s{S_T}, 0xf0"); o(f"s_add_u32 s70, s70, s{S_T}")
    o(f"s_lshl_b32 s{S_T}, s{S_P}, 8"); o(f"s_lshl_b32 s{S_T+1}, s{S_WAVE}, 6"); o(f"s_add_u32 s{S_T}, s{S_T}, s{S_T+1}")
    for i in range(8):
        o(f"s_add_u32 s{S_AO+i}, s{S_T}, {8*i}"); o(f"s_lshl_b32 s{S_AO+i}, s{S_AO+i}, 10")
    o(f"s_lshl_b32 s{S_KST}, s{S_H}, 19"); o(f"s_lshl_b32 s{S_T}, s{S_T}, 8"); o(f"s_add_u32 s{S_KST}, s{S_KST}, s{S_T}")
    o(f"s_add_u32 s{S_VST}, s{S_KST}, {VF_OFF}"); o(f"s_add_u32 s{S_KST}, s{S_KST}, {KF_OFF}")
    o(f"s_lshl_b32 s{S_WQB}, s{S_WAVE}, 18"); o(f"s_lshl_b32 s{S_T}, s{S_H}, 8"); o(f"s_add_u32 s{S_WQB}, s{S_WQB}, s{S_T}")
    o(f"s_mul_i32 s{S_W1B}, s{S_WAVE}, {32*2752}"); o(f"s_lshl_b32 s{S_T}, s{S_H}, 6"); o(f"s_add_u32 s{S_W1B}, s{S_W1B}, s{S_T}")
    o(f"s_lshl_b32 s{S_LDSW}, s{S_ROLE}, 14"); o(f"s_lshl_b32 s{S_T}, s{S_G}, 12"); o(f"s_add_u32 s{S_LDSW}, s{S_LDSW}, s{S_T}")

    NS = 28
    GR = [('K', 64, 4), ('K', 128, 4), ('V', 192, 4), ('V', 64, 4), ('H', 128, 3), ('Q', 192, 4), ('Q', 64, 4)]
    VO = int(os.environ.get('VORD', 1))
    VORD = [[(2,0),(2,1),(2,2),(2,3),(3,0),(3,1),(3,2),(3,3)], [(2,0),(2,1),(2,2),(3,0),(2,3),(3,1),(3,2),(3,3)], [(2,0),(2,1),(3,0),(3,1),(2,2),(3,2),(2,3),(3,3)]][VO]
    ST = [(0,0),(1,0),(0,1),(1,1),(0,2),(1,2),(0,3),(1,3), ] + VORD + [(G, q) for G in (4, 5, 6) for q in range(4)]
    R8 = not os.environ.get("NOR8")
    def wslot(n): return (n + 1) % 4 if (n < 12 or not R8) else [4, 5, 6, 7, 1, 2, 3, 0][(n - 12) % 8]
    def issue_w(n):
        G, q = ST[n]
        if G == 4: srd, sb, off, vd = S_W1, S_W1B, q * 128 * 2752, VH
        else:
            srd = [S_WUK, S_WUK, S_WUV, S_WUV, None, S_WQ, S_WQ][G]
            sb, off, vd = S_WQB, q * 128 * 8192 + ((G % 2) if G < 4 else (G - 5)) * 128, VQ
        out = [f"s_add_u32 s{S_T+4}, s{sb}, {off}"]
        for i in range(4):
            out.append(f"s_add_u32 m0, s{S_LDSW}, {(wslot(n) % 4) * 32768 + (0x2000 if wslot(n) < 4 else 0) + i * 1024}")
            out.append(lambda Kk, i=i: Kk.vmem(f"buffer_load_dwordx4 v{vd+i}, s[{srd}:{srd+3}], s{S_T+4} offen lds", f"W{n}"))
        return out
    def areg(u, i): return a(((i // 2) * 16 + 2 * u + (i % 2)) * 4, 4)
    def c_loads(u):
        out = []
        for i in range(8):
            out.append(f"s_add_u32 m0, s7, {(u % 2) * 16384 + i * 1024}")
            out.append(lambda Kk, i=i: Kk.vmem(f"buffer_load_dwordx4 v{V_SHW + i % 2}, s[{S_C}:{S_C+3}], s{S_AO+i} offen lds", f"A{u}"))
        out += [f"v_add_u32 v{V_SHW}, 0x80, v{V_SHW}", f"v_add_u32 v{V_SHW+1}, 0x80, v{V_SHW+1}"]
        if u >= 2: out = [lambda Kk: Kk.wait_lg([f"S{u-2}"])] + out
        return out
    def shuffle(u):
        out = [lambda Kk: Kk.wait_vm([f"A{u}"])]
        out += [lambda Kk, i=i: Kk.lds(f"ds_read_b128 {areg(u, i)}, v{V_SHR + i % 2} offset:{(u % 2) * 16384 + (i//2)*2048}", f"S{u}") for i in range(8)]
        return out
    def xn_loads(q, tbs):
        out = []
        for tb in tbs:
            out.append(f"s_add_u32 s{S_T+5}, s{S_XN}, {tb*16384 + q*4096}")
            for k in range(4):
                out.append(lambda Kk, tb=tb, k=k: Kk.vmem(f"buffer_load_dwordx4 {a((tb*16+4*q+k)*4,4)}, v{V_L16}, s[{S_WS}:{S_WS+3}], s{S_T+5} offen offset:{k*1024}{SC1}", f"X{q}"))
        return out
    def fill(slot, kind):
        lab = Kk.newlabel("mg_fs")
        def f(Kk):
            o(f"s_cmp_lg_u32 s{S_ROLE}, {kind}"); o(f"s_cbranch_scc1 {lab}")
            o(f"s_add_u32 m0, s48, {slot*16384}"); o(f"s_mov_b32 s{S_T+6}, {slot*8192}")
            for i in range(4): o(f"buffer_load_dwordx4 v{V_FET}, s[{S_FS}:{S_FS+3}], s{S_T+6} offen offset:{i*1024}{SC1} lds")
            Kk.label(lab)
        f.cost = 8
        return [f]
    def ems(lst):
        prev = False
        for e in lst:
            if callable(e):
                if prev: o("s_nop 0")
                e(Kk); prev = False
            else:
                o(e); prev = "m0," in e
    half = [0, 0, 0, 0]
    def trr(n, fb, buf):
        hi = 1 if wslot(n) % 4 >= 2 else 0
        out = []
        if half[fb] != hi:
            out.append(f"v_xor_b32 v{TR+fb}, 0x10000, v{TR+fb}"); half[fb] = hi
        return out + [lambda Kk, ksl=ksl, rd=rd: Kk.lds(f"ds_read_b64_tr_b16 {v((WF + buf*16 if buf < 2 else 192) + ksl*4 + rd*2, 2)}, v{TR+fb} offset:{(wslot(n) % 2)*32768 + (0x2000 if wslot(n) < 4 else 0) + (ksl//2)*16384 + (ksl%2)*4096 + rd*512}", f"T{n}_{fb}")
                for ksl in range(4) for rd in range(2)]
    def signal(dw, val_reg):
        return lambda Kk: Kk.vmem(f"buffer_atomic_add v{val_reg}, v{V_SIG}, s[{S_DBG}:{S_DBG+3}], s{dw} offen", "sig")

    TD = 236
    o(f"v_lshlrev_b32 v232, 10, v{V_LANE}")
    o(f"v_lshlrev_b32 v233, 13, v{V_LANE}")
    o(f"v_mul_u32_u24 v234, 2752, v{V_LANE}")
    TV = int(os.environ.get("TV", 0))
    def mall0():
        o("s_lshl_b32 s68, s2, 2"); o(f"s_add_u32 s68, s68, s{S_WAVE}"); o("s_lshl_b32 s69, s68, 12"); o("s_lshl_b32 s68, s68, 11")
        o(f"v_and_b32 v238, 31, v{V_LANE}"); o("v_lshlrev_b32 v238, 7, v238"); o("v_and_b32 v239, 0x7ff, v238")
        Kk.vmem(f"buffer_load_dword v{TD}, v239, s[{S_C}:{S_C+3}], s68 offen", "pf")
        Kk.vmem(f"buffer_load_dword v{TD}, v238, s[{S_WUK}:{S_WUK+3}], s69 offen", "pf")
    if TV == 1: mall0()
    o("s_lshr_b32 s66, s2, 3"); o("s_lshl_b32 s66, s66, 16"); o(f"s_lshl_b32 s67, s{S_WAVE}, 7"); o("s_add_u32 s66, s66, s67")
    o(f"s_lshl_b32 s67, s{S_P}, 19"); o(f"s_lshl_b32 s68, s{S_H}, 8"); o("s_add_u32 s67, s67, s68"); o(f"s_lshl_b32 s68, s{S_G}, 7"); o("s_add_u32 s67, s67, s68")
    o(f"s_cmp_lg_u32 s{S_ROLE}, 0"); o("s_cbranch_scc1 mg_t1")
    o(f"buffer_load_dword v{TD}, v232, s[{S_C}:{S_C+3}], s66 offen")
    o("s_branch mg_t2")
    Kk.label("mg_t1")
    o(f"s_cmp_lg_u32 s{S_G}, 0"); o("s_cbranch_scc1 mg_t3")
    o(f"v_and_b32 v235, 15, v{V_LANE}"); o("v_lshlrev_b32 v235, 13, v235"); o(f"v_bfe_u32 v237, v{V_LANE}, 4, 1"); o("v_lshl_add_u32 v235, v237, 7, v235")
    o(f"s_lshl_b32 s68, s{S_P}, 17"); o(f"s_lshl_b32 s69, s{S_H}, 8"); o("s_add_u32 s68, s68, s69")
    o(f"buffer_load_dword v{TD}, v235, s[{S_WUK}:{S_WUK+3}], s68 offen")
    o("s_branch mg_t2")
    Kk.label("mg_t3")
    if os.environ.get("TLBW"):
        o(f"v_lshlrev_b32 v235, 20, v{V_LANE}")
        for srd_ in (S_WQ, S_W1, S_WUV): o(f"buffer_load_dword v{TD}, v235, s[{srd_}:{srd_+3}], 0 offen")
    o("s_getpc_b64 s[68:69]")
    Kk.label("mg_pc")
    o("s_lshr_b32 s71, s2, 3"); o("s_mul_i32 s71, s71, 2560")
    o(f"v_min_u32 v235, 19, v{V_LANE}"); o("v_lshlrev_b32 v235, 7, v235"); o("v_add_u32 v235, s71, v235")
    o("v_min_u32 v235, mg_exit-mg_pc, v235")
    o(f"global_load_dword v{TD}, v235, s[68:69]")
    Kk.label("mg_t2")
    Kk.vm.append("pf")
    o("s_mov_b32 s54, s66"); o("s_mov_b32 s49, s67")
    if TV == 2: mall0()
    PRE = int(os.environ.get("PRE", 8))
    first = issue_w(0) + c_loads(0)
    cut = [i for i, e in enumerate(first) if callable(e)][PRE - 1] + 1 if PRE else 0
    ems(first[:cut])
    o(f"s_lshl_b32 s71, s{S_WAVE}, 5"); o(f"s_add_u32 s71, s71, {XOFF}")
    o(f"v_lshlrev_b32 v224, 7, v{V_LANE}"); o("v_add_u32 v224, s71, v224")
    o(f"s_lshl_b32 s71, s{S_WAVE}, 11"); o(f"s_add_u32 s71, s71, {XOFF}"); o(f"v_add_u32 v225, s71, v{V_L16}")
    o(f"v_lshrrev_b32 v226, 5, v{V_LANE}"); o("v_lshlrev_b32 v226, 10, v226"); o(f"v_bfe_u32 v227, v{V_LANE}, 3, 2"); o("v_lshl_add_u32 v226, v227, 8, v226")
    o(f"v_and_b32 v227, 7, v{V_LANE}"); o("v_lshl_add_u32 v226, v227, 4, v226")
    o("s_lshr_b32 s52, s2, 1"); o("s_lshl_b32 s52, s52, 14"); o("s_and_b32 s71, s2, 1"); o("s_lshl_b32 s71, s71, 7"); o("s_add_u32 s52, s52, s71")
    o(f"s_lshl_b32 s71, s{S_WAVE}, 12"); o("s_add_u32 s52, s52, s71")
    o(f"s_sub_u32 s{S_T}, 15, s{S_P}"); o(f"s_cmp_eq_u32 s{S_ROLE}, 0"); o(f"s_cselect_b32 s{S_T+1}, s{S_T}, s{S_P}")
    o(f"s_lshl_b32 s{S_T+1}, s{S_T+1}, 3"); o(f"s_lshl_b32 s{S_T+2}, s{S_G}, 2"); o(f"s_add_u32 s{S_T+1}, s{S_T+1}, s{S_T+2}")
    o(f"s_lshl_b32 s{S_T}, s{S_T}, 3"); o(f"s_add_u32 s{S_T}, s{S_T}, s{S_T+2}")
    o(f"s_lshl_b32 s{S_T+2}, s{S_H}, 12"); o(f"s_add_u32 s{S_T+2}, s{S_T+2}, {ACT_OFF}")
    o(f"s_mul_i32 s{S_CTX}, s{S_T+1}, {NKS*1024}"); o(f"s_add_u32 s{S_CTX}, s{S_CTX}, s{S_T+2}")
    o(f"s_mul_i32 s{S_CTXL}, s{S_T}, {NKS*1024}"); o(f"s_add_u32 s{S_CTXL}, s{S_CTXL}, s{S_T+2}")
    o(f"s_lshl_b32 s{S_XN}, s{S_T+1}, 14")
    o(f"s_mul_i32 s{S_T+5}, s{S_T+1}, {NKS*1024}"); o(f"s_add_u32 s{S_T+5}, s{S_T+5}, {ACT_OFF + 128*1024}")
    o(f"s_lshl_b32 s{S_T+4}, s{S_H}, 10"); o(f"s_add_u32 s76, s{S_T+5}, s{S_T+4}")
    o(f"s_and_b32 s{S_T+3}, s{S_H}, 1"); o(f"s_mul_i32 s{S_T+3}, s{S_T+3}, {2*NKS*1024}"); o(f"s_add_u32 s{S_T+5}, s{S_T+5}, s{S_T+3}")
    o(f"s_lshr_b32 s{S_T+3}, s{S_H}, 1"); o(f"s_lshl_b32 s{S_T+4}, s{S_T+3}, 10"); o(f"s_add_u32 s{S_T+5}, s{S_T+5}, s{S_T+4}"); o(f"s_add_u32 s{S_T+5}, s{S_T+5}, {32*1024}")
    o(f"s_cmp_lt_u32 s{S_H}, 22"); o(f"s_cselect_b32 s77, s{S_T+5}, 0x7f000000")
    o(f"s_lshl_b32 s78, s{S_T+3}, 6"); o("s_add_u32 s78, s78, 2048")
    o(f"s_lshl_b32 s{S_T+3}, s{S_P}, 2"); o(f"s_sub_u32 s79, 64, s{S_T+3}"); o(f"s_lshl_b32 s{S_D4}, s{S_P}, 4"); o(f"s_add_u32 s{S_D4}, s{S_D4}, 32")
    o(f"s_lshl_b32 s{S_T+3}, s{S_H}, 19")
    o(f"s_cmp_eq_u32 s{S_ROLE}, 0"); o(f"s_mov_b32 s{S_T+5}, {VF_OFF - 16384}"); o(f"s_cselect_b32 s{S_T+4}, {KF_OFF}, s{S_T+5}"); o(f"s_cselect_b32 s{S_T+5}, 0, 16384")
    o(f"s_add_u32 s{S_T+4}, s{S_T+4}, s{S_T+3}"); o(f"s_add_u32 s{S_FS}, s{S_WS}, s{S_T+4}"); o(f"s_addc_u32 s{S_FS+1}, s{S_WS+1}, 0")
    o(f"s_lshl_b32 s{S_FS+2}, s79, 13"); o(f"s_add_u32 s{S_FS+2}, s{S_FS+2}, s{S_T+5}")
    o("s_and_b32 s72, s2, 1"); o("s_lshl_b32 s72, s72, 7")
    o(f"s_lshl_b32 s47, s{S_H}, 7"); o(f"s_add_u32 s47, s47, {KVF_OFF}"); o(f"s_lshl_b32 s73, s{S_P}, 2"); o("s_add_u32 s74, s47, s73")
    o(f"s_lshl_b32 s45, s{S_P}, 7"); o(f"s_lshl_b32 s73, s{S_H}, 2"); o("s_add_u32 s45, s45, s73"); o(f"s_add_u32 s45, s45, {HF_OFF}")
    o(f"s_lshl_b32 s{S_T+2}, s{S_H}, 4"); o(f"s_lshl_b32 s{S_T+3}, s{S_G}, 3"); o(f"s_add_u32 s{S_T+2}, s{S_T+2}, s{S_T+3}"); o(f"s_add_u32 s{S_T+2}, s{S_T+2}, {FLG_OFF}")
    o(f"s_lshr_b32 s{S_T+1}, s{S_T+1}, 3"); o(f"s_lshl_b32 s{S_T+1}, s{S_T+1}, 9"); o(f"s_add_u32 s{S_WKB}, s{S_T+1}, s{S_T+2}")
    o(f"s_lshr_b32 s{S_T}, s{S_T}, 3"); o(f"s_lshl_b32 s{S_T}, s{S_T}, 9"); o(f"s_add_u32 s79, s{S_T}, s{S_T+2}"); o("s_add_u32 s79, s79, 4")
    o(f"v_cmp_eq_u32 vcc, 0, v{V_LANE}"); o("v_mov_b32 v62, 0x7f000000"); o("v_mov_b32 v63, 0"); o(f"v_cndmask_b32 v{V_XNST}, v62, v63, vcc")
    o("v_mov_b32 v61, 1"); o("s_nop 0"); o("v_mov_b32 v228, 0"); o("v_mov_b32 v229, 0"); o("v_mov_b32 v230, 0"); o("v_mov_b32 v231, 0")
    o(f"v_and_b32 v62, 7, v{V_LANE}"); o("v_lshlrev_b32 v62, 2, v62")
    if os.environ.get('STG') == '99': Kk.stamp(3, force=True)
    ems(first[cut:])
    if os.environ.get('STG') == '99': Kk.stamp(4, force=True)
    ems(c_loads(1))
    def r2(Kk):
        o(f"s_cmp_lg_u32 s{S_ROLE}, 0"); o("s_cbranch_scc1 mg_t4")
        o(f"buffer_load_dword v{TD}, v233, s[{S_WUK}:{S_WUK+3}], s49 offen")
        o("s_branch mg_t5")
        Kk.label("mg_t4")
        o(f"buffer_load_dword v{TD}, v232, s[{S_C}:{S_C+3}], s54 offen")
        Kk.label("mg_t5")
        Kk.vm.append("pf")
    r2.cost = 7
    r3 = lambda Kk: Kk.vmem(f"buffer_load_dword v{TD}, v232, s[{S_C}:{S_C+3}], s54 offen offset:512", "pf")
    R2E = int(os.environ.get("R2E", 0))
    if R2E: r2(Kk)
    ems(issue_w(1))
    if os.environ.get('STG') == '99': Kk.stamp(5, force=True)
    ems(shuffle(0)); ems(shuffle(1))
    if os.environ.get('STG') == '99': Kk.stamp(6, force=True)
    if os.environ.get('STG') == '99': Kk.stamp(7, force=True)
    LB = K("ln"); ln_rows(LB, LNB)
    queueL = [lambda Kk: Kk.wait_vm(["x"])] + [x_.strip() for x_ in LB.lines] + [lambda Kk: Kk.lds(f"ds_write_b128 v224, {v(LNB,4)}", "XW"), lambda Kk: Kk.lds(f"ds_write_b128 v224, {v(LNB+4,4)} offset:16", "XW")]
    xnst = [lambda Kk: Kk.lds(f"ds_read_b128 {v(LNB,4)}, v225", "XR"), lambda Kk: Kk.lds(f"ds_read_b128 {v(LNB+4,4)}, v225 offset:1024", "XR"),
            ("at", 8), lambda Kk: Kk.wait_lg(["XR"]),
            lambda Kk: Kk.vmem(f"buffer_store_dwordx4 {v(LNB,4)}, v226, s[{S_WS}:{S_WS+3}], s52 offen{SC1}", "xs"),
            lambda Kk: Kk.vmem(f"buffer_store_dwordx4 {v(LNB+4,4)}, v226, s[{S_WS}:{S_WS+3}], s52 offen offset:2048{SC1}", "xs")]
    flagz = [lambda Kk: Kk.vmem(f"buffer_store_dwordx2 v[228:229], v{V_XNST}, s[{S_WS}:{S_WS+3}], s{S_WKB} offen{SC1}", "xs"),
             lambda Kk: Kk.vmem(f"buffer_store_dword v228, v{V_SIG}, s[{S_WS}:{S_WS+3}], s74 offen{SC1}", "xs"),
             lambda Kk: Kk.vmem(f"buffer_store_dword v228, v{V_SIG}, s[{S_WS}:{S_WS+3}], s45 offen{SC1}", "xs"),
             ]
    def prefill(ks):
        out = [f"s_lshl_b32 s55, s2, 15", f"s_lshl_b32 s54, s{S_WAVE}, 13", "s_add_u32 s55, s55, s54", f"s_add_u32 s55, s55, {EX_OFF + (ks[0] // 4) * 4096}", "v_mov_b32 v3, -1", "v_mov_b32 v2, -1"]
        out = out[:4] + [f"v_mov_b32 v{180+r}, -1" for r in range(4)]
        return out + [lambda Kk, k=k: Kk.vmem(f"buffer_store_dwordx4 v[180:183], v{V_L16}, s[{S_WS}:{S_WS+3}], s55 offen offset:{(k%4)*1024}{SC1}", "pfl") for k in ks]
    def touch(role, srd, vreg, sreg):
        lab = Kk.newlabel("mg_tc")
        def f(Kk):
            o(f"s_cmp_lg_u32 s{S_ROLE}, {role}"); o(f"s_cbranch_scc1 {lab}")
            o(f"buffer_load_dword v63, v{vreg}, s[{srd}:{srd+3}], s{sreg} offen")
            Kk.label(lab)
        f.cost = 7
        return f
    Kk.wait_vm(["W0"])
    o("s_barrier")
    Kk.stamp(3)
    if os.environ.get('STG') == '99': Kk.stamp(12, force=True)
    ems(trr(0, 0, 0))

    def kv_epilogue(G):
        kind, acc, _ = GR[G]; gi = G % 2
        out = []
        if kind == 'K':
            for tb in range(4):
                out.append(f"s_add_u32 s{S_STT}, s{S_KST}, {tb*4096 + gi*2048}")
                for dsl in range(2):
                    q0 = acc + ((2*dsl)*4 + tb)*4; q1 = acc + ((2*dsl+1)*4 + tb)*4
                    out += [f"v_mul_f32 v{x+r}, {hex(KSCALE)}, v{x+r}" for x in (q0, q1) for r in range(4)]
                    out += [f"v_cvt_pk_bf16_f32 v{q0}, v{q0}, v{q0+1}", f"v_cvt_pk_bf16_f32 v{q0+1}, v{q0+2}, v{q0+3}",
                            f"v_cvt_pk_bf16_f32 v{q0+2}, v{q1}, v{q1+1}", f"v_cvt_pk_bf16_f32 v{q0+3}, v{q1+2}, v{q1+3}"]
                    out.append(lambda Kk, q0=q0, dsl=dsl: Kk.vmem(f"buffer_store_dwordx4 {v(q0,4)}, v{V_L16}, s[{S_WS}:{S_WS+3}], s{S_STT} offen offset:{dsl*1024}{KVSC}", f"st{G}"))
        else:
            for tp in range(2):
                out.append(f"s_add_u32 s{S_STT}, s{S_VST}, {tp*8192 + gi*4096}")
                for fb in range(4):
                    q0 = acc + (fb*4 + 2*tp)*4; q1 = q0 + 4
                    out += [f"v_cvt_pk_bf16_f32 v{q0}, v{q0}, v{q0+1}", f"v_cvt_pk_bf16_f32 v{q0+1}, v{q0+2}, v{q0+3}",
                            f"v_cvt_pk_bf16_f32 v{q0+2}, v{q1}, v{q1+1}", f"v_cvt_pk_bf16_f32 v{q0+3}, v{q1+2}, v{q1+3}"]
                    out.append(lambda Kk, q0=q0, fb=fb: Kk.vmem(f"buffer_store_dwordx4 {v(q0,4)}, v{V_L16}, s[{S_WS}:{S_WS+3}], s{S_STT} offen offset:{fb*1024}{KVSC}", f"st{G}"))
        if os.environ.get("NOST"): out = [e for e in out if not callable(e)] + [lambda Kk: Kk.vm.append(f"st{G}")]
        for e in out:
            if callable(e): e.store = True; e.grp = G
        return out
    def HB_(fb, tb): return 128 + ((fb*4 + tb) if fb < 2 else (8 + (fb-2)*2 + tb)) * 4
    def h_epilogue():
        out = []
        T0, T1 = 56, 176
        R4 = range(4)
        def mish(b):
            o_ = []
            o_ += [f"v_mul_f32 v{T0+r}, {hex(fbits(LOG2E))}, v{b+r}" for r in R4]
            o_ += [f"v_min_f32 v{T0+r}, {hex(fbits(20*LOG2E))}, v{T0+r}" for r in R4]
            o_ += [f"v_exp_f32 v{T0+r}, v{T0+r}" for r in R4]
            o_ += [f"v_add_f32 v{T1+r}, 2.0, v{T0+r}" for r in R4]
            o_ += [f"v_mul_f32 v{b+r}, v{b+r}, v{T0+r}" for r in R4]
            o_ += [f"v_mul_f32 v{b+r}, v{b+r}, v{T1+r}" for r in R4]
            o_ += [f"v_fma_f32 v{T1+r}, v{T0+r}, v{T1+r}, 2.0" for r in R4]
            o_ += [f"v_rcp_f32 v{T1+r}, v{T1+r}" for r in R4]
            o_ += [f"v_mul_f32 v{b+r}, v{b+r}, v{T1+r}" for r in R4]
            return o_
        for (f0, tb, sreg) in [(0, 0, 76), (0, 1, 76), (0, 2, 76), (0, 3, 76), (2, 0, 77), (2, 1, 77)]:
            q0, q1 = HB_(f0, tb), HB_(f0 + 1, tb)
            out += mish(q0) + mish(q1)
            out += [f"v_cvt_pk_bf16_f32 v{q0}, v{q0}, v{q0+1}", f"v_cvt_pk_bf16_f32 v{q0+1}, v{q0+2}, v{q0+3}",
                    f"v_cvt_pk_bf16_f32 v{q0+2}, v{q1}, v{q1+1}", f"v_cvt_pk_bf16_f32 v{q0+3}, v{q1+2}, v{q1+3}"]
            out.append(lambda Kk, q0=q0, tb=tb, sreg=sreg: Kk.vmem(f"buffer_store_dwordx4 {v(q0,4)}, v{12+tb}, s[{S_WS}:{S_WS+3}], s{sreg} offen{SC1}", "hs"))
        return out
    def q_pack(acc):
        out = []
        for tb in range(4):
            for dsl in range(2):
                q0 = acc + ((2*dsl)*4 + tb)*4; q1 = acc + ((2*dsl+1)*4 + tb)*4
                out += [f"v_cvt_pk_bf16_f32 v{q0}, v{q0}, v{q0+1}", f"v_cvt_pk_bf16_f32 v{q0+1}, v{q0+2}, v{q0+3}",
                        f"v_cvt_pk_bf16_f32 v{q0+2}, v{q1}, v{q1+1}", f"v_cvt_pk_bf16_f32 v{q0+3}, v{q1+2}, v{q1+3}"]
        return out
    def q_move(acc, half):
        return [f"v_accvgpr_write_b32 a{AQ(tb, 2*half+dsl)+r}, v{acc + ((2*dsl)*4 + tb)*4 + r}" for tb in range(4) for dsl in range(2) for r in range(4)]
    def poll(ld, cmp_ops, tag):
        def issue(Kk):
            l = Kk.newlabel("mg_pw")
            o(f"s_cmp_lg_u32 s{S_WAVE}, 0"); o(f"s_cbranch_scc1 {l}")
            o(ld); Kk.label(l)
            Kk.vm.append(None); Kk.vm.pop(); Kk.pollmark = len(Kk.vm)
        def chk(Kk):
            l = Kk.newlabel("mg_pw")
            o(f"s_cmp_lg_u32 s{S_WAVE}, 0"); o(f"s_cbranch_scc1 {l}")
            o(f"s_waitcnt vmcnt({min(63, len(Kk.vm) - Kk.pollmark)})")
            for c in cmp_ops: o(c)
            o("s_nop 0")
            poll_stub(Kk, V_ACT, ld, cmp_ops)(Kk)
            Kk.label(l)
        issue.cost = 8; chk.cost = 8
        return issue, [chk]

    queue = []
    bufc = 0
    SIG = int(os.environ.get('SIG', 21))
    B1R = [56, 58, 2]; LNS = int(os.environ.get('LNS', 3)); XS_ = LNS + int(os.environ.get('XSD', 3))
    DONE_ = {ST.index((3, 0)): 0, 13: 1, 16: 2, SIG - 1: 3}
    gpos = 0; last_st = -100; PACE = int(os.environ.get('PACE', 20))
    for n in range(NS):
        G, q = ST[n]
        kind, acc, nfb = GR[G]
        mf = []; bufs = []; mf_alt = None
        if kind == 'H':
            bufs = [bufc, 1 - bufc, bufc, 2]
            def hm(par):
                m_ = []
                for fb in range(4):
                    for tbl in range(4 if fb < 2 else 2):
                        tb = tbl if fb < 2 else 2 * par + tbl
                        for ksl in range(4):
                            D = v(HB_(fb, tbl), 4)
                            C = D if (q or ksl) else v(BIAS + 4*fb, 4)
                            m_.append(mfma(D, v((WF + bufs[fb]*16 if bufs[fb] < 2 else 192) + ksl*4, 4), a((tb*16 + 4*q + ksl)*4, 4), C))
                return m_
            mf = hm(0); mf_alt = hm(1)
        for fb in range(nfb if kind != 'H' else 0):
            buf = (bufc + fb) % 2; bufs.append(buf)
            for tb in range(4):
                for ksl in range(4):
                    D = v(acc + (fb*4+tb)*4, 4)
                    C = D if (q or ksl) else "0"
                    Wr = v(WF + buf*16 + ksl*4, 4); Xr = a((tb*16 + 4*q + ksl)*4, 4)
                    mf.append(mfma(D, Xr, Wr, C) if kind == 'V' else mfma(D, Wr, Xr, C))
        bufc = (bufc + nfb) % 2
        sc = Sched(len(mf))
        if n in DONE_: assert not any(getattr(e, 'grp', None) == DONE_[n] for e in queue), (n, len(queue))
        w0 = [f"T{n}_0"] + ([f"S{2*q}", f"S{2*q+1}"] if G == 0 else [])
        if G == 4: sc.put(-1, lambda Kk, q=q: Kk.wait_vm([f"X{q}"]))
        sc.put(-1, lambda Kk, w0=w0: Kk.wait_lg(w0))
        for fb in range(nfb - 1):
            for i, e in enumerate(trr(n, fb + 1, bufs[fb + 1])): sc.put(fb*16 + i, e)
            if fb < nfb - 2: sc.put(fb*16 + 15, lambda Kk, n=n, fb=fb: Kk.wait_lg([f"T{n}_{fb+1}"]))
        if kind == 'H':
            for i, e in enumerate(trr(n, 3, 2)): sc.slots[min(8 + i, 15)].insert(0, e) if i < 7 else sc.slots[15].insert(len(sc.slots[15]) - 1, e); sc.cost[min(8 + i, 15)] += 4
        lb = (nfb - 1) * 16
        need = [f"W{n+1}"] if n + 1 < NS else []
        if n == XS_ - 1: need.append("xs")
        if n == SIG - 1: need += ["st2", "st3"]
        def barw(Kk, need=need, n=n, nfb=nfb):
            nv = min([Kk.vm_after(t) for t in need] + [63 if n + 1 < NS else 24])
            Kk.op(f"s_waitcnt vmcnt({nv}) lgkmcnt({Kk.lg_n([f'T{n}_{nfb-1}'] + (['XW'] if n == LNS else []))})")
        sc.put(lb - 1, barw); sc.put(lb - 1, "s_barrier")
        if n + 1 < NS:
            for i, e in enumerate(trr(n + 1, 0, bufc)): sc.put(lb + i, e)
        else:
            sc.put(lb - 2, f"v_mov_b32 v{V_KA}, v{V_L16}")
            for i in range(8): sc.put(lb + i, kread(i))
        dm = []
        wdm = []
        if n == 6: stream += issue_w(9)
        if R8:
            for m_ in {7: [10, 12], 8: [11, 13], 9: [14, 15], 10: [16, 17]}.get(n, [n + 7] if 11 <= n <= 20 else []): dm += issue_w(m_)
        elif 7 <= n and n + 3 < NS: dm += issue_w(n + 3)
        if n and n == int(os.environ.get('TUV', 5)): dm.append(touch(1, S_WUV, 233, 49))
        def mall(srd, shift, mask, reg):
            return [f"s_lshl_b32 s55, s2, 2", f"s_add_u32 s55, s55, s{S_WAVE}", f"s_lshl_b32 s55, s55, {shift}",
                    f"v_and_b32 v{reg}, {mask}, v{V_LANE}", f"v_lshlrev_b32 v{reg}, 7, v{reg}",
                    lambda Kk: Kk.vmem(f"buffer_load_dword v63, v{reg}, s[{srd}:{srd+3}], s55 offen", "pf")]
        if n == int(os.environ.get('MUV', 1)): dm += mall(S_WUV, 12, 31, 237)
        if n == int(os.environ.get('MQ', 5)): dm += mall(S_WQ, 12, 31, 237) + mall(S_W1, 11, 15, 237)
        if n == int(os.environ.get('TQ', 8)): dm += [f"v_lshlrev_b32 v57, 13, v{V_LANE}", touch(0, S_WQ, 57, 49)]
        if n == int(os.environ.get('TQ', 8)) + 1:
            dm += [f"v_mul_u32_u24 v57, 2752, v{V_LANE}", f"s_mul_i32 s49, s{S_P}, {64*2752}", f"s_lshl_b32 s{S_T+6}, s{S_H}, 6", lambda Kk: (o(f"s_cmp_eq_u32 s{S_G}, 0"), o(f"s_cselect_b32 s{S_T+6}, s{S_T+6}, s78")), f"s_add_u32 s49, s49, s{S_T+6}", touch(1, S_W1, 57, 49)]
        if n == XS_: dm = [signal(72, 61)] + dm
        if n == SIG: dm.append(lambda Kk: Kk.vmem(f"buffer_store_dword v61, v{V_SIG}, s[{S_WS}:{S_WS+3}], s74 offen{SC1}", "sig"))
        if n == int(os.environ.get('XT', 12)) - int(os.environ.get('XP', 3)):
            pl, pc = poll(f"buffer_load_dword v{V_ACT}, v56, s[{S_DBG}:{S_DBG+3}], 0 offen{SC1}", [f"v_cmp_gt_u32 vcc, 0x80, v{V_ACT}"], "px"); dm += [f"v_and_b32 v56, 1, v{V_LANE}", "v_lshlrev_b32 v56, 7, v56", pl]
        if n == int(os.environ.get('XT', 12)) - 1: dm += pc
        XT = int(os.environ.get('XT', 12))
        if n in (XT, XT + 1) and os.environ.get('DOXT'):
            dm.append(f"s_and_b32 s{S_T+6}, s{S_H}, 3"); dm.append(f"s_lshl_b32 s{S_T+6}, s{S_T+6}, 14"); dm.append(f"s_add_u32 s{S_T+6}, s{S_T+6}, s{S_XN}")
            if n == XT + 1: dm.append(f"s_add_u32 s{S_T+6}, s{S_T+6}, 8192")
            dm.append(f"v_lshlrev_b32 v{V_ACT}, 7, v{V_LANE}")
            dm.append(lambda Kk: Kk.vmem(f"buffer_load_dword v63, v{V_ACT}, s[{S_WS}:{S_WS+3}], s{S_T+6} offen{SC1}", "pf"))
        XL = [{13: [(0, (0, 1, 2))], 14: [(0, (3,)), (1, (0, 1))], 15: [(1, (2, 3)), (2, (0,))], 16: [(2, (1, 2, 3))], 17: [(3, (0, 1, 2, 3))]},
              {12: [(0, (0, 1))], 13: [(0, (2, 3))], 14: [(1, (0, 1, 2))], 15: [(1, (3,)), (2, (0, 1))], 16: [(2, (2, 3)), (3, (0,))], 17: [(3, (1, 2, 3))]},
              {11: [(0, (0, 1))], 12: [(0, (2, 3))], 13: [(1, (0, 1))], 14: [(1, (2, 3))], 15: [(2, (0, 1, 2))], 16: [(2, (3,)), (3, (0, 1))], 17: [(3, (2, 3))]}][VO]
        if os.environ.get("NOXN"):
            if n == 12: Kk.vm += ["X0", "X1", "X2", "X3"]
        else:
            for x_ in XL.get(n, []): dm += xn_loads(*x_)
        if n == 13:
            dm.append(f"s_lshl_b32 s{S_T+6}, s{S_H}, 6")
            dm += [lambda Kk, fb=fb: Kk.vmem(f"buffer_load_dwordx2 {v(BIAS+4*fb+2,2)}, v2, s[{S_B1}:{S_B1+3}], s{S_T+6 if fb < 2 else 78} offen offset:{(fb%2)*32}", "b1") for fb in range(4)]
        if n == 22:
            pl2, pc2 = poll(f"buffer_load_dword v{V_ACT}, v62, s[{S_WS}:{S_WS+3}], s47 offen{SC1}", [f"v_cmp_eq_u32 vcc, 0, v{V_ACT}"], "pk"); dm.append(pl2)
        if n == 24: dm += pc2
        if n == 21: dm += prefill([0, 1, 2, 3])
        if n == 23: dm += prefill([4, 5, 6, 7])
        if 25 <= n <= 27: dm += sum((fill(x_, 0) for x_ in [(0, 1), (2, 3, 4), (5, 6, 7)][n - 25]), [])
        if n >= NS - 3: dm += fill(2*(n - (NS - 3)) + 2, 1) + fill(2*(n - (NS - 3)) + 3, 1)
        AT = lambda p_: ("at", p_)
        if n == 0:
            G_ = lambda g_: ("g", g_)
            stream = ([] if R2E else [r2]) + c_loads(2) + [r3] + ([touch(1, S_WUV, 233, 49)] if int(os.environ.get('TUV', 5)) == 0 else []) + issue_w(2) + c_loads(3) + shuffle(2) + issue_w(3) + [G_(112)] + shuffle(3) + c_loads(4) + issue_w(4) + \
                     c_loads(5) + shuffle(4) + issue_w(5) + [G_(236)] + shuffle(5) + c_loads(6) + issue_w(6) + c_loads(7) + shuffle(6) + issue_w(7) + [G_(360)] + shuffle(7) + issue_w(8)
            for e in stream:
                if callable(e) and not hasattr(e, "isv"): e.isv = None
            lastv = -4
        if n == LNS + 1: dm = xnst + flagz + dm
        if n <= 6:
            pos = 0
            SPC = int(os.environ.get("SPC", 3))
            while stream:
                e = stream[0]
                if isinstance(e, tuple):
                    if e[1] >= gpos + len(mf): break
                    pos = max(pos, e[1] - gpos); stream.pop(0); continue
                nx = stream[1] if len(stream) > 1 else None
                ism0 = isinstance(e, str) and "m0," in e
                if ism0: pos = max(pos, lastv + SPC - 1 - gpos)
                while pos < len(mf) and sc.cost[pos] + sc.c(e) > 8: pos += 1
                if pos >= len(mf) - (1 if ism0 else 0): break
                sc.put(pos, e); stream.pop(0)
                if ism0:
                    pos += 1; sc.put(pos, stream.pop(0)); lastv = gpos + pos
            if n == 6: assert not stream
        pos = 1
        nv_ = sum(1 for e in dm if callable(e))
        lim = (lb - 3) if any(getattr(e, "cost", 4) == 8 for e in dm) else len(mf) - 4
        spc = (lim - 1) / max(nv_, 1)
        kv_ = 0
        for ie, e in enumerate(dm):
            if isinstance(e, tuple): pos = max(pos, e[1]); continue
            tgt_ = int(1 + kv_ * spc)
            if not callable(e): tgt_ -= 1
            pos = max(pos, tgt_)
            while sc.cost[pos] + sc.c(e) > 8 and pos < len(mf) - 1: pos += 1
            sc.put(pos, e)
            if callable(e): kv_ += 1
            if getattr(e, "cost", 4) == 8: assert pos < lb - 1, (n, pos)
            if isinstance(e, str) and "m0," in e:
                pos += 1; assert pos < len(mf), n
        if n == 6:
            queue += [f"v_and_b32 v240, 15, v{V_LANE}", f"v_lshrrev_b32 v241, 4, v{V_LANE}", "v_lshlrev_b32 v241, 2, v241"]
            for r in range(4): queue += [f"v_add_u32 v242, {r}, v241", f"v_cmp_gt_u32 s[{S_MSK+2*r}:{S_MSK+2*r+1}], v242, v240"]
        if n == 7: queue += kv_epilogue(0)
        if n == 8: queue += kv_epilogue(1)
        if n == 15: queue = [lambda Kk: Kk.wait_vm(["b1"])] + queue; queue[1:1] = [x for fb in range(4) for r in range(2) for x in
                   (f"v_lshlrev_b32 v{BIAS+4*fb+2*r}, 16, v{BIAS+4*fb+2+r}", f"v_and_b32 v{BIAS+4*fb+2*r+1}, 0xffff0000, v{BIAS+4*fb+2+r}")]
        if n == ST.index((2, 3)) + 1: queue += kv_epilogue(2)
        if n == 16: queue += kv_epilogue(3)
        if n == 20: queue2 = h_epilogue()
        if n == 24: queue2 = q_pack(192) + queue2
        if n == 25: queue2 = q_move(192, 0) + queue2
        if n == 27: queue2 = [f"v_accvgpr_write_b32 a{A_Z+r}, 0" for r in range(4)] + ["v_mov_b32 v63, 0x3f803f80"] + [f"v_accvgpr_write_b32 a{A_ONE+r}, v63" for r in range(4)] + queue2
        pos = 10 if n in (7, 8, 12, 13, 15, 16, 20, 24) else 0
        while queue and pos < len(mf):
            e = queue[0]
            if getattr(e, "store", False):
                if gpos + pos < last_st + PACE: pos += 1; continue
            if sc.cost[pos] + sc.c(e) <= 8:
                sc.put(pos, e); queue.pop(0)
                if getattr(e, "store", False): last_st = gpos + pos
            else: pos += 1
        if n <= LNS:
            pos = 0
            while queueL and pos < (len(mf) if n < LNS else lb - 2):
                e = queueL[0]
                if isinstance(e, str) and e.startswith("s_nop"):
                    if pos + int(e[-1]) + 1 < len(mf) - 3: pos += int(e[-1]) + 1; queueL.pop(0); continue
                if sc.cost[pos] + sc.c(e) <= (12 if n < int(os.environ.get('LNC', 2)) else 8): sc.put(pos, e); queueL.pop(0)
                else: pos += 1
            if n == LNS: assert not queueL, len(queueL)
        if n >= 20:
            pos = 10 if n in (20, 24) else 0
            while queue2 and pos < len(mf):
                e = queue2[0]
                if sc.cost[pos] + sc.c(e) <= 8: sc.put(pos, e); queue2.pop(0)
                else: pos += 1
        gpos += len(mf)
        if mf_alt is None: emit_slots(Kk, mf, sc.slots)
        else:
            emit_slots(Kk, mf[:32], {g: sc.slots[g] for g in range(-1, 32)})
            la = Kk.newlabel("mg_hp"); lb_ = Kk.newlabel("mg_hp")
            o(f"s_bitcmp1_b32 s{S_H}, 0"); o(f"s_cbranch_scc1 {la}")
            sv, sl_ = list(Kk.vm), list(Kk.lg)
            tail = {g - 32: sc.slots[g] for g in range(32, 48)}
            emit_slots(Kk, mf[32:], tail)
            o(f"s_branch {lb_}")
            Kk.label(la)
            Kk.vm, Kk.lg = sv, sl_
            emit_slots(Kk, mf_alt[32:], tail)
            Kk.label(lb_)
        STG = os.environ.get('STG')
        if STG is not None:
            if 0 <= n - int(STG) < 15: Kk.stamp(1 + n - int(STG), force=True)
            if STG == '99' and n < 3: Kk.stamp(13 + n, force=True)
        elif n in (3, 7, 11, 15, 19, 23, 27): Kk.stamp({3: 4, 7: 7, 11: 8, 15: 13, 19: 1, 23: 2, 27: 14}[n])
    assert not queue
    print("mega proj leftover filler:", len(queue2))
    em(Kk, queue2)
    o("s_nop 7")
    em(Kk, q_pack(64) + q_move(64, 1))
    o(f"v_mov_b32 v{V_NEG}, 0xff800000")
    o(f"v_mov_b32 v15, v{V_SIG}"); o(f"v_mov_b32 v0, v{V_XNST}")
    o(f"s_lshl_b32 s{S_T}, s{S_G}, 14"); o(f"s_add_u32 s{S_T}, s{S_T}, {XOFF}"); o(f"v_add_u32 v{V_T0}, s{S_T}, v{V_L16}")
    o(f"s_cmp_eq_u32 s{S_G}, 0"); o(f"s_mov_b32 s{S_T+1}, 0x6000"); o(f"s_cselect_b32 s{S_T}, {XOFF + 15*1024}, s{S_T+1}"); o(f"v_add_u32 v{V_T1}, s{S_T}, v{V_L16}")
    o(f"s_cmp_lg_u32 s{S_ROLE}, 0"); o("s_cbranch_scc1 k2_nopub")
    for j in range(4):
        for ds in range(4):
            if j*4+ds < 15: o(f"ds_write_b128 v{V_T0}, {a(AQ(j, ds), 4)} offset:{(j*4+ds)*1024}")
            else: o(f"ds_write_b128 v{V_T1}, {a(AQ(j, ds), 4)}")
    Kk.label("k2_nopub")
    o("s_mov_b32 s50, s45")
    o(f"s_mov_b32 s{S_TGT}, 4"); o(f"s_mov_b32 s{S_FT}, {8*8192}"); o(f"s_mov_b32 s{S_PH}, 0"); o("s_mov_b32 s7, 0x4000"); o(f"s_mov_b32 s{S_NF}, 0")
    o("s_mov_b32 m0, s48")
    o(f"s_mov_b32 s48, s{S_WKB}")
    o(f"v_add_u32 v{V_KA}, 0x4000, v{V_L16}"); o(f"v_add_u32 v{V_VA}, 0x8000, v{V_L16}")
    o(f"v_lshlrev_b32 v{V_CNT}, 2, v{V_LANE}"); o(f"v_add_u32 v{V_CNT}, {CNTOFF}, v{V_CNT}"); o(f"v_mov_b32 v{V_ONE}, 1")
    o(f"s_cmp_eq_u32 s{S_ROLE}, 0"); o(f"s_cselect_b32 s{S_DST}, s{S_D4}, 0x7fffff00")
    if not os.environ.get("NOMPF"):
        o("s_load_dwordx2 s[28:29], s[0:1], 40"); o("s_load_dwordx2 s[32:33], s[0:1], 72")
        o(f"s_lshl_b32 s{S_T}, s2, 2"); o(f"s_add_u32 s{S_T}, s{S_T}, s{S_WAVE}")
        o(f"v_and_b32 v112, 31, v{V_LANE}"); o("v_lshlrev_b32 v112, 7, v112")
        o(f"s_lshl_b32 s38, s{S_T}, 12"); o(f"s_lshl_b32 s37, s{S_T}, 11")
        o(f"v_and_b32 v113, 15, v{V_LANE}"); o("v_lshlrev_b32 v113, 7, v113")
        o("s_waitcnt lgkmcnt(0)")
        o(f"s_mov_b32 s30, {SZ['wo']}"); o(f"s_mov_b32 s34, {SZ['w2']}")
        o("s_lshr_b32 s65, s2, 3"); o("s_lshl_b32 s65, s65, 2"); o(f"s_add_u32 s65, s65, s{S_WAVE}")
        o("s_and_b32 s66, s2, 7"); o("s_lshr_b32 s66, s66, 1")
        o("s_lshl_b32 s67, s66, 20"); o("s_lshl_b32 s68, s65, 13"); o("s_add_u32 s67, s67, s68")
        o(f"v_lshlrev_b32 v114, 7, v{V_LANE}"); o("v_add_u32 v114, s67, v114")
        o("s_mul_i32 s65, s65, 44"); o(f"v_min_u32 v115, 43, v{V_LANE}"); o("v_add_u32 v115, s65, v115"); o("v_lshlrev_b32 v115, 8, v115")
        o("s_and_b32 s66, s66, 1"); o("s_lshl_b32 s66, s66, 7"); o("v_add_u32 v115, s66, v115")
        o("s_getpc_b64 s[4:5]")
        Kk.label("mg_pc2")
        o(f"s_lshl_b32 s65, s{S_WAVE}, 13"); o("s_add_u32 s65, s65, k2_merge-mg_pc2")
        o(f"v_lshlrev_b32 v116, 7, v{V_LANE}"); o("v_add_u32 v116, s65, v116"); o("v_min_u32 v116, mg_exit-mg_pc2, v116")
        if not os.environ.get("NOWT"):
            Kk.drn_extra = ["global_load_dword v110, v116, s[4:5]", "buffer_load_dword v110, v115, s[32:35], 0 offen", "buffer_load_dword v110, v114, s[28:31], 0 offen"]
        Kk.pro_extra = ["buffer_load_dword v110, v112, s[28:31], s38 offen", "buffer_load_dword v110, v113, s[32:35], s37 offen"]
    Kk.stamp(5)
    o("s_mov_b32 s36, s79")
    Kk.mega = True
    from mega_p4 import p4, p4_pre, p4_pre0, p4_pre2
    Kk.p4_pre = p4_pre; Kk.p4_pre0 = p4_pre0; Kk.p4_pre2 = lambda Kk: p4_pre2(Kk, poll_stub)
    attention(Kk)
    Kk.stamp(10)
    p4(Kk, poll_stub)
    Kk.stamp(15)
    if os.environ.get("DBGOUT"):
        o("s_cmp_lg_u32 s2, 100"); o("s_cbranch_scc1 mg_nodbg"); o(f"s_cmp_lg_u32 s{S_WAVE}, 0"); o("s_cbranch_scc1 mg_nodbg")
        o("s_mov_b64 exec, 1")
        for k_, i in enumerate((11, 3, 4, 7, 8, 13, 1, 2, 14, 5, 9, 10, 6, 15)):
            o(f"s_sub_u32 s65, s{80+i}, s80"); o("v_mov_b32 v0, s65")
            o(f"buffer_store_dword v0, off, s[{S_DBG}:{S_DBG+3}], 0 offset:{4+4*k_}")
        Kk.label("mg_nodbg")
    else:
        Kk.stamp_flush(0, S_WAVE, S_WS)
    o("s_endpgm")
    emit_stubs(Kk)
    emit_pstubs(Kk)
    rare(Kk, 0)
    rare(Kk, 1)
    Kk.label("mg_exit")
    o("s_endpgm")
    kernel_desc(Kk, Kk.name, vgpr=512, accum=256)
    return Kk
```

```python
from att import *
from lsched import Item, schedule
CACC = 64; HACC = 128; WFH = 16
CW = 192
HR = int(os.environ.get('HR', 4))
HB = 0x24000 - HR * 0x4000
def HAR(slot, tb): return a(slot * 16 + tb * 4, 4)
def CAR(buf, tb): return a(64 + buf * 16 + tb * 4, 4)
WS = f"s[{S_WS}:{S_WS+3}]"
RING = 9; DIST = int(os.environ.get("DIST", 7))
CLD = f"buffer_load_dword v62, v247, {WS}, s39 offen sc1"
def hchk(j): return ["v_cmp_eq_u32 vcc, 0, v62", "s_nop 1", f"s_and_b32 s63, vcc_lo, {hex(0xf << (4*j))}"]
CCMP = ["v_cmp_eq_u32 vcc, 0, v62"]
ELD = f"buffer_load_dword v62, v63, {WS}, s38 offen sc1"

def h_load(Kk, i):
    slot = i % HR
    out = []
    if i == 10: out += ["s_cmp_eq_u32 s40, 3", "s_cselect_b32 s51, 0x7f000000, s51"]
    for tb in range(4):
        out.append(lambda Kk, tb=tb: Kk.vmem(f"buffer_load_dwordx4 {HAR(slot, tb)}, v{52+tb}, {WS}, s51 offen sc1", f"H{i}"))
    for k in range(4):
        out.append(f"s_add_u32 m0, s47, {slot*4096 + k*1024}")
        out.append(lambda Kk, k=k: Kk.vmem(f"buffer_load_dwordx4 v{48+k}, s[12:15], s50 offen lds", f"H{i}"))
    out += ["s_add_u32 s50, s50, 32768", "s_add_u32 s51, s51, 1024"]
    return out
def h_trr(i):
    return [lambda Kk, fb=fb, rd=rd: Kk.lds(f"ds_read_b64_tr_b16 {v(WFH+(i%2)*16+fb*4+rd*2,2)}, v{56+fb} offset:{(i%HR)*4096+rd*2048}", f"HT{i}") for fb in range(4) for rd in range(2)]
def c_fetch(n):
    slot = n % RING
    return (["s_add_u32 s55, s55, s60", "s_add_u32 s54, s54, s61"] if n == 16 else []) + [f"s_add_u32 m0, s53, {slot*16384}",
            lambda Kk: Kk.vmem(f"buffer_load_dwordx4 v224, {WS}, s55 offen sc1 lds", f"C{n}"),
            lambda Kk: Kk.vmem(f"buffer_load_dwordx4 v225, {WS}, s55 offen offset:1024 sc1 lds", f"C{n}"),
            f"s_add_u32 m0, s53, {slot*16384 + 8192}",
            "s_add_u32 s55, s55, 1024",
            lambda Kk: Kk.vmem("buffer_load_dwordx4 v226, s[24:27], s54 offen lds", f"C{n}"),
            lambda Kk: Kk.vmem("buffer_load_dwordx4 v227, s[24:27], s54 offen offset:1024 lds", f"C{n}"),
            "s_add_u32 s54, s54, 32768"]
def c_reads(n):
    slot = n % RING; buf = n % 2
    hi = slot // 4
    out = []
    for k in range(4):
        out.append((lambda Kk, k=k: Kk.lds(f"ds_read_b128 {CAR(buf, k)}, v{[232, 233, 246][hi]} offset:{(slot % 4)*16384 + k*1024}", f"CR{n}")))
        for rd in range(2):
            out.append((lambda Kk, k=k, rd=rd: Kk.lds(f"ds_read_b64_tr_b16 {v(CW+buf*16+k*4+rd*2,2)}, v{[228, 236, 242][hi]+k} offset:{(slot % 4)*16384 + 8192 + rd*4096}", f"CR{n}")))
    return out
def ems(Kk, lst):
    prev = False
    for e in lst:
        if callable(e):
            if prev: Kk.op("s_nop 0")
            e(Kk); prev = False
        else:
            Kk.op(e); prev = "m0," in e

HL = f"buffer_load_dword v16, v61, {WS}, s38 offen sc1"
def p4_pre0(Kk):
    o = Kk.op
    o("s_load_dwordx2 s[28:29], s[0:1], 0")
    o("s_load_dwordx2 s[30:31], s[0:1], 40")
    o("s_load_dwordx4 s[32:35], s[0:1], 72")
    o("s_and_b32 s5, s2, 7"); o("s_lshr_b32 s5, s5, 1")
    o("s_and_b32 s6, s2, 1"); o("s_lshl_b32 s6, s6, 3"); o("s_lshr_b32 s4, s2, 5"); o("s_add_u32 s6, s6, s4")
    o("s_lshr_b32 s4, s2, 3"); o("s_and_b32 s4, s4, 3")
    o("s_lshl_b32 s3, s6, 7"); o("s_lshr_b32 s52, s5, 1"); o("s_lshl_b32 s52, s52, 6"); o("s_add_u32 s3, s3, s52")
    o("s_lshl_b32 s52, s4, 8"); o("s_and_b32 s53, s5, 1"); o("s_lshl_b32 s53, s53, 7"); o("s_add_u32 s52, s52, s53")
    o("s_sub_u32 s38, 15, s6"); o("s_min_u32 s38, s38, s6"); o("s_lshl_b32 s38, s38, 7"); o(f"s_add_u32 s38, s38, {HF_OFF}")
    o("v_and_b32 v61, 31, v1"); o("v_lshlrev_b32 v61, 2, v61")
    o(HL)
def p4_pre(Kk):
    o = Kk.op
    o("s_lshl_b32 s39, s6, 9"); o("s_lshl_b32 s53, s5, 7"); o("s_add_u32 s39, s39, s53"); o(f"s_add_u32 s39, s39, {FLG_OFF}")
    o("v_lshrrev_b32 v20, 3, v1"); o("v_and_b32 v21, 7, v1"); o("v_bfe_u32 v22, v1, 4, 2"); o("v_lshlrev_b32 v22, 1, v22")
    o("v_xor_b32 v21, v21, v22"); o("v_lshlrev_b32 v20, 10, v20"); o("v_lshl_add_u32 v48, v21, 4, v20")
    for i in range(1, 4): o(f"v_add_u32 v{48+i}, {8192*i}, v48")
    o("v_lshrrev_b32 v20, 4, v1"); o("v_bfe_u32 v21, v1, 2, 2"); o("v_lshl_add_u32 v25, v20, 2, v21")
    o("v_bfe_u32 v23, v25, 1, 2")
    o("v_lshlrev_b32 v22, 7, v25"); o("v_and_b32 v24, 3, v1"); o("v_lshl_add_u32 v22, v24, 3, v22")
    o(f"s_mul_i32 s47, s40, {HR*0x1000}"); o(f"s_add_u32 s47, s47, {HB}")
    o("v_add_u32 v22, s47, v22")
    for fb in range(4):
        o(f"v_xor_b32 v26, {fb}, v23"); o(f"v_lshl_add_u32 v{56+fb}, v26, 5, v22")
    for tb in range(4):
        if tb == 0: o("v_mov_b32 v52, v7")
        else: o(f"v_add_u32 v{52+tb}, {tb*NKS*1024}, v7")
    o("v_and_b32 v21, 15, v1"); o("v_lshlrev_b32 v21, 10, v21"); o("v_lshl_add_u32 v60, v20, 3, v21")
    o("s_lshr_b32 s53, s3, 4"); o(f"s_mul_i32 s53, s53, {NKS*1024}"); o(f"s_add_u32 s53, s53, {ACT_OFF + 128*1024}")
    o(f"s_mul_i32 s50, s40, {11*32768}"); o("s_add_u32 s50, s50, s52")
    o(f"s_mul_i32 s51, s40, {11*1024}"); o("s_add_u32 s51, s51, s53")
    o("s_lshl_b32 s62, s40, 4"); o("s_add_u32 s62, s62, s3"); o("s_lshl_b32 s62, s62, 10"); o("s_add_u32 s62, s62, s52")
    o("s_lshl_b32 s55, s6, 3"); o("s_lshl_b32 s53, s40, 1"); o("s_add_u32 s55, s55, s53"); o(f"s_mul_i32 s55, s55, {NKS*1024}")
    o("s_lshl_b32 s53, s5, 15"); o("s_add_u32 s55, s55, s53"); o(f"s_add_u32 s55, s55, {ACT_OFF}")
    o("s_lshl_b32 s54, s5, 20"); o("s_lshl_b32 s53, s40, 13"); o("s_add_u32 s54, s54, s53"); o("s_lshl_b32 s53, s4, 8"); o("s_add_u32 s54, s54, s53")
    o("s_and_b32 s53, s2, 1"); o("s_lshl_b32 s60, s53, 14"); o("s_add_u32 s55, s55, s60"); o("s_lshl_b32 s61, s53, 19"); o("s_add_u32 s54, s54, s61")
    o("s_mul_i32 s60, s53, 0xffff8000"); o("s_mul_i32 s61, s53, 0xfff00000")
    o("s_lshl_b32 s53, s40, 11")
    o("s_andn2_b32 s56, s2, 6"); o("s_lshl_b32 s57, s40, 1"); o("s_or_b32 s56, s56, s57")
    o("s_and_b32 s57, s56, 7"); o("s_lshl_b32 s57, s57, 4"); o("s_lshl_b32 s58, s4, 2"); o("s_add_u32 s57, s57, s58")
    o("s_lshr_b32 s58, s2, 5"); o("s_lshl_b32 s58, s58, 7"); o("s_add_u32 s57, s57, s58"); o(f"s_add_u32 s57, s57, {HF_OFF}")
    o("s_lshl_b32 s56, s56, 15"); o("s_lshl_b32 s58, s5, 13"); o("s_add_u32 s56, s56, s58"); o(f"s_add_u32 s56, s56, {EX_OFF}")
    o("s_lshl_b32 s58, s2, 15"); o("s_lshl_b32 s59, s40, 11"); o("s_add_u32 s58, s58, s59"); o(f"s_add_u32 s58, s58, {EX_OFF}")
    o("s_lshl_b32 s59, s2, 7"); o(f"s_add_u32 s59, s59, {EXF_OFF}")
    o(f"v_subrev_u32 v27, 0x300, v{V_CNT}"); o("v_mov_b32 v28, 0"); o("ds_write_b32 v27, v28"); o("ds_write_b32 v27, v28 offset:256"); o("ds_write_b32 v27, v28 offset:512")
    Kk.srd(12, 32, SZ['w2']); Kk.srd(16, 28, SZ['x']); Kk.srd(20, 34, SZ['out']); Kk.srd(24, 30, SZ['wo'])
def p4_pre2(Kk, poll_stub):
    hc = ["v_cmp_eq_u32 vcc, 0, v16"]
    Kk.op("s_waitcnt vmcnt(1)")
    Kk.op(hc[0]); Kk.op("s_nop 0")
    poll_stub(Kk, 16, HL, hc)(Kk)
    Kk.vm = []
    for st in range(HR - 1): ems(Kk, h_load(Kk, st))

def place(n, groups):
    slots = {g: [] for g in range(-1, n)}
    return slots

def p4(Kk, poll_stub):
    o = Kk.op
    Kk.vm += ["cs"] * 8
    Kk.lg = []
    o(f"v_mov_b32 v224, v7"); o(f"v_add_u32 v225, {NKS*1024 - 1024}, v7")
    o("v_lshrrev_b32 v20, 4, v1"); o("v_and_b32 v21, 15, v1"); o("v_lshlrev_b32 v22, 1, v20"); o("v_xor_b32 v21, v21, v22")
    o("v_lshlrev_b32 v22, 10, v20"); o("v_lshl_add_u32 v226, v21, 4, v22")
    o("v_xor_b32 v21, 8, v21"); o("v_lshl_add_u32 v227, v21, 4, v22"); o("v_add_u32 v227, 0xc00, v227")
    o("v_lshlrev_b32 v22, 8, v25"); o("v_lshl_add_u32 v22, v24, 3, v22"); o("v_and_b32 v23, 7, v25")
    o("s_and_b32 s63, s40, 1"); o("s_lshl_b32 s63, s63, 2"); o("v_xor_b32 v23, s63, v23")
    for fb in range(4):
        o(f"v_xor_b32 v26, {fb}, v23"); o(f"v_lshl_add_u32 v{228+fb}, v26, 5, v22"); o(f"v_add_u32 v{236+fb}, 0x10000, v{228+fb}"); o(f"v_add_u32 v{242+fb}, 0x20000, v{228+fb}")
    o("s_lshr_b32 s63, s40, 1"); o("s_lshl_b32 s63, s63, 12"); o("v_add_u32 v232, s63, v7"); o("v_add_u32 v233, 0x10000, v232"); o("v_add_u32 v246, 0x20000, v232")
    o(f"v_subrev_u32 v234, 0x300, v{V_CNT}")
    o("s_and_b32 s63, s2, 1"); o("s_lshl_b32 s63, s63, 6"); o("v_add_u32 v247, s63, v61"); o("v_and_b32 v247, 0x7f, v247")
    o("v_lshlrev_b32 v240, 7, v1"); o(f"v_add_u32 v241, {NKS*1024}, v240")
    o("s_waitcnt lgkmcnt(0)"); o(f"ds_add_u32 v{V_CNT}, v{V_ONE}"); Kk.lg.append(None)
    Kk.wait_vm(["H0"])
    ems(Kk, h_trr(0))
    def chk():
        b = stub_branch(Kk, 'spin')
        return [lambda Kk: Kk.lds(f"ds_read_b32 v{V_FLG}, v{V_CNT}", "F"), lambda Kk: Kk.wait_lg(["F"]), f"v_cmp_gt_u32 vcc, s{S_TGT}, v{V_FLG}", b, f"s_add_u32 s{S_TGT}, s{S_TGT}, 4"]
    def h_step(i, extra_first=(), extra=(), nxt=True, first=False):
        mf = []
        for fb in range(4):
            for tb in range(4):
                D = v(HACC + (fb*4+tb)*4, 4)
                mf.append(mfma(D, v(WFH + (i % 2)*16 + fb*4, 4), HAR(i % HR, tb), "0" if first else D))
        sl = {g: [] for g in range(-1, 16)}
        def w(Kk):
            nv = Kk.vm_after(f"H{i+1}") if nxt else Kk.vm_after(f"H{i}")
            Kk.op(f"s_waitcnt vmcnt({min(nv,63)}) lgkmcnt({Kk.lg_n([f'HT{i}'])})")
        sl[-1].append(w)
        sl[-1] += list(extra_first)
        if nxt:
            for k, e in enumerate(h_trr(i + 1)): sl[k].append(e)
        pos = 0
        for e in extra:
            sl[min(pos, 15)].append(e); pos += 1
        for g in sl:
            lst = sl[g]; new = []
            for e in lst:
                if new and isinstance(new[-1], str) and "m0," in new[-1] and callable(e): new.append("s_nop 0")
                new.append(e)
            sl[g] = new
        emit_slots(Kk, mf, sl)
    NH1 = int(os.environ.get("NH1", 4))
    pub = lambda Kk: Kk.vmem(f"buffer_store_dword v{V_ONE}, v0, {WS}, s48 offen sc1", "pub")
    def hc_(j):
        def f(Kk):
            for c in hchk(j): Kk.op(c)
            poll_stub(Kk, 62, CLD, hchk(j), scc=True)(Kk)
        return f
    refresh = lambda Kk: Kk.vmem(CLD, "cf")
    EXS = [3, 4, 6, 38]
    def exaddr(Kk):
        for src in range(4):
            o(f"s_add_u32 s63, s58, {src*8192}"); o(f"s_cmp_eq_u32 s5, {src}"); o(f"s_cselect_b32 s{EXS[src]}, 0x7f000000, s63")
    def exload(Kk):
        for src in range(4):
            for hf in range(2): Kk.vmem(f"buffer_load_dwordx4 {v(192+src*8+hf*4,4)}, v7, {WS}, s{EXS[src]} offen offset:{hf*1024} sc1", "ex")
    CK = int(os.environ.get("CK", 9))
    for i in range(11):
        ex = []; ef = []
        if i + HR - 1 < 11: ex += h_load(Kk, i + HR - 1)
        if i == 1: ef = [lambda Kk: Kk.wait_vm(["cs"]), pub]
        if i == 2: ex += [lambda Kk: Kk.vmem(f"buffer_load_dword v63, off, {WS}, s57 sc1", "pr")]
        if i == CK - 2: ex += [refresh]
        if i == CK:
            ef += [lambda Kk: Kk.wait_vm(["cf"]), hc_(0)] + chk()
            ex += c_fetch(0) + c_fetch(1) + c_fetch(2)
        if i == CK + 1: ef += [hc_(1), refresh]; ex += c_fetch(3) + c_fetch(4) + (c_fetch(5) if HR == 3 else [])
        h_step(i, ef, ex, nxt=(i + 1 < 11), first=(i == 0))
    Kk.stamp(6)
    Kk.wait_vm(["C2"], lgkm=0); o(f"ds_add_u32 v{V_CNT}, v{V_ONE}"); Kk.lg.append(None)
    ems(Kk, chk())
    ems(Kk, c_reads(0))
    for n_ in range(6 if HR == 3 else 5, DIST): ems(Kk, c_fetch(n_))
    Kk.stamp(4);
    for n in range(32):
        mf = []
        for fb in range(4):
            for tb in range(4):
                D = v(CACC + (fb*4+tb)*4, 4)
                mf.append(mfma(D, v(CW + (n % 2)*16 + fb*4, 4), CAR(n % 2, tb), D if n else "0"))
        it = []
        def add(*a_, **k): it.append(Item(*a_, **k))
        def w(Kk, n=n):
            nv = Kk.vm_after(f"C{n+3}") if n + 3 < 32 else 63
            Kk.op(f"s_waitcnt vmcnt({min(nv,63)}) lgkmcnt(0)")
        add("w", w, -1, -1, cost=4, first=True)
        add("br", "s_nop 0", -1, -1, cost=0, after=[("w", 0)])
        it[-1].txt = lambda Kk: None
        if n < 30:
            add("arr", lambda Kk, n=n: Kk.lds(f"ds_add_u32 v234, v{V_ONE} offset:{(n%3)*256}"), -1, 0, after=[("w", 0)], cost=4)
        if n < 31:
            prev = "br"
            for k, e in enumerate(c_reads(n + 1)):
                add(f"r{k}", e, 0, 12, after=[(prev, 0)], cost=4); prev = f"r{k}"
        if 1 <= n < 31:
            tg = 4 * ((n - 1) // 3 + 1); off = ((n - 1) % 3) * 256
            add("fr", lambda Kk, off=off: Kk.lds(f"ds_read_b32 v{V_FLG}, v234 offset:{off}", "F"), 0, 1, cost=4)
            add("fw", lambda Kk: Kk.wait_lg(["F"]), 8, 13, after=[("fr", 6)], cost=4)
            add("cmp", f"v_cmp_gt_u32 vcc, {tg}, v{V_FLG}", 8, 14, after=[("fw", 0)])
            add("fb", stub_branch(Kk, (off, tg)), 9, 15, after=[("cmp", 1)], cost=4)
        ft = c_fetch(n + DIST) if n + DIST < 32 else ([lambda Kk, fb=fb: Kk.vmem(f"buffer_load_dwordx2 {v(48+2*fb,2)}, v60, s[16:19], s62 offen offset:{fb*32}", "xr") for fb in range(4)] + [exaddr] if n == 28 else [])
        prev = "br"
        assert DIST == 7
        if n % 4 == 1 and n <= 21:
            add("hc", hc_((n + 7) // 4), -1, -1, after=[("w", 0)], cost=8); prev = "hc"
            if n <= 17: add("rf", refresh, -1, 0, after=[("hc", 0)], cost=4); prev = "rf"
        if len(ft) == 10:
            add("wa", ft[0], -1, 0, after=[(prev, 0)]); add("wb", ft[1], -1, 0, after=[("wa", 0)]); prev = "wb"; ft = ft[2:]
        for k, e in enumerate(ft):
            d = 1 if (k and isinstance(ft[k-1], str) and "m0," in ft[k-1]) else 0
            lo_, hi_ = 1, 15
            if len(ft) == 8 and not os.environ.get("NOSP"):
                lo_, hi_ = {0: (0, 0), 1: (1, 1), 2: (5, 5), 3: (6, 8), 4: (6, 8), 5: (9, 9), 6: (13, 13), 7: (13, 15)}[k]
            add(f"f{k}", e, lo_, hi_, after=[(prev, d)], cost=4); prev = f"f{k}"
        sl = schedule(16, it)
        FX = os.environ.get("CX", "")
        def keep(x):
            if 'a' in FX and x.txt in ("s_add_u32 s55, s55, 1024", "s_add_u32 s54, s54, 32768"): return False
            if 'd' in FX and x.name.startswith("f") and x.name != "fr" and n + DIST < 32 and callable(x.txt): Kk.vm.append(f"C{n+DIST}"); return False
            if 's' in FX and x.name in ("br",): return False
            if 'r' in FX and x.name.startswith("r"): return False
            return True
        emit_slots(Kk, mf, {g: [x.txt for x in sl[g] if keep(x)] for g in sl})
    Kk.stamp(12)
    PRL = f"buffer_load_dword v63, off, {WS}, s57 sc1"; PRC = ["v_cmp_eq_u32 vcc, 0, v63"]
    o(PRC[0]); o("s_nop 3")
    poll_stub(Kk, 63, PRL, PRC)(Kk)
    o("s_nop 3")
    o("s_cmp_eq_u32 s40, s5"); o("s_cbranch_scc1 p4_own")
    for tb in range(4):
        if tb == 2: o("s_add_u32 s56, s56, 4096")
        for hf in range(2):
            q0 = CACC + ((2*hf)*4 + tb)*4; q1 = CACC + ((2*hf+1)*4 + tb)*4
            o(f"v_cvt_pk_bf16_f32 v{q0}, v{q0}, v{q0+1}"); o(f"v_cvt_pk_bf16_f32 v{q0+1}, v{q0+2}, v{q0+3}")
            o(f"v_cvt_pk_bf16_f32 v{q0+2}, v{q1}, v{q1+1}"); o(f"v_cvt_pk_bf16_f32 v{q0+3}, v{q1+2}, v{q1+3}")
            o(f"buffer_store_dwordx4 {v(q0,4)}, v7, {WS}, s56 offen offset:{(tb%2)*2048 + hf*1024} sc1")
    o("s_branch p4_exd")
    Kk.label("p4_own")
    for i in range(64): o(f"v_add_f32 v{HACC+i}, v{HACC+i}, v{CACC+i}")
    o("s_nop 1")
    Kk.label("p4_exd")
    exload(Kk)
    Kk.stamp(11)
    o("s_barrier")
    o("s_lshl_b32 s47, s40, 14"); o("v_add_u32 v3, s47, v7"); o("s_nop 4")
    for blk in range(16): o(f"ds_write_b128 v3, {v(HACC+blk*4,4)} offset:{blk*1024}")
    o("s_waitcnt lgkmcnt(0)")
    o("s_barrier")
    o("s_lshl_b32 s63, s40, 10"); o("v_add_u32 v3, s63, v7")
    for src in range(4):
        for fb in range(4): o(f"ds_read_b128 {v(128+src*16+fb*4,4)}, v3 offset:{src*16384 + fb*4096}")
    o("s_waitcnt vmcnt(8)")
    o("s_nop 0")
    for fb in range(4):
        for r in range(2):
            o(f"v_lshlrev_b32 v{64+fb*4+2*r}, 16, v{48+2*fb+r}")
            o(f"v_and_b32 v{64+fb*4+2*r+1}, 0xffff0000, v{48+2*fb+r}")
    for src in range(4):
        o(f"s_waitcnt lgkmcnt({12-4*src})")
        for i in range(16): o(f"v_add_f32 v{64+i}, v{64+i}, v{128+src*16+i}")
    o("s_mov_b32 s49, 0x8000")
    Kk.label("p4_exchk")
    o("s_waitcnt vmcnt(0)")
    o("v_max3_u32 v224, v192, v196, v200"); o("v_max3_u32 v225, v204, v208, v212"); o("v_max3_u32 v224, v216, v220, v224"); o("v_max_u32 v224, v224, v225")
    o("v_cmp_eq_u32 vcc, -1, v224")
    o("s_sub_u32 s49, s49, 1"); o("s_cbranch_scc1 p4_exok")
    o("s_cbranch_vccz p4_exok")
    o("s_sleep 2")
    sv = list(Kk.vm); exload(Kk); Kk.vm = sv
    o("s_branch p4_exchk")
    Kk.label("p4_exok")
    for src in range(4):
        for k in range(8):
            R = 192 + src*8 + k; d = 64 + 2*k
            o(f"v_lshlrev_b32 v226, 16, v{R}"); o(f"v_and_b32 v227, 0xffff0000, v{R}")
            o(f"v_add_f32 v{d}, v{d}, v226"); o(f"v_add_f32 v{d+1}, v{d+1}, v227")
    for fb in range(4):
        o(f"v_cvt_pk_bf16_f32 v{48+2*fb}, v{64+fb*4}, v{64+fb*4+1}")
        o(f"v_cvt_pk_bf16_f32 v{49+2*fb}, v{64+fb*4+2}, v{64+fb*4+3}")
        o(f"buffer_store_dwordx2 {v(48+2*fb,2)}, v60, s[20:23], s62 offen offset:{fb*32}")
```
